```python
import torch

def _softmax(x, axis=-1):
    return torch.softmax(x, dim=axis)
def _gelu(x):
    return torch.nn.functional.gelu(x, approximate="tanh")
def _silu(x):
    return torch.nn.functional.silu(x)
def _sigmoid(x):
    return torch.sigmoid(x)
def _layernorm(x, axis=-1, eps=1e-5):
    m = x.mean(dim=axis, keepdim=True)
    v = x.var(dim=axis, keepdim=True, unbiased=False)
    return (x - m) / torch.sqrt(v + eps)
def _scatter_add(tgt, idx, src, axis=0):
    return tgt.clone().index_add_(axis, idx, src)
def _segment_sum(src, seg, n):
    out = torch.zeros((n,) + src.shape[1:], dtype=src.dtype)
    return out.index_add_(0, seg, src)
def _pad(x, pw):
    flat = tuple(v for pair in reversed(pw) for v in pair)
    return torch.nn.functional.pad(x, flat)

kernel_name = 'standalone__detection_seg_fpn_lateral__vision'

def setup_inputs():

    _w = (lambda a: (lambda t: t.to(torch.bfloat16) if t.is_floating_point() else t)(torch.as_tensor(a)))
    H = W = (224 // 2) * 2
    C = 192
    k = 3
    return {
        "c_fine": _w((lambda *s: torch.randn(*s, dtype=torch.bfloat16) * 0.05)(1, H, W, C)),
        "p_coarse": _w((lambda *s: torch.randn(*s, dtype=torch.bfloat16) * 0.05)(1, H // 2, W // 2, C)),
        "w_lat": _w((lambda *s: torch.randn(*s, dtype=torch.bfloat16) * 0.05)(C, C)),
        "w_out": _w((lambda *s: torch.randn(*s, dtype=torch.bfloat16) * 0.05)(k, k, C, C)),
    }

def reference(c_fine, p_coarse, w_lat, w_out):
    B, H, W, C = c_fine.shape
    k = 3
    lat = torch.einsum("bhwc,cd->bhwd", c_fine, w_lat)
    up = (lambda x, n, axis: torch.repeat_interleave(x, n, dim=axis))((lambda x, n, axis: torch.repeat_interleave(x, n, dim=axis))(p_coarse, 2, axis=1), 2, axis=2)
    m = lat + up
    pad = k // 2
    mp = _pad(m, ((0, 0), (pad, pad), (pad, pad), (0, 0)))
    o = None
    for di in range(k):
        for dj in range(k):
            t = torch.einsum("bhwc,cd->bhwd", mp[:, di:di + H, dj:dj + W, :], w_out[di, dj])
            o = t if o is None else o + t
    return o
```

```python
import re, sys
class Em:
    def __init__(self): self.out = []
    def A(self, s): self.out.append("    " + s)
    def L(self, s): self.out.append(s + ":")
    def C(self, s): self.out.append("    ; " + s)
    def raw(self, s): self.out.append(s)
    def text(self): return "\n".join(self.out)

class Trk:
    def __init__(self, name, maxc): self.ops = []; self.name = name; self.maxc = maxc
    def issue(self, tag): self.ops.append(tag)
    def need(self, tags, emit, lag=None):
        if isinstance(tags, str): tags = {tags}
        idx = max([i for i, t in enumerate(self.ops) if t in tags], default=-1)
        if idx < 0: return
        after = len(self.ops) - 1 - idx
        n = after if lag is None else min(after, lag)
        n = min(n, self.maxc)
        emit("s_waitcnt %s(%d)" % (self.name, n))
        self.ops = self.ops[len(self.ops) - n:] if n > 0 else []
    def drain(self, emit):
        emit("s_waitcnt %s(0)" % self.name); self.ops = []
    def clear(self): self.ops = []

def regs_of(tok):
    m = re.fullmatch(r"([va])(\d+)", tok)
    if m: return {(m.group(1), int(m.group(2)))}
    m = re.fullmatch(r"([va])\[(\d+):(\d+)\]", tok)
    if m: return {(m.group(1), i) for i in range(int(m.group(2)), int(m.group(3)) + 1)}
    return set()

def hazard_check(lines):
    ins = []
    for ln in lines:
        s = ln.split(";")[0].strip()
        if not s or s.endswith(":") or s.startswith("."): continue
        parts = s.replace(",", " ").split()
        op = parts[0]; toks = parts[1:]
        rs = [regs_of(t) for t in toks]
        rd = set(); wr = set(); kind = "o"
        if op.startswith("v_mfma"):
            kind = "m"; wr = rs[0]; ab = rs[1] | rs[2]; c = rs[3] if len(rs) > 3 else set()
            ins.append((kind, op, ab, c, wr, 1, s)); continue
        if op.startswith("v_cmp"): kind = "v"; rd = set().union(*rs) if rs else set()
        elif op.startswith("v_swap") or op.startswith("v_permlane"): kind = "v"; rd = rs[0] | rs[1]; wr = rs[0] | rs[1]
        elif op.startswith("v_readfirstlane") or op.startswith("v_readlane"): kind = "v"; rd = set().union(*rs)
        elif op.startswith("v_"):
            kind = "v"; wr = rs[0]; rd = set().union(*rs[1:]) if len(rs) > 1 else set()
            if op.startswith("v_fmac") or op.startswith("v_dot2c"): rd |= rs[0]
        elif op.startswith("ds_read") or (op.startswith("buffer_load") and "lds" not in toks) or op.startswith("global_load"):
            kind = "l"; wr = rs[0]; rd = set().union(*rs[1:])
        elif op.startswith("ds_write") or op.startswith("buffer_store") or op.startswith("buffer_load") or op.startswith("buffer_atomic") or op.startswith("global_store"):
            kind = "s"; rd = set().union(*rs)
        w = 1
        if op == "s_nop": w = int(toks[0]) + 1
        ins.append((kind, op, rd, set(), wr, w, s))
    errs = 0
    for p, I in enumerate(ins):
        if I[0] == "m":
            D = I[4]; dist = 0
            for q in range(p + 1, min(p + 12, len(ins))):
                J = ins[q]
                if dist >= 8: break
                if J[0] == "m":
                    if J[2] & D: print("HAZ mfma D->A/B dist %d: %s | %s" % (dist, I[6], J[6]), file=sys.stderr); errs += 1
                    if (J[3] & D) and J[3] != D and dist < 6: print("HAZ mfma D->C overlap: %s | %s" % (I[6], J[6]), file=sys.stderr); errs += 1
                else:
                    if (J[2] | J[4]) & D: print("HAZ mfma D->other dist %d: %s | %s" % (dist, I[6], J[6]), file=sys.stderr); errs += 1
                dist += J[5]
        if I[0] == "v":
            dist = 0
            for q in range(p + 1, min(p + 4, len(ins))):
                J = ins[q]
                if dist >= 2: break
                if J[0] == "m" and ((J[2] | J[3]) & I[4]): print("HAZ valu->mfma dist %d: %s | %s" % (dist, I[6], J[6]), file=sys.stderr); errs += 1
                dist += J[5]
        if I[0] == "s" and ("x4" in I[1] or "x3" in I[1]) and I[1].startswith("buffer_store"):
            dist = 0
            for q in range(p + 1, min(p + 4, len(ins))):
                J = ins[q]
                if dist >= 2: break
                if J[4] & I[2]: print("HAZ store data WAR: %s | %s" % (I[6], J[6]), file=sys.stderr); errs += 1
                dist += J[5]
    return errs
```

```python
import sys, os
from common import *
STAMPS = int(sys.argv[1]) if len(sys.argv) > 1 else 0
KN = "standalone__detection_seg_fpn_lateral__vision_kernel"
PP = 416; RP = 16 * PP; VB = 16 * RP; VS = 28672; STG = 3072
LDS = VB + 2 * VS
HUGE = 0x40000000
SZ_CF = 224 * 224 * 384; SZ_PC = 112 * 112 * 384; SZ_WL = 192 * 384; SZ_WO = 9 * 192 * 384; SZ_OUT = SZ_CF
SZ_U = 96 * 12288
E = Em(); A = E.A; L = E.L; C = E.C
E.raw("; @launch grid=(256,1,1) block=(256,1,1) lds=%d" % LDS)
E.raw('.amdgcn_target "amdgcn-amd-amdhsa--gfx950"')
E.raw(".text")
def upos(i, j):
    if i == 1: return (j >> 1, j & 1)
    if i == 2: return (j >> 1, 2 + (j & 1))
    if i == 0: return (2, j)
    return (3, j)
def ugam(p, kk, ks, pidx): return p * 24 + kk * 8 + (pidx >> 1) * 4 + ks * 2 + (pidx & 1)

vBR0, vBR1, vVW, vTA, vTAH, vUO, vSO4, vSO2, vSO4b, vSO2b, vRHO = 1, 2, 3, 4, 5, 6, 7, 8, 9, 10, 11
vX = 12; vVA = 16; vVT = 24; vBF = 32; ACC = 64
vLANE, vP, vG = 32, 33, 34
T0, T1, T2, T3, T4, T5, T6, T7, T8, T9 = 35, 36, 37, 38, 39, 40, 41, 42, 43, 44
vLB = 45; vMW4 = 47; vMW2 = 49; vTRB = 51; vWD = 54; vCFN, vCFL, vCFR = 57, 58, 59; vPC4, vPC2 = 60, 61; vUL, vUSo = 62, 63
vFLG, vFLO = 12, 13
XA, XB, XC, XD, XE, XF = 16, 17, 18, 19, 20, 21
aWL = 0; aPF = 72
aUF = 192; aT = 240
sCF, sPC, sWL, sU, sOUT, sWO, sDBG = 4, 8, 12, 16, 20, 24, 56
sW, sTY, sTX, sRB, sRB2, sDSO, sT0, sT1, sT2, sT3, sCFB, sCFL, sUS, sPCB, sUT, sUSB = 28, 29, 30, 31, 32, 33, 35, 39, 52, 53, 37, 36, 54, 55, 34, 38
sSTAMP = 64
def lacc(t, d): return ACC + (t * 3 + d) * 4
nst = [0]
CH = int(os.environ.get("CHSTAMP", "0"))
def stamp(kind=0):
    if not STAMPS: return
    if kind != 0 and kind != CH: return
    i = nst[0]; nst[0] += 1
    assert sSTAMP + 2 * i + 1 < 100
    A("%s s[%d:%d]" % ("s_memrealtime" if STAMPS >= 2 else "s_memtime", sSTAMP + 2 * i, sSTAMP + 2 * i + 1))
    A("s_waitcnt lgkmcnt(0)"); lg.clear()
lg = Trk("lgkmcnt", 15); vm = Trk("vmcnt", 63)

E.raw(".globl %s\n.p2align 8\n.type %s,@function\n%s:" % (KN, KN, KN))
main_start = len(E.out)
A("s_cmp_ge_u32 s2, 256")
A("s_cbranch_scc1 L_end")
stamp()
A("s_load_dwordx8 s[40:47], s[0:1], 0")
A("s_load_dwordx4 s[48:51], s[0:1], 32")
A("s_load_dwordx2 s[100:101], s[0:1], 48")
A("v_lshrrev_b32 v%d, 6, v0" % T0)
A("v_and_b32 v%d, 63, v0" % vLANE)
A("v_readfirstlane_b32 s%d, v%d" % (sW, T0))
A("v_and_b32 v%d, 15, v0" % vP)
A("v_lshrrev_b32 v%d, 4, v%d" % (vG, vLANE))
A("s_and_b32 s%d, s2, 7" % sT0)
A("s_lshl_b32 s%d, s%d, 5" % (sT0, sT0))
A("s_lshr_b32 s%d, s2, 3" % sT1)
A("s_add_u32 s%d, s%d, s%d" % (sT0, sT0, sT1))
A("s_lshr_b32 s%d, s%d, 4" % (sTY, sT0))
A("s_and_b32 s%d, s%d, 15" % (sTX, sT0))
C("U task ids: kc = wg/12, wt = wg%12, ww = wt/3, t = wt%3 ; g = wave")
A("s_mul_i32 s60, s2, 43691"); A("s_lshr_b32 s60, s60, 19")
A("s_mul_i32 s61, s60, 12"); A("s_sub_u32 s61, s2, s61")
A("s_mul_i32 s62, s61, 21846"); A("s_lshr_b32 s62, s62, 16")
A("s_mul_i32 s63, s62, 3"); A("s_sub_u32 s63, s61, s63")
A("v_lshrrev_b32 v%d, 2, v%d" % (T1, vLANE))
A("v_and_b32 v%d, 3, v%d" % (T2, vLANE))
A("v_lshrrev_b32 v%d, 2, v%d" % (T3, T1)); A("v_and_b32 v%d, 3, v%d" % (T4, T1))
A("v_lshl_add_u32 v%d, v%d, 3, v%d" % (T3, T3, T4))
A("s_lshl_b32 s%d, s63, 2" % sT0)
A("v_add_u32 v%d, s%d, v%d" % (T3, sT0, T3))
A("v_add_u32 v%d, 32, v%d" % (T4, T1))
A("s_cmp_eq_u32 s63, 2"); A("s_cselect_b64 vcc, -1, 0")
A("v_cndmask_b32 v%d, v%d, v%d, vcc" % (T3, T3, T4))
A("s_mul_i32 s%d, s62, 96" % sT0)
A("s_mul_i32 s%d, s%d, %d" % (sT1, sW, 8 * 384))
A("s_add_u32 s%d, s%d, s%d" % (sT0, sT0, sT1))
A("v_lshlrev_b32 v%d, 1, v%d" % (T3, T3))
A("v_mul_u32_u24 v%d, 768, v%d" % (T4, T2))
A("v_add3_u32 v%d, v%d, v%d, s%d" % (vUL, T3, T4, sT0))
A("s_lshl_b32 s%d, s61, 10" % sT0); A("s_lshl_b32 s%d, s%d, 8" % (sT1, sW)); A("s_add_u32 s%d, s%d, s%d" % (sT0, sT0, sT1))
A("v_lshlrev_b32 v%d, 2, v%d" % (T3, vLANE))
A("v_add_u32 v%d, s%d, v%d" % (vUSo, sT0, T3))
A("s_mul_i32 s%d, s60, 12288" % sUT)
A("s_lshr_b32 s%d, s60, 1" % sT0); A("s_lshl_b32 s%d, s%d, 3" % (sT0, sT0)); A("s_and_b32 s%d, s60, 1" % sT1); A("s_lshl_b32 s%d, s%d, 1" % (sT1, sT1))
A("s_add_u32 s%d, s%d, s%d" % (sT0, sT0, sT1)); A("s_mul_i32 s%d, s%d, 12288" % (sUSB, sT0))
A("s_cmp_lt_u32 s2, 72")
A("s_cselect_b32 s%d, s%d, 0x%x" % (sUT, sUT, HUGE))
A("s_cselect_b32 s%d, s%d, 0x%x" % (sUSB, sUSB, HUGE))
C("w_lat staging: stages 0..3 at VB + w*12288 ; stages 4,5 at 12*RP + w*6144")
A("s_mul_i32 s%d, s%d, 12288" % (sRB, sW)); A("s_add_u32 s%d, s%d, %d" % (sRB, sRB, VB))
A("s_mul_i32 s%d, s%d, 6144" % (sRB2, sW)); A("s_add_u32 s%d, s%d, %d" % (sRB2, sRB2, 12 * RP))
A("s_mul_i32 s%d, s%d, 96" % (sT1, sW))
for n in range(3):
    A("v_add_u32 v%d, %d, v%d" % (T0, 64 * n, vLANE))
    A("v_mul_u32_u24 v%d, 10923, v%d" % (T1, T0))
    A("v_lshrrev_b32 v%d, 16, v%d" % (T1, T1))
    A("v_mul_u32_u24 v%d, 6, v%d" % (T2, T1))
    A("v_sub_u32 v%d, v%d, v%d" % (T2, T0, T2))
    A("v_mul_u32_u24 v%d, 384, v%d" % (T3, T1))
    A("v_lshl_add_u32 v%d, v%d, 4, v%d" % (T3, T2, T3))
    A("s_sub_u32 s%d, s%d, %d" % (sT2, sT1, 1024 * n))
    A("v_add_u32 v%d, s%d, v%d" % (vWD + n, sT2, T3))
A("s_waitcnt lgkmcnt(0)")
for (s, p, sz) in ((sWO, 46, SZ_WO), (sWL, 44, SZ_WL), (sCF, 40, SZ_CF), (sPC, 42, SZ_PC), (sU, 100, SZ_U), (sOUT, 48, SZ_OUT), (sDBG, 50, 256)):
    A("s_mov_b32 s%d, s%d" % (s, p)); A("s_mov_b32 s%d, s%d" % (s + 1, p + 1))
    A("s_mov_b32 s%d, %d" % (s + 2, sz)); A("s_mov_b32 s%d, 0x00020000" % (s + 3))
C("U task loads")
UG = lacc(8, 0)
for tap in range(9):
    for e in range(2):
        A("buffer_load_ushort v%d, v%d, s[%d:%d], s%d offen offset:%d" % (UG + 2 * tap + e, vUL, sWO, sWO + 3, sUT, 384 * e)); vm.issue("UG")
    if tap < 8: A("s_add_u32 s%d, s%d, 73728" % (sUT, sUT))
C("w_lat DMAs")
for g in range(6):
    A("s_mov_b32 s%d, %d" % (sDSO, g * 12288))
    if g < 4: A("s_add_u32 s%d, s%d, %d" % (sT0, sRB, g * STG))
    else: A("s_add_u32 s%d, s%d, %d" % (sT0, sRB2, (g - 4) * STG))
    A("s_mov_b32 m0, s%d" % sT0); A("s_nop 0")
    for n in range(3):
        A("buffer_load_dwordx4 v%d, s[%d:%d], s%d offen offset:%d lds" % (vWD + n, sWL, sWL + 3, sDSO, 1024 * n)); vm.issue("WL")
C("c_fine DMA lane offsets (pad lanes & lanes>=52 -> handled by exec mask)")
A("v_cmp_lt_u32 vcc, 25, v%d" % vLANE)
A("v_subrev_u32 v%d, 26, v%d" % (T0, vLANE))
A("s_nop 0")
A("v_cndmask_b32 v%d, v%d, v%d, vcc" % (T0, vLANE, T0))
A("v_lshlrev_b32 v%d, 4, v%d" % (T0, T0))
A("v_add_u32 v%d, 384, v%d" % (T1, T0))
A("v_cndmask_b32 v%d, v%d, v%d, vcc" % (vCFN, T0, T1))
A("v_mov_b32 v%d, 0x%x" % (T2, HUGE))
A("v_cndmask_b32 v%d, v%d, v%d, vcc" % (vCFL, T2, T0))
A("v_cndmask_b32 v%d, v%d, v%d, vcc" % (vCFR, T0, T2))
A("s_cmp_eq_u32 s%d, 0" % sTX)
A("s_cselect_b64 vcc, -1, 0")
A("s_cselect_b32 s%d, 384, 0" % sT3)
A("v_cndmask_b32 v%d, v%d, v%d, vcc" % (vCFL, vCFN, vCFL))
A("s_cmp_eq_u32 s%d, 15" % sTX)
A("s_cselect_b64 vcc, -1, 0")
A("s_nop 0")
A("v_cndmask_b32 v%d, v%d, v%d, vcc" % (vCFR, vCFN, vCFR))
A("s_mul_i32 s%d, s%d, 14" % (sCFB, sTY))
A("s_add_u32 s%d, s%d, s%d" % (sCFB, sCFB, sW))
A("s_mul_i32 s%d, s%d, 224" % (sCFB, sCFB))
A("s_mul_i32 s%d, s%d, 14" % (sT2, sTX))
A("s_add_u32 s%d, s%d, s%d" % (sCFB, sCFB, sT2))
A("s_sub_u32 s%d, s%d, 225" % (sCFB, sCFB))
A("s_mul_i32 s%d, s%d, 384" % (sCFB, sCFB))
A("s_mul_i32 s%d, s%d, %d" % (sCFL, sW, RP))
C("p_coarse lane offsets")
A("s_sub_u32 s%d, s%d, 1" % (sT2, sT2))
A("v_add_u32 v%d, s%d, v%d" % (T0, sT2, vP))
A("v_cmp_gt_u32 vcc, 224, v%d" % T0)
A("v_lshrrev_b32 v%d, 1, v%d" % (T0, T0))
A("v_mul_u32_u24 v%d, 384, v%d" % (T0, T0))
A("s_mul_i32 s%d, s%d, 96" % (sT2, sW))
A("v_add_u32 v%d, s%d, v%d" % (T0, sT2, T0))
A("v_lshl_add_u32 v%d, v%d, 4, v%d" % (T1, vG, T0))
A("v_lshlrev_b32 v%d, 3, v%d" % (T2, vG))
A("v_add3_u32 v%d, v%d, v%d, 64" % (T2, T0, T2))
A("v_mov_b32 v%d, 0x%x" % (T3, HUGE))
A("v_cndmask_b32 v%d, v%d, v%d, vcc" % (vPC4, T3, T1))
A("v_cndmask_b32 v%d, v%d, v%d, vcc" % (vPC2, T3, T2))
A("s_mul_i32 s%d, s%d, 7" % (sPCB, sTY))
A("s_sub_u32 s%d, s%d, 1" % (sPCB, sPCB))
A("s_mul_i32 s%d, s%d, %d" % (sPCB, sPCB, 112 * 384))

def cf_row(i):
    units = []
    for j in range(8):
        u = []
        if i == 0:
            u += [("s_add_u32 s%d, s%d, s%d" % (sT2, sTY, sW), None), ("s_cmp_eq_u32 s%d, 0" % sT2, None),
                  ("s_cselect_b32 s%d, 0x%x, s%d" % (sT2, HUGE, sCFB), None)]
            if j == 0: u.append(("s_add_u32 s%d, s%d, s%d" % (sT2, sT2, sT3), None))
            else: u.append(("s_add_u32 s%d, s%d, %d" % (sT2, sT2, j * 768), None))
        else:
            u.append(("s_add_u32 s%d, s%d, %d" % (sT2, sCFB, i * 4 * 224 * 384 + j * 768), None))
            if j == 0: u.append(("s_add_u32 s%d, s%d, s%d" % (sT2, sT2, sT3), None))
        u.append(("s_add_u32 s%d, s%d, %d" % (sT0, sCFL, i * 4 * RP + j * 2 * PP), None))
        u.append(("s_mov_b32 m0, s%d" % sT0, None))
        u.append(("s_mov_b64 exec, s[98:99]", None))
        u.append(("buffer_load_dwordx4 v%d, s[%d:%d], s%d offen lds" % (vCFL if j == 0 else (vCFR if j == 7 else vCFN), sCF, sCF + 3, sT2), "CF%d" % i))
        u.append(("s_mov_b64 exec, -1", None))
        units.append(u)
    return units
def pc_tile(j): return 0 if j == 0 else 2 * j - 1
def pc_load(j):
    b = lacc(pc_tile(j), 0)
    u = []
    if j == 0: u += [("s_cmp_eq_u32 s%d, 0" % sTY, None), ("s_cselect_b32 s%d, 0x%x, s%d" % (sT2, HUGE, sPCB), None)]
    else: u.append(("s_add_u32 s%d, s%d, %d" % (sT2, sPCB, j * 112 * 384), None))
    u.append(("buffer_load_dwordx4 v[%d:%d], v%d, s[%d:%d], s%d offen" % (b + 6, b + 9, vPC4, sPC, sPC + 3, sT2), "PC%d" % j))
    u.append(("buffer_load_dwordx2 v[%d:%d], v%d, s[%d:%d], s%d offen" % (b + 10, b + 11, vPC2, sPC, sPC + 3, sT2), "PC%d" % j))
    return [u]
def emit_units(units):
    for u in units:
        for x in u:
            A(x[0])
            if x[1]: vm.issue(x[1])
A("s_mov_b32 s98, 0xFCFFFFFF"); A("s_mov_b32 s99, 0x0003FFFF")
emit_units(cf_row(0)); emit_units(pc_load(0) + pc_load(1) + pc_load(2))
stamp(2)
C("address regs")
A("v_mul_u32_u24 v%d, %d, v%d" % (T0, PP, vP))
A("v_lshl_add_u32 v%d, v%d, 4, v%d" % (vLB, vG, T0))
A("v_add_u32 v%d, %d, v%d" % (vLB + 1, 8 * RP, vLB))
A("s_mul_i32 s%d, s%d, 96" % (sT2, sW))
A("v_add_u32 v%d, s%d, v%d" % (vMW4, sT2, vLB))
A("v_add_u32 v%d, %d, v%d" % (vMW4 + 1, 8 * RP, vMW4))
A("v_add_u32 v%d, s%d, v%d" % (T0, sT2, T0))
A("v_lshlrev_b32 v%d, 3, v%d" % (T2, vG))
A("v_add3_u32 v%d, v%d, v%d, 64" % (vMW2, T0, T2))
A("v_add_u32 v%d, %d, v%d" % (vMW2 + 1, 8 * RP, vMW2))
A("v_lshrrev_b32 v%d, 2, v%d" % (T0, vP))
A("v_and_b32 v%d, 3, v%d" % (T1, vP))
A("v_lshrrev_b32 v%d, 1, v%d" % (T2, vG))
A("v_and_b32 v%d, 1, v%d" % (T3, vG))
C("w_lat tr base (relative): 96*(8g + r) + 16cc  [tile0], +8 tile1, tile2: +64+8cc")
A("v_lshl_add_u32 v%d, v%d, 3, v%d" % (T6, vG, T0))
A("v_mul_u32_u24 v%d, 96, v%d" % (T6, T6))
A("v_lshl_add_u32 v%d, v%d, 4, v%d" % (vTRB, T1, T6))
A("v_lshlrev_b32 v%d, 3, v%d" % (T4, T1))
A("v_add3_u32 v%d, v%d, v%d, 64" % (vTRB + 1, T6, T4))
C("V-gen tr base")
A("v_lshl_add_u32 v%d, v%d, 2, v%d" % (T6, T3, T0))
A("v_mul_u32_u24 v%d, %d, v%d" % (T6, PP, T6))
A("v_mul_u32_u24 v%d, %d, v%d" % (T7, RP, T2))
A("v_add3_u32 v%d, v%d, v%d, v%d" % (T6, T6, T7, T4))
A("s_lshl_b32 s%d, s%d, 5" % (sT2, sW))
A("s_add_u32 s%d, s%d, %d" % (sT2, sT2, RP))
A("v_add_u32 v%d, s%d, v%d" % (vTA, sT2, T6))
A("v_add_u32 v%d, %d, v%d" % (vTAH, 8 * RP, vTA))
A("v_sub_u32 v%d, %d, v%d" % (vRHO, RP, T7))
A("v_and_b32 v%d, 7, v%d" % (T6, vP))
A("v_xor_b32 v%d, v%d, v%d" % (T7, vG, T6))
A("v_lshlrev_b32 v%d, 4, v%d" % (T7, T7))
A("v_lshl_add_u32 v%d, v%d, 7, v%d" % (T7, vP, T7))
A("v_add_u32 v%d, %d, v%d" % (vBR0, VB, T7))
A("v_xor_b32 v%d, 64, v%d" % (vBR1, vBR0))
A("s_lshl_b32 s%d, s%d, 1" % (sT2, sW))
A("v_add_u32 v%d, s%d, v%d" % (T7, sT2, T2))
A("v_xor_b32 v%d, v%d, v%d" % (T7, T7, T6))
A("v_lshlrev_b32 v%d, 4, v%d" % (T7, T7))
A("v_lshl_add_u32 v%d, v%d, 7, v%d" % (T7, T6, T7))
A("v_lshl_add_u32 v%d, v%d, 3, v%d" % (T7, T3, T7))
A("v_lshrrev_b32 v%d, 3, v%d" % (T8, vP))
A("v_mul_u32_u24 v%d, 7168, v%d" % (T9, T8))
A("v_add_u32 v%d, v%d, v%d" % (T7, T7, T9))
A("v_add_u32 v%d, %d, v%d" % (vVW, VB, T7))
A("s_mul_i32 s%d, s%d, %d" % (sT1, sTY, 14 * 224 * 384))
A("s_mul_i32 s%d, s%d, %d" % (sT2, sTX, 14 * 384))
A("s_add_u32 s%d, s%d, s%d" % (sT1, sT1, sT2))
A("s_mul_i32 s%d, s%d, 96" % (sT2, sW))
A("s_add_u32 s%d, s%d, s%d" % (sT1, sT1, sT2))
A("s_mov_b32 s%d, %d" % (sT2, 2 * 224 * 384))
A("v_mul_lo_u32 v%d, v%d, s%d" % (T7, T8, sT2))
A("v_mul_u32_u24 v%d, 768, v%d" % (T9, T6))
A("v_add3_u32 v%d, v%d, v%d, s%d" % (T7, T7, T9, sT1))
A("v_lshl_add_u32 v%d, v%d, 4, v%d" % (vSO4, vG, T7))
A("v_lshl_add_u32 v%d, v%d, 3, v%d" % (vSO2, vG, T7))
A("v_add_u32 v%d, 64, v%d" % (vSO2, vSO2))
A("v_cmp_gt_u32 vcc, 7, v%d" % T6)
A("v_mov_b32 v%d, 0x%x" % (T9, HUGE))
A("s_nop 0")
A("v_cndmask_b32 v%d, v%d, v%d, vcc" % (vSO4, T9, vSO4))
A("v_cndmask_b32 v%d, v%d, v%d, vcc" % (vSO2, T9, vSO2))
A("v_cmp_gt_u32 vcc, 8, v%d" % vP)
A("s_nop 1")
A("v_cndmask_b32 v%d, v%d, v%d, vcc" % (vSO4b, T9, vSO4))
A("v_cndmask_b32 v%d, v%d, v%d, vcc" % (vSO2b, T9, vSO2))
C("U stream voffset; flag store offset (tid==0 && wg<72 -> wg else HUGE); poll offset lane*4 (lane<18)")
A("v_lshlrev_b32 v%d, 4, v%d" % (T0, vLANE))
A("s_mul_i32 s%d, s%d, 3072" % (sT2, sW))
A("v_add_u32 v%d, s%d, v%d" % (vUO, sT2, T0))
A("v_cmp_eq_u32 vcc, 0, v0")
A("s_cmp_lt_u32 s2, 72"); A("s_cselect_b32 s%d, s2, 0x%x" % (sT2, HUGE))
A("v_mov_b32 v%d, s%d" % (T0, sT2))
A("v_cndmask_b32 v%d, v%d, v%d, vcc" % (vFLO, T9, T0))
C("T matrices")
A("v_lshlrev_b32 v%d, 2, v%d" % (T7, T3))
A("v_lshlrev_b32 v%d, 1, v%d" % (T9, T6))
A("v_sub_u32 v%d, v%d, v%d" % (T7, T7, T9))
A("v_cmp_eq_u32 vcc, 7, v%d" % T6)
A("v_add_u32 v%d, 64, v%d" % (T9, T7))
A("s_nop 0")
A("v_cndmask_b32 v%d, v%d, v%d, vcc" % (T7, T7, T9))
P1, M1 = 0x3F80, 0xBF80
tab = {0: ((0, P1, 2, M1), (1, P1, 2, P1)), 1: ((1, M1, 2, P1), (1, P1, 3, M1))}
A("v_cmp_eq_u32 s[60:61], 1, v%d" % T8)
A("v_lshrrev_b32 v%d, 5, v%d" % (XF, vLANE))
A("v_subrev_u32 v%d, 1, v%d" % (XF, XF))
A("v_and_b32 v%d, 0x80008000, v%d" % (XF, XF))
for nt in range(2):
    (a0, va0, b0, vb0), (a1, va1, b1, vb1) = tab[nt]
    for (dst, x0, x1) in ((XA, a0, a1), (XB, va0, va1), (XC, b0, b1), (XD, vb0, vb1)):
        A("v_mov_b32 v%d, 0x%x" % (dst, x0))
        A("v_mov_b32 v%d, 0x%x" % (XE, x1))
        A("v_cndmask_b32 v%d, v%d, v%d, s[60:61]" % (dst, dst, XE))
    for ep in range(4):
        for hh in range(2):
            e = 2 * ep + hh
            off = 8 * (e >> 2) + (e & 3)
            dst = T0 if hh == 0 else T1
            A("v_add_u32 v%d, %d, v%d" % (T9, off, T7))
            A("v_cmp_eq_u32 vcc, v%d, v%d" % (T9, XA))
            A("v_cmp_eq_u32 s[62:63], v%d, v%d" % (T9, XC))
            A("s_nop 0")
            A("v_cndmask_b32 v%d, 0, v%d, vcc" % (dst, XB))
            A("v_cndmask_b32 v%d, v%d, v%d, s[62:63]" % (dst, dst, XD))
        A("v_lshl_or_b32 v%d, v%d, 16, v%d" % (T0, T1, T0))
        A("v_accvgpr_write_b32 a%d, v%d" % (aT + 8 * nt + ep, T0))
        A("v_xor_b32 v%d, v%d, v%d" % (T0, T0, XF))
        A("v_accvgpr_write_b32 a%d, v%d" % (aT + 8 * nt + 4 + ep, T0))
aS = {0: aT, 1: aT + 8}; aR = {0: aT + 4, 1: aT + 12}
stamp(2)
C("U task compute")
vm.need("UG", A)
stamp(2)
for i in range(18): A("v_lshlrev_b32 v%d, 16, v%d" % (UG + i, UG + i))
RRg = UG + 18; TTg = UG + 24; URg = UG + 26; ORg = UG + 58
for e in range(2):
    g = lambda a, b: UG + (3 * a + b) * 2 + e
    R = {}
    for b in range(3):
        R[(0, b)] = g(0, b); R[(3, b)] = g(2, b)
        A("v_add_f32 v%d, v%d, v%d" % (TTg, g(0, b), g(2, b)))
        A("v_mul_f32 v%d, 0.5, v%d" % (TTg, TTg))
        A("v_fma_f32 v%d, 0.5, v%d, v%d" % (RRg + b, g(1, b), TTg)); R[(1, b)] = RRg + b
        A("v_fma_f32 v%d, -0.5, v%d, v%d" % (RRg + 3 + b, g(1, b), TTg)); R[(2, b)] = RRg + 3 + b
    ub = URg + 16 * e
    for i in range(4):
        A("v_mov_b32 v%d, v%d" % (ub + 4 * i + 0, R[(i, 0)]))
        A("v_mov_b32 v%d, v%d" % (ub + 4 * i + 3, R[(i, 2)]))
        A("v_add_f32 v%d, v%d, v%d" % (TTg, R[(i, 0)], R[(i, 2)]))
        A("v_mul_f32 v%d, 0.5, v%d" % (TTg, TTg))
        A("v_fma_f32 v%d, 0.5, v%d, v%d" % (ub + 4 * i + 1, R[(i, 1)], TTg))
        A("v_fma_f32 v%d, -0.5, v%d, v%d" % (ub + 4 * i + 2, R[(i, 1)], TTg))
for i in range(4):
    for j in range(4):
        n_ = "-" if i == 0 else ""
        p, pidx = upos(i, j)
        o = ORg + 4 * i + j
        A("v_cvt_pk_bf16_f32 v%d, %sv%d, %sv%d" % (o, n_, URg + 4 * i + j, n_, URg + 16 + 4 * i + j))
        A("s_add_u32 s%d, s%d, %d" % (sT2, sUSB, ugam(p, 0, 0, pidx) * 12288))
        A("buffer_store_dword v%d, v%d, s[%d:%d], s%d offen sc0 sc1" % (o, vUSo, sU, sU + 3, sT2)); vm.issue("UST")
VAR = os.environ.get("VAR", "A")
emit_units(cf_row(1)); emit_units(pc_load(3) + pc_load(4))
if VAR == "A": emit_units(cf_row(2)); emit_units(pc_load(5) + pc_load(6))
stamp(2)
C("w_lat frags -> a0..a71")
vm.need("WL", A)
A("v_add_u32 v%d, s%d, v%d" % (T0, sRB, vTRB)); A("v_add_u32 v%d, s%d, v%d" % (T1, sRB, vTRB + 1))
A("v_add_u32 v%d, s%d, v%d" % (T2, sRB2, vTRB)); A("v_add_u32 v%d, s%d, v%d" % (T3, sRB2, vTRB + 1))
for kc in range(6):
    for t in range(3):
        for h in range(2):
            a = aWL + (kc * 3 + t) * 4 + 2 * h
            base = (T0 if t < 2 else T1) if kc < 4 else (T2 if t < 2 else T3)
            off = (kc if kc < 4 else kc - 4) * STG + 384 * h + (8 if t == 1 else 0)
            A("ds_read_b64_tr_b16 a[%d:%d], v%d offset:%d" % (a, a + 1, base, off)); lg.issue("WLF")
def unpack_rows(js):
    ops = []
    for j in js:
        b = lacc(pc_tile(j), 0)
        dsts = [b] if j in (0, 8) else [lacc(2 * j, 0), b]
        for dbase in dsts:
            for i in range(6):
                ops.append("v_lshlrev_b32 v%d, 16, v%d" % (dbase + 2 * i, b + 6 + i))
                ops.append("v_and_b32 v%d, 0xffff0000, v%d" % (dbase + 2 * i + 1, b + 6 + i))
    return ops
def mwrite(r):
    b = lacc(r, 0)
    ops = [("x", "v_cvt_pk_bf16_f32 v%d, v%d, v%d" % (b + i, b + 2 * i, b + 2 * i + 1), None) for i in range(6)]
    ops.append(("lg", "ds_write_b128 v%d, v[%d:%d] offset:%d" % (vMW4 + (r >> 3), b, b + 3, (r & 7) * RP), "MW"))
    ops.append(("lg", "ds_write_b64 v%d, v[%d:%d] offset:%d" % (vMW2 + (r >> 3), b + 4, b + 5, (r & 7) * RP), "MW"))
    return ops
def pread(r, kc):
    a = aPF + ((r & 1) * 6 + kc) * 4
    return ("lg", "ds_read_b128 a[%d:%d], v%d offset:%d" % (a, a + 3, vLB + (r >> 3), (r & 7) * RP + 64 * kc), "P%d_%d" % (r, kc))

GORD = [(0, 0), (0, 1), (1, 0), (1, 1), (0, 2), (0, 3), (1, 2), (1, 3)]
groups = []
for n in range(12):
    for (ks, pidx) in GORD: groups.append((n, n // 3, n % 3, ks, pidx))
def uload(q, t):
    n, p, kk, ks, pidx = groups[q]
    a = aUF + 12 * (q % 4) + 4 * t
    r = []
    if t == 0: r.append(("s_mov_b32 s%d, %d" % (sUS, ugam(p, kk, ks, pidx) * 12288), None))
    r.append(("buffer_load_dwordx4 a[%d:%d], v%d, s[%d:%d], s%d offen offset:%d" % (a, a + 3, vUO, sU, sU + 3, sUS, 1024 * t), "U%d_%d" % (q, t)))
    return r

PCJ = {0: [0, 1, 2], 1: [3, 4], 2: [5, 6], 3: [7, 8]}
for k in range(4):
    need = {"CF%d" % k} | {"PC%d" % j for j in PCJ[k]}
    FK = 1 if VAR == "B" else 0
    if k == FK: need |= {"UST"}
    if k == 3: need |= {"POLL"}
    vm.need(need, A)
    stamp(2)
    if k == 3:
        C("check flags (wave 0 only); slow path polls again")
        A("s_cmp_lg_u32 s%d, 0" % sW)
        A("s_cbranch_scc1 L_polled")
        L("L_poll")
        A("v_cmp_ne_u32 vcc, 0x01010101, v%d" % vFLG)
        A("s_nop 1")
        A("s_and_b32 s60, vcc_lo, 0x3FFFF")
        A("s_cbranch_scc0 L_polled")
        A("s_sleep 20")
        A("buffer_load_dword v%d, v%d, s[%d:%d], 0 offen sc0 sc1" % (vFLG, T5, sDBG, sDBG + 3))
        A("s_waitcnt vmcnt(0)")
        A("s_branch L_poll")
        L("L_polled")
    for x in unpack_rows(PCJ[k]): A(x)
    lg.drain(A)
    A("s_barrier")
    stamp(2)
    units = []
    if k == FK:
        units.append([("v_mov_b32 v%d, 1" % T4, None), ("buffer_store_byte v%d, v%d, s[%d:%d], 0 offen sc0 sc1" % (T4, vFLO, sDBG, sDBG + 3), "FLAG")])
    if k == 0 and VAR != "A": units += cf_row(2) + pc_load(5) + pc_load(6)
    if k == 0: units += cf_row(3) + pc_load(7) + pc_load(8)
    if k == 2:
        units.append([("v_lshlrev_b32 v%d, 2, v0" % (T5,), None),
                      ("buffer_load_dword v%d, v%d, s[%d:%d], 0 offen sc0 sc1" % (vFLG, T5, sDBG, sDBG + 3), "POLL")])
    if k == 3:
        w = [("s_lshr_b32 s%d, s2, 3" % sT1, None), ("s_mul_i32 s%d, s%d, 36864" % (sT1, sT1), None)]
        units.append(w)
        for i in range(3):
            for n in range(3):
                u = [("buffer_load_dwordx4 a[%d:%d], v%d, s[%d:%d], s%d offen offset:%d" % (120 + 12 * i + 4 * n, 123 + 12 * i + 4 * n, vUO, sU, sU + 3, sT1, 1024 * n), "WARM")]
                if n == 2 and i < 2: u.append(("s_add_u32 s%d, s%d, 12288" % (sT1, sT1), None))
                units.append(u)

    mw = []
    if k > 0:
        for r in range(4 * k - 4, 4 * k): mw += mwrite(r)
    for kc in range(6):
        x = pread(4 * k, kc); A(x[1]); lg.issue(x[2])
    if k == 0: lg.need("WLF", A)
    for r in range(4 * k, 4 * k + 4):
        for kc in range(6):
            lg.need("P%d_%d" % (r, kc), A, 3)
            for d in range(3):
                a = lacc(r, d); w = aWL + (kc * 3 + d) * 4; p = aPF + ((r & 1) * 6 + kc) * 4
                A("v_mfma_f32_16x16x32_bf16 v[%d:%d], a[%d:%d], a[%d:%d], v[%d:%d]" % (a, a + 3, w, w + 3, p, p + 3, a, a + 3))
                if d == 0 and r < 4 * k + 3:
                    x = pread(r + 1, kc); A(x[1]); lg.issue(x[2])
                if d == 1 and units:
                    for x in units.pop(0):
                        A(x[0])
                        if x[1]: vm.issue(x[1])
                if d == 2:
                    for _ in range(2):
                        if mw:
                            x = mw.pop(0); A(x[1])
                            if x[2]: lg.issue(x[2]); break
    assert not units and not mw, (len(units), len(mw))
lg.drain(A)
A("s_barrier")
stamp()
for q in range(4):
    for t in range(3):
        for x in uload(q, t):
            A(x[0])
            if x[1]: vm.issue(x[1])
for r in range(12, 16):
    for x in mwrite(r): A(x[1])
A("s_waitcnt lgkmcnt(0)")
A("s_barrier")
stamp()

def accr(st, j, mt, t):
    b = ((j * 4 + mt) * 3 + t) * 4
    return ("v", ACC + b) if st == "V" else ("a", b)
def rr(x, n=4): return "%s[%d:%d]" % (x[0], x[1], x[1] + n - 1)
ACCMAP = [[("V", 0), ("V", 1), ("A", 0), ("A", 1)], [("V", 2), ("V", 3), ("A", 2), ("A", 3)],
          [("A", j) for j in range(4)], [("V", j) for j in range(4)]]
TSEL = [(aS[0], aR[0]), (aS[1], aR[1]), (aR[0], aR[1]), (aR[0], aR[1])]
def va_reg(n, k):
    if n >= 7: return ("a", aS[k & 1])
    return ("v", vVA + 4 * (k & 1))
def vgen_tr(n, k):
    kk = n % 3; x = va_reg(n, k)
    base = vTA if k < 4 else vTAH
    r = []
    for h in range(2):
        r.append(("ds_read_b64_tr_b16 %s[%d:%d], v%d offset:%d" % (x[0], x[1] + 2 * h, x[1] + 2 * h + 1, base, (k & 3) * 2 * RP + h * 8 * PP + kk * 128), "VA%d" % (k & 1)))
    return r
def vgen_mfma(n, k, which):
    p = n // 3; x = va_reg(n, k); tt = TSEL[p][which]; d = vVT + 4 * which
    return "v_mfma_f32_16x16x32_bf16 v[%d:%d], %s, a[%d:%d], 0" % (d, d + 3, rr(x), tt, tt + 3)
def vgen_out(n, k, which):
    d = vVT + 4 * which
    return [("v_cvt_pk_bf16_f32 v%d, v%d, v%d" % (d, d, d + 1), None), ("v_cvt_pk_bf16_f32 v%d, v%d, v%d" % (d + 1, d + 2, d + 3), None),
            ("ds_write_b64 v%d, v[%d:%d] offset:%d" % (vVW, d, d + 1, (n & 1) * VS + which * 14336 + k * 1024), "VW")]
def ta_update(n):
    if n == 6: return ["v_sub_u32 v%d, v%d, v%d" % (vTA, vTA, vRHO), "v_sub_u32 v%d, v%d, v%d" % (vTAH, vTAH, vRHO)]
    if n == 9: return ["v_add_u32 v%d, %d, v%d" % (vTA, RP, vTA), "v_add_u32 v%d, %d, v%d" % (vTAH, RP, vTAH)]
    return []
def bread(q, mt):
    n, p, kk, ks, pidx = groups[q]
    b = vBF + 16 * (q & 1) + 4 * mt
    return ("ds_read_b128 v[%d:%d], v%d offset:%d" % (b, b + 3, vBR1 if ks else vBR0, (n & 1) * VS + pidx * 7168 + mt * 2048), "B%d_%d" % (q, mt))

C("V-gen chunk 0 (not overlapped)")
for k in range(7):
    for x in vgen_tr(0, k): A(x[0]); lg.issue(x[1])
    lg.need("VA%d" % (k & 1), A)
    A(vgen_mfma(0, k, 0)); A(vgen_mfma(0, k, 1))
    A("s_nop 7")
    for w2 in range(2):
        for x in vgen_out(0, k, w2):
            A(x[0])
            if x[1]: lg.issue(x[1])
for x in vgen_tr(1, 0): A(x[0]); lg.issue(x[1])
lg.drain(A)
A("s_barrier")
stamp()
for mt in range(4):
    x = bread(0, mt); A(x[0]); lg.issue(x[1])

def pk(dst, a, b, neg=False):
    return "v_pk_add_f32 v[%d:%d], v[%d:%d], v[%d:%d]%s" % (dst, dst + 1, a, a + 1, b, b + 1, " neg_lo:[0,1] neg_hi:[0,1]" if neg else "")
def combine_all():
    ops = []
    k = 0
    for j in range(4):
        for mt in range(4):
            for t in range(3):
                v = accr("V", j, mt, t)[1]; a = accr("A", j, mt, t)[1]
                x = 16 + 8 * (k & 1); y = x + 4; k += 1
                for r in range(4): ops.append("v_accvgpr_read_b32 v%d, a%d" % (x + r, a + r))
                ops += [pk(y, v, x), pk(y + 2, v + 2, x + 2), pk(v, v, x, True), pk(v + 2, v + 2, x + 2, True)]
                for r in range(4): ops.append("v_accvgpr_write_b32 a%d, v%d" % (a + r, y + r))
    return ops
def store_ops(mt, a_row, d4, d2, b):
    so4 = vSO4b if mt == 3 else vSO4; so2 = vSO2b if mt == 3 else vSO2
    return [("buffer_store_dwordx4 %s, v%d, s[%d:%d], s%d offen offset:%d" % (rr(d4), so4, sOUT, sOUT + 3, sT0, 384 * b), "ST"),
            ("buffer_store_dwordx2 %s, v%d, s[%d:%d], s%d offen offset:%d" % (rr(d2, 2), so2, sOUT, sOUT + 3, sT0, 384 * b), "ST")]
def z0_all(freeB):
    ops = []
    for mt in range(4):
        for t in range(3):
            z = [freeB + 4 * j for j in range(4)]
            for j in (1, 2, 0, 3):
                a = accr("A", j, mt, t)[1]
                for r in range(4): ops.append(("v_accvgpr_read_b32 v%d, a%d" % (z[j] + r, a + r), None))
            for h in (0, 2): ops.append((pk(12 + h, z[1] + h, z[2] + h), None))
            for h in (0, 2): ops.append((pk(z[1] + h, z[1] + h, z[2] + h, True), None))
            for h in (0, 2): ops.append((pk(z[0] + h, z[0] + h, 12 + h), None))
            for h in (0, 2): ops.append((pk(z[1] + h, z[1] + h, z[3] + h, True), None))
            for bb in range(2):
                dst = 16 + 6 * bb + 2 * t
                ops.append(("v_cvt_pk_bf16_f32 v%d, v%d, v%d" % (dst, z[bb], z[bb] + 1), None))
                ops.append(("v_cvt_pk_bf16_f32 v%d, v%d, v%d" % (dst + 1, z[bb] + 2, z[bb] + 3), None))
        ops.append(("s_mov_b32 s%d, %d" % (sT0, (4 * mt) * 224 * 384), None))
        for bb in range(2):
            ops += store_ops(mt, 0, ("v", 16 + 6 * bb), ("v", 20 + 6 * bb), bb)
    return ops

NG = len(groups)
pendL2 = None
for q in range(NG):
    n, p, kk, ks, pidx = groups[q]
    gi = q % 8
    st, j = ACCMAP[p][pidx]
    first = (p < 2 and kk == 0 and ks == 0)
    if q == 48:
        stamp(1)
        A("s_nop 7")
        for x in combine_all(): A(x)
        A("s_nop 1")
        stamp(1)
    if q == 72:
        stamp(1)
        A("s_nop 7")
        for x in z0_all(vBF + 16 * ((q + 1) & 1)):
            A(x[0])
            if x[1]: vm.issue(x[1])
        stamp(1)
    vg = (n < 11 and gi < 7)
    seq = ["m0", "m1", "m2", "v0", "m3", "v1", "m4", "m5", "m6", "m7", "m8", "m9", "m10", "m11"] if vg else ["m%d" % i for i in range(12)]
    fill = {k: [] for k in seq}
    def ul(qq, t): return [("vm",) + x for x in uload(qq, t)]
    if q >= 1 and q + 3 < NG: fill["m0"] += ul(q + 3, 2)
    R = [("lg",) + bread(q + 1, mt) for mt in range(4)] if q + 1 < NG else []
    L0 = ul(q + 4, 0) if q + 4 < NG else []
    L1 = ul(q + 4, 1) if q + 4 < NG else []
    if vg:
        o0 = vgen_out(n + 1, gi, 0); o1 = vgen_out(n + 1, gi, 1)
        T = [("lg",) + x for x in vgen_tr(n + 1, gi + 1)] if gi < 6 else [("x", "s_nop 0", None), ("x", "s_nop 0", None)]
        if R: fill["m1"].append(R[0]); fill["m2"].append(R[1]); fill["v0"].append(R[2]); fill["m3"].append(R[3])
        if L0: fill["m1"].append(L0[0]); fill["v1"].append(L0[1])
        fill["m2"].append(("needVA", gi & 1))
        if T: fill["m4"].append(T[0]); fill["m5"].append(T[1])
        fill["m5"].append(("x",) + o0[0]); fill["m6"].append(("x",) + o0[1]); fill["m6"].append(("x",) + o1[0])
        fill["m7"].append(("lg",) + o0[2]); fill["m8"].append(("x",) + o1[1])
        if L1: fill["m9"].append(L1[0])
        fill["m10"].append(("lg",) + o1[2])
    else:
        bar = (gi == 7 and n < 11)
        if L0: fill["m1"].append(L0[0]); fill["m3"].append(L0[1])
        if bar:
            fill["m2"].append(("bar",))
            for i2, k in enumerate(("m4", "m5", "m6", "m7")): fill[k].append(R[i2])
            if n < 10:
                tu = ta_update(n + 2)
                for i2, x in enumerate(tu): fill["m%d" % (4 + i2)].append(("x", x, None))
                T = [("lg",) + x for x in vgen_tr(n + 2, 0)]
                fill["m9"].append(T[0]); fill["m10"].append(T[1])
        elif R:
            for i2, k in enumerate(("m2", "m4", "m5", "m6")): fill[k].append(R[i2])
        if L1: fill["m8"].append(L1[0])
    vm.need({"U%d_%d" % (q, t) for t in range(3)}, A)
    lg.need({"B%d_%d" % (q, mt) for mt in range(4)}, A)
    for k in seq:
        if k[0] == "m":
            i = int(k[1:]); t = i // 4; mt = i % 4
            d = accr(st, j, mt, t); u = aUF + 12 * (q % 4) + 4 * t; b = vBF + 16 * (q & 1) + 4 * mt
            A("v_mfma_f32_16x16x32_bf16 %s, a[%d:%d], v[%d:%d], %s" % (rr(d), u, u + 3, b, b + 3, "0" if first else rr(d)))
        else:
            A(vgen_mfma(n + 1, gi, int(k[1])))
        for f in fill[k]:
            if f[0] == "needVA": lg.need("VA%d" % f[1], A); continue
            if f[0] == "bar": lg.drain(A); stamp(1); A("s_barrier"); continue
            A(f[1])
            if f[2]: (lg if f[0] == "lg" else vm).issue(f[2])
stamp()
C("tail: Z1 transform (set V)")
A("s_nop 7")
for mt in range(4):
    for t in range(3):
        z = [accr("V", j, mt, t)[1] for j in range(4)]
        for h in (0, 2): A(pk(12 + h, z[1] + h, z[2] + h))
        for h in (0, 2): A(pk(z[1] + h, z[1] + h, z[2] + h, True))
        for h in (0, 2): A(pk(z[0] + h, z[0] + h, 12 + h))
        for h in (0, 2): A(pk(z[1] + h, z[1] + h, z[3] + h, True))
        for bb in range(2):
            dst = (accr("V", 2 + bb, mt, 0)[1] + 2 * t) if t < 2 else accr("V", 2 + bb, mt, 2)[1]
            A("v_cvt_pk_bf16_f32 v%d, v%d, v%d" % (dst, z[bb], z[bb] + 1))
            A("v_cvt_pk_bf16_f32 v%d, v%d, v%d" % (dst + 1, z[bb] + 2, z[bb] + 3))
    A("s_mov_b32 s%d, %d" % (sT0, (4 * mt + 1) * 224 * 384))
    for bb in range(2):
        for x in store_ops(mt, 1, accr("V", 2 + bb, mt, 0), accr("V", 2 + bb, mt, 2), bb): A(x[0])
if STAMPS:
    A("s_waitcnt vmcnt(0)")
    stamp()
    n = nst[0]
    if os.environ.get("DIAG"):
        i, j, K = [int(x) for x in os.environ["DIAG"].split(",")]
        A("s_sub_u32 s40, s%d, s%d" % (sSTAMP + 2 * j, sSTAMP + 2 * i))
        A("s_mul_i32 s40, s40, %d" % K)
        A("s_add_u32 s40, s40, s%d" % (sSTAMP + 2 * (n - 1)))
        L("L_diag")
        A("s_memrealtime s[42:43]"); A("s_waitcnt lgkmcnt(0)")
        A("s_sub_u32 s41, s42, s40"); A("s_cmp_lt_i32 s41, 0"); A("s_cbranch_scc1 L_diag")
        A("s_endpgm")
    sWS = 24; A("s_mov_b32 s%d, s100" % sWS); A("s_mov_b32 s%d, s101" % (sWS + 1)); A("s_mov_b32 s%d, 0x10000000" % (sWS + 2)); A("s_mov_b32 s%d, 0x00020000" % (sWS + 3))
    A("s_lshl_b32 s%d, s2, 2" % sT0)
    A("s_add_u32 s%d, s%d, s%d" % (sT0, sT0, sW))
    A("s_mul_i32 s%d, s%d, %d" % (sT0, sT0, 8 * n))
    A("s_add_u32 s%d, s%d, 0x1000000" % (sT0, sT0))
    A("v_mov_b32 v16, s%d" % sT0)
    A("v_and_b32 v17, 63, v0")
    A("v_cmp_eq_u32 vcc, 0, v17")
    A("s_and_saveexec_b64 s[40:41], vcc")
    for i in range(n):
        A("v_mov_b32 v18, s%d" % (sSTAMP + 2 * i))
        A("v_mov_b32 v19, s%d" % (sSTAMP + 2 * i + 1))
        A("buffer_store_dwordx2 v[18:19], v16, s[%d:%d], 0 offen offset:%d" % (sWS, sWS + 3, 8 * i))
        A("s_nop 1")
    sys.stderr.write("nstamps=%d\n" % n)
L("L_end")
A("s_endpgm")
errs = hazard_check(E.out[main_start:])
sys.stderr.write("hazard errors: %d\n" % errs)
E.raw(""".section .rodata,"a"
.p2align 6
.amdhsa_kernel %s
  .amdhsa_next_free_vgpr 512
  .amdhsa_next_free_sgpr 102
  .amdhsa_accum_offset 256
  .amdhsa_group_segment_fixed_size 0
  .amdhsa_kernarg_size 56
  .amdhsa_user_sgpr_count 2
  .amdhsa_user_sgpr_kernarg_segment_ptr 1
  .amdhsa_system_sgpr_workgroup_id_x 1
.end_amdhsa_kernel""" % KN)
print(E.text())
```

```python
import sys, os
from common import *
STAMPS = int(sys.argv[1]) if len(sys.argv) > 1 else 0
KN = "standalone__detection_seg_fpn_lateral__vision_kernel"
PP = 416; RP = 16 * PP; VB = 16 * RP; VS = 28672; STG = 3072
LDS = VB + 2 * VS
HUGE = 0x40000000
SZ_CF = 224 * 224 * 384; SZ_PC = 112 * 112 * 384; SZ_WL = 192 * 384; SZ_WO = 9 * 192 * 384; SZ_OUT = SZ_CF
SZ_U = 96 * 12288
E = Em(); A = E.A; L = E.L; C = E.C
E.raw("; @launch grid=(256,1,1) block=(256,1,1) lds=%d" % LDS)
E.raw('.amdgcn_target "amdgcn-amd-amdhsa--gfx950"')
E.raw(".text")
def upos(i, j):
    if i == 1: return (j >> 1, j & 1)
    if i == 2: return (j >> 1, 2 + (j & 1))
    if i == 0: return (2, j)
    return (3, j)
def ugam(p, kk, ks, pidx): return p * 24 + kk * 8 + (pidx >> 1) * 4 + ks * 2 + (pidx & 1)

vBR0, vBR1, vVW, vTA, vTAH, vUO, vSO4, vSO2, vSO4b, vSO2b, vRHO = 1, 2, 3, 4, 5, 6, 7, 8, 9, 10, 11
vX = 12; vVA = 16; vVT = 24; vBF = 32; ACC = 64
vLANE, vP, vG = 32, 33, 34
T0, T1, T2, T3, T4, T5, T6, T7, T8, T9 = 35, 36, 37, 38, 39, 40, 41, 42, 43, 44
vLB = 45; vMW4 = 47; vMW2 = 49; vTRB = 51; vWD = 54; vCFN, vCFL, vCFR = 57, 58, 59; vPC4, vPC2 = 60, 61; vUL, vUSo = 62, 63
vFLG, vFLO = 12, 13
XA, XB, XC, XD, XE, XF = 16, 17, 18, 19, 20, 21
aWL = 0; aPF = 72
aUF = 192; aT = 240
sCF, sPC, sWL, sU, sOUT, sWO, sDBG = 4, 8, 12, 16, 20, 24, 56
sW, sTY, sTX, sRB, sRB2, sDSO, sT0, sT1, sT2, sT3, sCFB, sCFL, sUS, sPCB, sUT, sUSB = 28, 29, 30, 31, 32, 33, 35, 39, 52, 53, 37, 36, 54, 55, 34, 38
sSTAMP = 64
def lacc(t, d): return ACC + (t * 3 + d) * 4
nst = [0]
CH = int(os.environ.get("CHSTAMP", "0"))
def stamp(kind=0):
    if not STAMPS: return
    if kind != 0 and kind != CH: return
    i = nst[0]; nst[0] += 1
    assert sSTAMP + 2 * i + 1 < 100
    A("%s s[%d:%d]" % ("s_memrealtime" if STAMPS >= 2 else "s_memtime", sSTAMP + 2 * i, sSTAMP + 2 * i + 1))
    A("s_waitcnt lgkmcnt(0)"); lg.clear()
lg = Trk("lgkmcnt", 15); vm = Trk("vmcnt", 63)

E.raw(".globl %s\n.p2align 8\n.type %s,@function\n%s:" % (KN, KN, KN))
main_start = len(E.out)
A("s_cmp_ge_u32 s2, 256")
A("s_cbranch_scc1 L_end")
stamp()
A("s_load_dwordx8 s[40:47], s[0:1], 0")
A("s_load_dwordx4 s[48:51], s[0:1], 32")
A("s_load_dwordx2 s[100:101], s[0:1], 48")
A("v_lshrrev_b32 v%d, 6, v0" % T0)
A("v_and_b32 v%d, 63, v0" % vLANE)
A("v_readfirstlane_b32 s%d, v%d" % (sW, T0))
A("v_and_b32 v%d, 15, v0" % vP)
A("v_lshrrev_b32 v%d, 4, v%d" % (vG, vLANE))
A("s_and_b32 s%d, s2, 7" % sT0)
A("s_lshl_b32 s%d, s%d, 5" % (sT0, sT0))
A("s_lshr_b32 s%d, s2, 3" % sT1)
A("s_add_u32 s%d, s%d, s%d" % (sT0, sT0, sT1))
A("s_lshr_b32 s%d, s%d, 4" % (sTY, sT0))
A("s_and_b32 s%d, s%d, 15" % (sTX, sT0))
C("U task ids: kc = wg/12, wt = wg%12, ww = wt/3, t = wt%3 ; g = wave")
A("s_mul_i32 s60, s2, 43691"); A("s_lshr_b32 s60, s60, 19")
A("s_mul_i32 s61, s60, 12"); A("s_sub_u32 s61, s2, s61")
A("s_mul_i32 s62, s61, 21846"); A("s_lshr_b32 s62, s62, 16")
A("s_mul_i32 s63, s62, 3"); A("s_sub_u32 s63, s61, s63")
A("v_lshrrev_b32 v%d, 2, v%d" % (T1, vLANE))
A("v_and_b32 v%d, 3, v%d" % (T2, vLANE))
A("v_lshrrev_b32 v%d, 2, v%d" % (T3, T1)); A("v_and_b32 v%d, 3, v%d" % (T4, T1))
A("v_lshl_add_u32 v%d, v%d, 3, v%d" % (T3, T3, T4))
A("s_lshl_b32 s%d, s63, 2" % sT0)
A("v_add_u32 v%d, s%d, v%d" % (T3, sT0, T3))
A("v_add_u32 v%d, 32, v%d" % (T4, T1))
A("s_cmp_eq_u32 s63, 2"); A("s_cselect_b64 vcc, -1, 0")
A("v_cndmask_b32 v%d, v%d, v%d, vcc" % (T3, T3, T4))
A("s_mul_i32 s%d, s62, 96" % sT0)
A("s_mul_i32 s%d, s%d, %d" % (sT1, sW, 8 * 384))
A("s_add_u32 s%d, s%d, s%d" % (sT0, sT0, sT1))
A("v_lshlrev_b32 v%d, 1, v%d" % (T3, T3))
A("v_mul_u32_u24 v%d, 768, v%d" % (T4, T2))
A("v_add3_u32 v%d, v%d, v%d, s%d" % (vUL, T3, T4, sT0))
A("s_lshl_b32 s%d, s61, 10" % sT0); A("s_lshl_b32 s%d, s%d, 8" % (sT1, sW)); A("s_add_u32 s%d, s%d, s%d" % (sT0, sT0, sT1))
A("v_lshlrev_b32 v%d, 2, v%d" % (T3, vLANE))
A("v_add_u32 v%d, s%d, v%d" % (vUSo, sT0, T3))
A("s_mul_i32 s%d, s60, 12288" % sUT)
A("s_lshr_b32 s%d, s60, 1" % sT0); A("s_lshl_b32 s%d, s%d, 3" % (sT0, sT0)); A("s_and_b32 s%d, s60, 1" % sT1); A("s_lshl_b32 s%d, s%d, 1" % (sT1, sT1))
A("s_add_u32 s%d, s%d, s%d" % (sT0, sT0, sT1)); A("s_mul_i32 s%d, s%d, 12288" % (sUSB, sT0))
A("s_cmp_lt_u32 s2, 72")
A("s_cselect_b32 s%d, s%d, 0x%x" % (sUT, sUT, HUGE))
A("s_cselect_b32 s%d, s%d, 0x%x" % (sUSB, sUSB, HUGE))
C("w_lat staging: stages 0..3 at VB + w*12288 ; stages 4,5 at 12*RP + w*6144")
A("s_mul_i32 s%d, s%d, 12288" % (sRB, sW)); A("s_add_u32 s%d, s%d, %d" % (sRB, sRB, VB))
A("s_mul_i32 s%d, s%d, 6144" % (sRB2, sW)); A("s_add_u32 s%d, s%d, %d" % (sRB2, sRB2, 12 * RP))
A("s_mul_i32 s%d, s%d, 96" % (sT1, sW))
for n in range(3):
    A("v_add_u32 v%d, %d, v%d" % (T0, 64 * n, vLANE))
    A("v_mul_u32_u24 v%d, 10923, v%d" % (T1, T0))
    A("v_lshrrev_b32 v%d, 16, v%d" % (T1, T1))
    A("v_mul_u32_u24 v%d, 6, v%d" % (T2, T1))
    A("v_sub_u32 v%d, v%d, v%d" % (T2, T0, T2))
    A("v_mul_u32_u24 v%d, 384, v%d" % (T3, T1))
    A("v_lshl_add_u32 v%d, v%d, 4, v%d" % (T3, T2, T3))
    A("s_sub_u32 s%d, s%d, %d" % (sT2, sT1, 1024 * n))
    A("v_add_u32 v%d, s%d, v%d" % (vWD + n, sT2, T3))
A("s_waitcnt lgkmcnt(0)")
for (s, p, sz) in ((sWO, 46, SZ_WO), (sWL, 44, SZ_WL), (sCF, 40, SZ_CF), (sPC, 42, SZ_PC), (sU, 100, SZ_U), (sOUT, 48, SZ_OUT), (sDBG, 50, 256)):
    A("s_mov_b32 s%d, s%d" % (s, p)); A("s_mov_b32 s%d, s%d" % (s + 1, p + 1))
    A("s_mov_b32 s%d, %d" % (s + 2, sz)); A("s_mov_b32 s%d, 0x00020000" % (s + 3))
C("U task loads")
UG = lacc(8, 0)
for tap in range(9):
    for e in range(2):
        A("buffer_load_ushort v%d, v%d, s[%d:%d], s%d offen offset:%d" % (UG + 2 * tap + e, vUL, sWO, sWO + 3, sUT, 384 * e)); vm.issue("UG")
    if tap < 8: A("s_add_u32 s%d, s%d, 73728" % (sUT, sUT))
C("w_lat DMAs")
for g in range(6):
    A("s_mov_b32 s%d, %d" % (sDSO, g * 12288))
    if g < 4: A("s_add_u32 s%d, s%d, %d" % (sT0, sRB, g * STG))
    else: A("s_add_u32 s%d, s%d, %d" % (sT0, sRB2, (g - 4) * STG))
    A("s_mov_b32 m0, s%d" % sT0); A("s_nop 0")
    for n in range(3):
        A("buffer_load_dwordx4 v%d, s[%d:%d], s%d offen offset:%d lds" % (vWD + n, sWL, sWL + 3, sDSO, 1024 * n)); vm.issue("WL")
C("c_fine DMA lane offsets (pad lanes & lanes>=52 -> handled by exec mask)")
A("v_cmp_lt_u32 vcc, 25, v%d" % vLANE)
A("v_subrev_u32 v%d, 26, v%d" % (T0, vLANE))
A("s_nop 0")
A("v_cndmask_b32 v%d, v%d, v%d, vcc" % (T0, vLANE, T0))
A("v_lshlrev_b32 v%d, 4, v%d" % (T0, T0))
A("v_add_u32 v%d, 384, v%d" % (T1, T0))
A("v_cndmask_b32 v%d, v%d, v%d, vcc" % (vCFN, T0, T1))
A("v_mov_b32 v%d, 0x%x" % (T2, HUGE))
A("v_cndmask_b32 v%d, v%d, v%d, vcc" % (vCFL, T2, T0))
A("v_cndmask_b32 v%d, v%d, v%d, vcc" % (vCFR, T0, T2))
A("s_cmp_eq_u32 s%d, 0" % sTX)
A("s_cselect_b64 vcc, -1, 0")
A("s_cselect_b32 s%d, 384, 0" % sT3)
A("v_cndmask_b32 v%d, v%d, v%d, vcc" % (vCFL, vCFN, vCFL))
A("s_cmp_eq_u32 s%d, 15" % sTX)
A("s_cselect_b64 vcc, -1, 0")
A("s_nop 0")
A("v_cndmask_b32 v%d, v%d, v%d, vcc" % (vCFR, vCFN, vCFR))
A("s_mul_i32 s%d, s%d, 14" % (sCFB, sTY))
A("s_add_u32 s%d, s%d, s%d" % (sCFB, sCFB, sW))
A("s_mul_i32 s%d, s%d, 224" % (sCFB, sCFB))
A("s_mul_i32 s%d, s%d, 14" % (sT2, sTX))
A("s_add_u32 s%d, s%d, s%d" % (sCFB, sCFB, sT2))
A("s_sub_u32 s%d, s%d, 225" % (sCFB, sCFB))
A("s_mul_i32 s%d, s%d, 384" % (sCFB, sCFB))
A("s_mul_i32 s%d, s%d, %d" % (sCFL, sW, RP))
C("p_coarse lane offsets")
A("s_sub_u32 s%d, s%d, 1" % (sT2, sT2))
A("v_add_u32 v%d, s%d, v%d" % (T0, sT2, vP))
A("v_cmp_gt_u32 vcc, 224, v%d" % T0)
A("v_lshrrev_b32 v%d, 1, v%d" % (T0, T0))
A("v_mul_u32_u24 v%d, 384, v%d" % (T0, T0))
A("s_mul_i32 s%d, s%d, 96" % (sT2, sW))
A("v_add_u32 v%d, s%d, v%d" % (T0, sT2, T0))
A("v_lshl_add_u32 v%d, v%d, 4, v%d" % (T1, vG, T0))
A("v_lshlrev_b32 v%d, 3, v%d" % (T2, vG))
A("v_add3_u32 v%d, v%d, v%d, 64" % (T2, T0, T2))
A("v_mov_b32 v%d, 0x%x" % (T3, HUGE))
A("v_cndmask_b32 v%d, v%d, v%d, vcc" % (vPC4, T3, T1))
A("v_cndmask_b32 v%d, v%d, v%d, vcc" % (vPC2, T3, T2))
A("s_mul_i32 s%d, s%d, 7" % (sPCB, sTY))
A("s_sub_u32 s%d, s%d, 1" % (sPCB, sPCB))
A("s_mul_i32 s%d, s%d, %d" % (sPCB, sPCB, 112 * 384))

def cf_row(i):
    units = []
    for j in range(8):
        u = []
        if i == 0:
            u += [("s_add_u32 s%d, s%d, s%d" % (sT2, sTY, sW), None), ("s_cmp_eq_u32 s%d, 0" % sT2, None),
                  ("s_cselect_b32 s%d, 0x%x, s%d" % (sT2, HUGE, sCFB), None)]
            if j == 0: u.append(("s_add_u32 s%d, s%d, s%d" % (sT2, sT2, sT3), None))
            else: u.append(("s_add_u32 s%d, s%d, %d" % (sT2, sT2, j * 768), None))
        else:
            u.append(("s_add_u32 s%d, s%d, %d" % (sT2, sCFB, i * 4 * 224 * 384 + j * 768), None))
            if j == 0: u.append(("s_add_u32 s%d, s%d, s%d" % (sT2, sT2, sT3), None))
        u.append(("s_add_u32 s%d, s%d, %d" % (sT0, sCFL, i * 4 * RP + j * 2 * PP), None))
        u.append(("s_mov_b32 m0, s%d" % sT0, None))
        u.append(("s_mov_b64 exec, s[98:99]", None))
        u.append(("buffer_load_dwordx4 v%d, s[%d:%d], s%d offen lds" % (vCFL if j == 0 else (vCFR if j == 7 else vCFN), sCF, sCF + 3, sT2), "CF%d" % i))
        u.append(("s_mov_b64 exec, -1", None))
        units.append(u)
    return units
def pc_tile(j): return 0 if j == 0 else 2 * j - 1
def pc_load(j):
    b = lacc(pc_tile(j), 0)
    u = []
    if j == 0: u += [("s_cmp_eq_u32 s%d, 0" % sTY, None), ("s_cselect_b32 s%d, 0x%x, s%d" % (sT2, HUGE, sPCB), None)]
    else: u.append(("s_add_u32 s%d, s%d, %d" % (sT2, sPCB, j * 112 * 384), None))
    u.append(("buffer_load_dwordx4 v[%d:%d], v%d, s[%d:%d], s%d offen" % (b + 6, b + 9, vPC4, sPC, sPC + 3, sT2), "PC%d" % j))
    u.append(("buffer_load_dwordx2 v[%d:%d], v%d, s[%d:%d], s%d offen" % (b + 10, b + 11, vPC2, sPC, sPC + 3, sT2), "PC%d" % j))
    return [u]
def emit_units(units):
    for u in units:
        for x in u:
            A(x[0])
            if x[1]: vm.issue(x[1])
A("s_mov_b32 s98, 0xFCFFFFFF"); A("s_mov_b32 s99, 0x0003FFFF")
emit_units(cf_row(0)); emit_units(pc_load(0) + pc_load(1) + pc_load(2))
stamp(2)
C("address regs")
A("v_mul_u32_u24 v%d, %d, v%d" % (T0, PP, vP))
A("v_lshl_add_u32 v%d, v%d, 4, v%d" % (vLB, vG, T0))
A("v_add_u32 v%d, %d, v%d" % (vLB + 1, 8 * RP, vLB))
A("s_mul_i32 s%d, s%d, 96" % (sT2, sW))
A("v_add_u32 v%d, s%d, v%d" % (vMW4, sT2, vLB))
A("v_add_u32 v%d, %d, v%d" % (vMW4 + 1, 8 * RP, vMW4))
A("v_add_u32 v%d, s%d, v%d" % (T0, sT2, T0))
A("v_lshlrev_b32 v%d, 3, v%d" % (T2, vG))
A("v_add3_u32 v%d, v%d, v%d, 64" % (vMW2, T0, T2))
A("v_add_u32 v%d, %d, v%d" % (vMW2 + 1, 8 * RP, vMW2))
A("v_lshrrev_b32 v%d, 2, v%d" % (T0, vP))
A("v_and_b32 v%d, 3, v%d" % (T1, vP))
A("v_lshrrev_b32 v%d, 1, v%d" % (T2, vG))
A("v_and_b32 v%d, 1, v%d" % (T3, vG))
C("w_lat tr base (relative): 96*(8g + r) + 16cc  [tile0], +8 tile1, tile2: +64+8cc")
A("v_lshl_add_u32 v%d, v%d, 3, v%d" % (T6, vG, T0))
A("v_mul_u32_u24 v%d, 96, v%d" % (T6, T6))
A("v_lshl_add_u32 v%d, v%d, 4, v%d" % (vTRB, T1, T6))
A("v_lshlrev_b32 v%d, 3, v%d" % (T4, T1))
A("v_add3_u32 v%d, v%d, v%d, 64" % (vTRB + 1, T6, T4))
C("V-gen tr base")
A("v_lshl_add_u32 v%d, v%d, 2, v%d" % (T6, T3, T0))
A("v_mul_u32_u24 v%d, %d, v%d" % (T6, PP, T6))
A("v_mul_u32_u24 v%d, %d, v%d" % (T7, RP, T2))
A("v_add3_u32 v%d, v%d, v%d, v%d" % (T6, T6, T7, T4))
A("s_lshl_b32 s%d, s%d, 5" % (sT2, sW))
A("s_add_u32 s%d, s%d, %d" % (sT2, sT2, RP))
A("v_add_u32 v%d, s%d, v%d" % (vTA, sT2, T6))
A("v_add_u32 v%d, %d, v%d" % (vTAH, 8 * RP, vTA))
A("v_sub_u32 v%d, %d, v%d" % (vRHO, RP, T7))
A("v_and_b32 v%d, 7, v%d" % (T6, vP))
A("v_xor_b32 v%d, v%d, v%d" % (T7, vG, T6))
A("v_lshlrev_b32 v%d, 4, v%d" % (T7, T7))
A("v_lshl_add_u32 v%d, v%d, 7, v%d" % (T7, vP, T7))
A("v_add_u32 v%d, %d, v%d" % (vBR0, VB, T7))
A("v_xor_b32 v%d, 64, v%d" % (vBR1, vBR0))
A("s_lshl_b32 s%d, s%d, 1" % (sT2, sW))
A("v_add_u32 v%d, s%d, v%d" % (T7, sT2, T2))
A("v_xor_b32 v%d, v%d, v%d" % (T7, T7, T6))
A("v_lshlrev_b32 v%d, 4, v%d" % (T7, T7))
A("v_lshl_add_u32 v%d, v%d, 7, v%d" % (T7, T6, T7))
A("v_lshl_add_u32 v%d, v%d, 3, v%d" % (T7, T3, T7))
A("v_lshrrev_b32 v%d, 3, v%d" % (T8, vP))
A("v_mul_u32_u24 v%d, 7168, v%d" % (T9, T8))
A("v_add_u32 v%d, v%d, v%d" % (T7, T7, T9))
A("v_add_u32 v%d, %d, v%d" % (vVW, VB, T7))
C("output staging: OW4 = (n>>3)*2RP + tx_*784 + 96w + 16G ; OW2 = ... + 64 + 8G ; RB = w*784 + lane*16 ; GO = tile base + w*768 + lane*16 (lane<48)")
vOW4, vOW2, vRB, vGO = 7, 8, 9, 10
A("v_mul_u32_u24 v%d, %d, v%d" % (T7, 2 * RP, T8))
A("v_mul_u32_u24 v%d, 784, v%d" % (T9, T6))
A("s_mul_i32 s%d, s%d, 96" % (sT2, sW))
A("v_add3_u32 v%d, v%d, v%d, s%d" % (T7, T7, T9, sT2))
A("v_lshl_add_u32 v%d, v%d, 4, v%d" % (vOW4, vG, T7))
A("v_lshl_add_u32 v%d, v%d, 3, v%d" % (vOW2, vG, T7))
A("v_add_u32 v%d, 64, v%d" % (vOW2, vOW2))
A("v_lshlrev_b32 v%d, 4, v%d" % (T7, vLANE))
A("s_mul_i32 s%d, s%d, 784" % (sT2, sW))
A("v_add_u32 v%d, s%d, v%d" % (vRB, sT2, T7))
A("s_mul_i32 s%d, s%d, %d" % (sT1, sTY, 14 * 224 * 384))
A("s_mul_i32 s%d, s%d, %d" % (sT2, sTX, 14 * 384))
A("s_add_u32 s%d, s%d, s%d" % (sT1, sT1, sT2))
A("s_mul_i32 s%d, s%d, 768" % (sT2, sW))
A("s_add_u32 s%d, s%d, s%d" % (sT1, sT1, sT2))
A("v_add_u32 v%d, s%d, v%d" % (vGO, sT1, T7))
A("v_cmp_gt_u32 vcc, 48, v%d" % vLANE)
A("v_mov_b32 v%d, 0x%x" % (T9, HUGE))
A("s_nop 0")
A("v_cndmask_b32 v%d, v%d, v%d, vcc" % (vGO, T9, vGO))
C("s97 = 3072 (second pair offset) or HUGE for wave 3")
A("s_cmp_eq_u32 s%d, 3" % sW); A("s_cselect_b32 s97, 0x%x, 3072" % HUGE) if False else None
A("s_mov_b32 s97, 3072"); A("s_cmp_eq_u32 s%d, 3" % sW); A("s_cselect_b32 s97, 0x%x, s97" % HUGE)
C("U stream voffset; flag store offset (tid==0 && wg<72 -> wg else HUGE); poll offset lane*4 (lane<18)")
A("v_lshlrev_b32 v%d, 4, v%d" % (T0, vLANE))
A("s_mul_i32 s%d, s%d, 3072" % (sT2, sW))
A("v_add_u32 v%d, s%d, v%d" % (vUO, sT2, T0))
A("v_cmp_eq_u32 vcc, 0, v0")
A("s_cmp_lt_u32 s2, 72"); A("s_cselect_b32 s%d, s2, 0x%x" % (sT2, HUGE))
A("v_mov_b32 v%d, s%d" % (T0, sT2))
A("v_cndmask_b32 v%d, v%d, v%d, vcc" % (vFLO, T9, T0))
C("T matrices")
A("v_lshlrev_b32 v%d, 2, v%d" % (T7, T3))
A("v_lshlrev_b32 v%d, 1, v%d" % (T9, T6))
A("v_sub_u32 v%d, v%d, v%d" % (T7, T7, T9))
A("v_cmp_eq_u32 vcc, 7, v%d" % T6)
A("v_add_u32 v%d, 64, v%d" % (T9, T7))
A("s_nop 0")
A("v_cndmask_b32 v%d, v%d, v%d, vcc" % (T7, T7, T9))
P1, M1 = 0x3F80, 0xBF80
tab = {0: ((0, P1, 2, M1), (1, P1, 2, P1)), 1: ((1, M1, 2, P1), (1, P1, 3, M1))}
A("v_cmp_eq_u32 s[60:61], 1, v%d" % T8)
A("v_lshrrev_b32 v%d, 5, v%d" % (XF, vLANE))
A("v_subrev_u32 v%d, 1, v%d" % (XF, XF))
A("v_and_b32 v%d, 0x80008000, v%d" % (XF, XF))
for nt in range(2):
    (a0, va0, b0, vb0), (a1, va1, b1, vb1) = tab[nt]
    for (dst, x0, x1) in ((XA, a0, a1), (XB, va0, va1), (XC, b0, b1), (XD, vb0, vb1)):
        A("v_mov_b32 v%d, 0x%x" % (dst, x0))
        A("v_mov_b32 v%d, 0x%x" % (XE, x1))
        A("v_cndmask_b32 v%d, v%d, v%d, s[60:61]" % (dst, dst, XE))
    for ep in range(4):
        for hh in range(2):
            e = 2 * ep + hh
            off = 8 * (e >> 2) + (e & 3)
            dst = T0 if hh == 0 else T1
            A("v_add_u32 v%d, %d, v%d" % (T9, off, T7))
            A("v_cmp_eq_u32 vcc, v%d, v%d" % (T9, XA))
            A("v_cmp_eq_u32 s[62:63], v%d, v%d" % (T9, XC))
            A("s_nop 0")
            A("v_cndmask_b32 v%d, 0, v%d, vcc" % (dst, XB))
            A("v_cndmask_b32 v%d, v%d, v%d, s[62:63]" % (dst, dst, XD))
        A("v_lshl_or_b32 v%d, v%d, 16, v%d" % (T0, T1, T0))
        A("v_accvgpr_write_b32 a%d, v%d" % (aT + 8 * nt + ep, T0))
        A("v_xor_b32 v%d, v%d, v%d" % (T0, T0, XF))
        A("v_accvgpr_write_b32 a%d, v%d" % (aT + 8 * nt + 4 + ep, T0))
aS = {0: aT, 1: aT + 8}; aR = {0: aT + 4, 1: aT + 12}
stamp(2)
C("U task compute")
vm.need("UG", A)
stamp(2)
for i in range(18): A("v_lshlrev_b32 v%d, 16, v%d" % (UG + i, UG + i))
RRg = UG + 18; TTg = UG + 24; URg = UG + 26; ORg = UG + 58
for e in range(2):
    g = lambda a, b: UG + (3 * a + b) * 2 + e
    R = {}
    for b in range(3):
        R[(0, b)] = g(0, b); R[(3, b)] = g(2, b)
        A("v_add_f32 v%d, v%d, v%d" % (TTg, g(0, b), g(2, b)))
        A("v_mul_f32 v%d, 0.5, v%d" % (TTg, TTg))
        A("v_fma_f32 v%d, 0.5, v%d, v%d" % (RRg + b, g(1, b), TTg)); R[(1, b)] = RRg + b
        A("v_fma_f32 v%d, -0.5, v%d, v%d" % (RRg + 3 + b, g(1, b), TTg)); R[(2, b)] = RRg + 3 + b
    ub = URg + 16 * e
    for i in range(4):
        A("v_mov_b32 v%d, v%d" % (ub + 4 * i + 0, R[(i, 0)]))
        A("v_mov_b32 v%d, v%d" % (ub + 4 * i + 3, R[(i, 2)]))
        A("v_add_f32 v%d, v%d, v%d" % (TTg, R[(i, 0)], R[(i, 2)]))
        A("v_mul_f32 v%d, 0.5, v%d" % (TTg, TTg))
        A("v_fma_f32 v%d, 0.5, v%d, v%d" % (ub + 4 * i + 1, R[(i, 1)], TTg))
        A("v_fma_f32 v%d, -0.5, v%d, v%d" % (ub + 4 * i + 2, R[(i, 1)], TTg))
for i in range(4):
    for j in range(4):
        n_ = "-" if i == 0 else ""
        p, pidx = upos(i, j)
        o = ORg + 4 * i + j
        A("v_cvt_pk_bf16_f32 v%d, %sv%d, %sv%d" % (o, n_, URg + 4 * i + j, n_, URg + 16 + 4 * i + j))
        A("s_add_u32 s%d, s%d, %d" % (sT2, sUSB, ugam(p, 0, 0, pidx) * 12288))
        A("buffer_store_dword v%d, v%d, s[%d:%d], s%d offen sc0 sc1" % (o, vUSo, sU, sU + 3, sT2)); vm.issue("UST")
VAR = os.environ.get("VAR", "C")
emit_units(cf_row(1)); emit_units(pc_load(3) + pc_load(4))
if VAR == "A": emit_units(cf_row(2)); emit_units(pc_load(5) + pc_load(6))
stamp(2)
C("w_lat frags -> a0..a71")
vm.need("WL", A)
A("v_add_u32 v%d, s%d, v%d" % (T0, sRB, vTRB)); A("v_add_u32 v%d, s%d, v%d" % (T1, sRB, vTRB + 1))
A("v_add_u32 v%d, s%d, v%d" % (T2, sRB2, vTRB)); A("v_add_u32 v%d, s%d, v%d" % (T3, sRB2, vTRB + 1))
for kc in range(6):
    for t in range(3):
        for h in range(2):
            a = aWL + (kc * 3 + t) * 4 + 2 * h
            base = (T0 if t < 2 else T1) if kc < 4 else (T2 if t < 2 else T3)
            off = (kc if kc < 4 else kc - 4) * STG + 384 * h + (8 if t == 1 else 0)
            A("ds_read_b64_tr_b16 a[%d:%d], v%d offset:%d" % (a, a + 1, base, off)); lg.issue("WLF")
def unpack_rows(js):
    ops = []
    for j in js:
        b = lacc(pc_tile(j), 0)
        dsts = [b] if j in (0, 8) else [lacc(2 * j, 0), b]
        for dbase in dsts:
            for i in range(6):
                ops.append("v_lshlrev_b32 v%d, 16, v%d" % (dbase + 2 * i, b + 6 + i))
                ops.append("v_and_b32 v%d, 0xffff0000, v%d" % (dbase + 2 * i + 1, b + 6 + i))
    return ops
def mwrite(r):
    b = lacc(r, 0)
    ops = [("x", "v_cvt_pk_bf16_f32 v%d, v%d, v%d" % (b + i, b + 2 * i, b + 2 * i + 1), None) for i in range(6)]
    ops.append(("lg", "ds_write_b128 v%d, v[%d:%d] offset:%d" % (vMW4 + (r >> 3), b, b + 3, (r & 7) * RP), "MW"))
    ops.append(("lg", "ds_write_b64 v%d, v[%d:%d] offset:%d" % (vMW2 + (r >> 3), b + 4, b + 5, (r & 7) * RP), "MW"))
    return ops
def pread(r, kc):
    a = aPF + ((r & 1) * 6 + kc) * 4
    return ("lg", "ds_read_b128 a[%d:%d], v%d offset:%d" % (a, a + 3, vLB + (r >> 3), (r & 7) * RP + 64 * kc), "P%d_%d" % (r, kc))

GORD = [(0, 0), (0, 1), (1, 0), (1, 1), (0, 2), (0, 3), (1, 2), (1, 3)]
groups = []
for n in range(12):
    for (ks, pidx) in GORD: groups.append((n, n // 3, n % 3, ks, pidx))
def uload(q, t):
    n, p, kk, ks, pidx = groups[q]
    a = aUF + 12 * (q % 4) + 4 * t
    r = []
    if t == 0: r.append(("s_mov_b32 s%d, %d" % (sUS, ugam(p, kk, ks, pidx) * 12288), None))
    r.append(("buffer_load_dwordx4 a[%d:%d], v%d, s[%d:%d], s%d offen offset:%d" % (a, a + 3, vUO, sU, sU + 3, sUS, 1024 * t), "U%d_%d" % (q, t)))
    return r

PCJ = {0: [0, 1, 2], 1: [3, 4], 2: [5, 6], 3: [7, 8]}
for k in range(4):
    need = {"CF%d" % k} | {"PC%d" % j for j in PCJ[k]}
    FK = 1 if VAR == "B" else 0
    if k == FK: need |= {"UST"}
    if k == 3: need |= {"POLL"}
    vm.need(need, A)
    stamp(2)
    if k == 3:
        C("check flags (wave 0 only); slow path polls again")
        A("s_cmp_lg_u32 s%d, 0" % sW)
        A("s_cbranch_scc1 L_polled")
        L("L_poll")
        A("v_cmp_ne_u32 vcc, 0x01010101, v%d" % vFLG)
        A("s_nop 1")
        A("s_and_b32 s60, vcc_lo, 0x3FFFF")
        A("s_cbranch_scc0 L_polled")
        A("s_sleep 20")
        A("buffer_load_dword v%d, v%d, s[%d:%d], 0 offen sc0 sc1" % (vFLG, T5, sDBG, sDBG + 3))
        A("s_waitcnt vmcnt(0)")
        A("s_branch L_poll")
        L("L_polled")
    for x in unpack_rows(PCJ[k]): A(x)
    lg.drain(A)
    A("s_barrier")
    stamp(2)
    units = []
    if k == FK:
        units.append([("v_mov_b32 v%d, 1" % T4, None), ("buffer_store_byte v%d, v%d, s[%d:%d], 0 offen sc0 sc1" % (T4, vFLO, sDBG, sDBG + 3), "FLAG")])
    if k == 0 and VAR != "A": units += cf_row(2) + pc_load(5) + pc_load(6)
    if k == 0: units += cf_row(3) + pc_load(7) + pc_load(8)
    if k == 2:
        units.append([("v_lshlrev_b32 v%d, 2, v0" % (T5,), None),
                      ("buffer_load_dword v%d, v%d, s[%d:%d], 0 offen sc0 sc1" % (vFLG, T5, sDBG, sDBG + 3), "POLL")])
    if k == 3:
        w = [("s_lshr_b32 s%d, s2, 3" % sT1, None), ("s_mul_i32 s%d, s%d, 36864" % (sT1, sT1), None)]
        units.append(w)
        for i in range(3):
            for n in range(3):
                u = [("buffer_load_dwordx4 a[%d:%d], v%d, s[%d:%d], s%d offen offset:%d" % (120 + 12 * i + 4 * n, 123 + 12 * i + 4 * n, vUO, sU, sU + 3, sT1, 1024 * n), "WARM")]
                if n == 2 and i < 2: u.append(("s_add_u32 s%d, s%d, 12288" % (sT1, sT1), None))
                units.append(u)

    mw = []
    if k > 0:
        for r in range(4 * k - 4, 4 * k): mw += mwrite(r)
    for kc in range(6):
        x = pread(4 * k, kc); A(x[1]); lg.issue(x[2])
    if k == 0: lg.need("WLF", A)
    for r in range(4 * k, 4 * k + 4):
        for kc in range(6):
            lg.need("P%d_%d" % (r, kc), A, 3)
            for d in range(3):
                a = lacc(r, d); w = aWL + (kc * 3 + d) * 4; p = aPF + ((r & 1) * 6 + kc) * 4
                A("v_mfma_f32_16x16x32_bf16 v[%d:%d], a[%d:%d], a[%d:%d], v[%d:%d]" % (a, a + 3, w, w + 3, p, p + 3, a, a + 3))
                if d == 0 and r < 4 * k + 3:
                    x = pread(r + 1, kc); A(x[1]); lg.issue(x[2])
                if d == 1 and units:
                    for x in units.pop(0):
                        A(x[0])
                        if x[1]: vm.issue(x[1])
                if d == 2:
                    for _ in range(2):
                        if mw:
                            x = mw.pop(0); A(x[1])
                            if x[2]: lg.issue(x[2]); break
    assert not units and not mw, (len(units), len(mw))
lg.drain(A)
A("s_barrier")
stamp()
for q in range(4):
    for t in range(3):
        for x in uload(q, t):
            A(x[0])
            if x[1]: vm.issue(x[1])
for r in range(12, 16):
    for x in mwrite(r): A(x[1])
A("s_waitcnt lgkmcnt(0)")
A("s_barrier")
stamp()

def accr(st, j, mt, t):
    b = ((j * 4 + mt) * 3 + t) * 4
    return ("v", ACC + b) if st == "V" else ("a", b)
def rr(x, n=4): return "%s[%d:%d]" % (x[0], x[1], x[1] + n - 1)
ACCMAP = [[("V", 0), ("V", 1), ("A", 0), ("A", 1)], [("V", 2), ("V", 3), ("A", 2), ("A", 3)],
          [("A", j) for j in range(4)], [("V", j) for j in range(4)]]
TSEL = [(aS[0], aR[0]), (aS[1], aR[1]), (aR[0], aR[1]), (aR[0], aR[1])]
def va_reg(n, k):
    if n >= 7: return ("a", aS[k & 1])
    return ("v", vVA + 4 * (k & 1))
def vgen_tr(n, k):
    kk = n % 3; x = va_reg(n, k)
    base = vTA if k < 4 else vTAH
    r = []
    for h in range(2):
        r.append(("ds_read_b64_tr_b16 %s[%d:%d], v%d offset:%d" % (x[0], x[1] + 2 * h, x[1] + 2 * h + 1, base, (k & 3) * 2 * RP + h * 8 * PP + kk * 128), "VA%d" % (k & 1)))
    return r
def vgen_mfma(n, k, which):
    p = n // 3; x = va_reg(n, k); tt = TSEL[p][which]; d = vVT + 4 * which
    return "v_mfma_f32_16x16x32_bf16 v[%d:%d], %s, a[%d:%d], 0" % (d, d + 3, rr(x), tt, tt + 3)
def vgen_out(n, k, which):
    d = vVT + 4 * which
    return [("v_cvt_pk_bf16_f32 v%d, v%d, v%d" % (d, d, d + 1), None), ("v_cvt_pk_bf16_f32 v%d, v%d, v%d" % (d + 1, d + 2, d + 3), None),
            ("ds_write_b64 v%d, v[%d:%d] offset:%d" % (vVW, d, d + 1, (n & 1) * VS + which * 14336 + k * 1024), "VW")]
def ta_update(n):
    if n == 6: return ["v_sub_u32 v%d, v%d, v%d" % (vTA, vTA, vRHO), "v_sub_u32 v%d, v%d, v%d" % (vTAH, vTAH, vRHO)]
    if n == 9: return ["v_add_u32 v%d, %d, v%d" % (vTA, RP, vTA), "v_add_u32 v%d, %d, v%d" % (vTAH, RP, vTAH)]
    return []
def bread(q, mt):
    n, p, kk, ks, pidx = groups[q]
    b = vBF + 16 * (q & 1) + 4 * mt
    return ("ds_read_b128 v[%d:%d], v%d offset:%d" % (b, b + 3, vBR1 if ks else vBR0, (n & 1) * VS + pidx * 7168 + mt * 2048), "B%d_%d" % (q, mt))

C("V-gen chunk 0 (not overlapped)")
for k in range(7):
    for x in vgen_tr(0, k): A(x[0]); lg.issue(x[1])
    lg.need("VA%d" % (k & 1), A)
    A(vgen_mfma(0, k, 0)); A(vgen_mfma(0, k, 1))
    A("s_nop 7")
    for w2 in range(2):
        for x in vgen_out(0, k, w2):
            A(x[0])
            if x[1]: lg.issue(x[1])
for x in vgen_tr(1, 0): A(x[0]); lg.issue(x[1])
lg.drain(A)
A("s_barrier")
stamp()
for mt in range(4):
    x = bread(0, mt); A(x[0]); lg.issue(x[1])

def pk(dst, a, b, neg=False):
    return "v_pk_add_f32 v[%d:%d], v[%d:%d], v[%d:%d]%s" % (dst, dst + 1, a, a + 1, b, b + 1, " neg_lo:[0,1] neg_hi:[0,1]" if neg else "")
def combine_all():
    ops = []
    k = 0
    for j in range(4):
        for mt in range(4):
            for t in range(3):
                v = accr("V", j, mt, t)[1]; a = accr("A", j, mt, t)[1]
                x = 16 + 8 * (k & 1); y = x + 4; k += 1
                for r in range(4): ops.append("v_accvgpr_read_b32 v%d, a%d" % (x + r, a + r))
                ops += [pk(y, v, x), pk(y + 2, v + 2, x + 2), pk(v, v, x, True), pk(v + 2, v + 2, x + 2, True)]
                for r in range(4): ops.append("v_accvgpr_write_b32 a%d, v%d" % (a + r, y + r))
    return ops
SFL = os.environ.get("SFL", "")
def stage_write(mt, arow, bb, d4, d2, hi4, hi2):
    o = (mt & 1) * 4 * RP + arow * RP + 384 * bb
    return [("ds_write_b128 v%d, v[%d:%d] offset:%d" % (hi4 if mt >= 2 else vOW4, d4, d4 + 3, o), "OW"),
            ("ds_write_b64 v%d, v[%d:%d] offset:%d" % (hi2 if mt >= 2 else vOW2, d2, d2 + 1, o), "OW")]
def z0_all(freeB):
    ops = [("v_add_u32 v28, %d, v%d" % (8 * RP, vOW4), None), ("v_add_u32 v29, %d, v%d" % (8 * RP, vOW2), None)]
    for mt in range(4):
        for t in range(3):
            z = [freeB + 4 * j for j in range(4)]
            for j in (1, 2, 0, 3):
                a = accr("A", j, mt, t)[1]
                for r in range(4): ops.append(("v_accvgpr_read_b32 v%d, a%d" % (z[j] + r, a + r), None))
            for h in (0, 2): ops.append((pk(12 + h, z[1] + h, z[2] + h), None))
            for h in (0, 2): ops.append((pk(z[1] + h, z[1] + h, z[2] + h, True), None))
            for h in (0, 2): ops.append((pk(z[0] + h, z[0] + h, 12 + h), None))
            for h in (0, 2): ops.append((pk(z[1] + h, z[1] + h, z[3] + h, True), None))
            for bb in range(2):
                dst = 16 + 6 * bb + 2 * t
                ops.append(("v_cvt_pk_bf16_f32 v%d, v%d, v%d" % (dst, z[bb], z[bb] + 1), None))
                ops.append(("v_cvt_pk_bf16_f32 v%d, v%d, v%d" % (dst + 1, z[bb] + 2, z[bb] + 3), None))
        for bb in range(2): ops += stage_write(mt, 0, bb, 16 + 6 * bb, 20 + 6 * bb, 28, 29)
    return ops
def out_rounds(arow, rbhi):
    rs = []
    for k in range(14):
        rho = k >> 1; pr = k & 1
        off = (2 * rho + arow) * RP + pr * 4 * 784
        base = vRB
        if off > 60000: off -= 8 * RP; base = rbhi
        d = 4 * k
        rd = ("ds_read_b128 a[%d:%d], v%d offset:%d" % (d, d + 3, base, off), "OR%d" % k)
        if pr == 0: sa = "s_mov_b32 s%d, %d" % (sT0, (2 * rho + arow) * 224 * 384)
        else: sa = "s_add_u32 s%d, s%d, s97" % (sT0, sT0)
        st = ("buffer_store_dwordx4 a[%d:%d], v%d, s[%d:%d], s%d offen %s" % (d, d + 3, vGO, sOUT, sOUT + 3, sT0, SFL), "ST")
        rs.append((rd, sa, st))
    return rs
zr = []

NG = len(groups)
pendL2 = None
for q in range(NG):
    n, p, kk, ks, pidx = groups[q]
    gi = q % 8
    st, j = ACCMAP[p][pidx]
    first = (p < 2 and kk == 0 and ks == 0)
    if q == 48:
        stamp(1)
        A("s_nop 7")
        for x in combine_all(): A(x)
        A("s_nop 1")
        stamp(1)
    if q == 72:
        stamp(1)
        A("s_nop 7")
        for x in z0_all(vBF + 16 * ((q + 1) & 1)):
            A(x[0])
            if x[1]: lg.issue(x[1])
        A("v_add_u32 v12, %d, v%d" % (8 * RP, vRB))
        stamp(1)
    if q == 80: zr = out_rounds(0, 12)
    vg = (n < 11 and gi < 7)
    seq = ["m0", "m1", "m2", "v0", "m3", "v1", "m4", "m5", "m6", "m7", "m8", "m9", "m10", "m11"] if vg else ["m%d" % i for i in range(12)]
    fill = {k: [] for k in seq}
    def ul(qq, t): return [("vm",) + x for x in uload(qq, t)]
    if q >= 1 and q + 3 < NG: fill["m0"] += ul(q + 3, 2)
    R = [("lg",) + bread(q + 1, mt) for mt in range(4)] if q + 1 < NG else []
    L0 = ul(q + 4, 0) if q + 4 < NG else []
    L1 = ul(q + 4, 1) if q + 4 < NG else []
    if vg:
        o0 = vgen_out(n + 1, gi, 0); o1 = vgen_out(n + 1, gi, 1)
        T = [("lg",) + x for x in vgen_tr(n + 1, gi + 1)] if gi < 6 else [("x", "s_nop 0", None), ("x", "s_nop 0", None)]
        if R: fill["m1"].append(R[0]); fill["m2"].append(R[1]); fill["v0"].append(R[2]); fill["m3"].append(R[3])
        if L0: fill["m1"].append(L0[0]); fill["v1"].append(L0[1])
        fill["m2"].append(("needVA", gi & 1))
        if T: fill["m4"].append(T[0]); fill["m5"].append(T[1])
        fill["m5"].append(("x",) + o0[0]); fill["m6"].append(("x",) + o0[1]); fill["m6"].append(("x",) + o1[0])
        fill["m7"].append(("lg",) + o0[2]); fill["m8"].append(("x",) + o1[1])
        if L1: fill["m9"].append(L1[0])
        fill["m10"].append(("lg",) + o1[2])
    else:
        bar = (gi == 7 and n < 11)
        if L0: fill["m1"].append(L0[0]); fill["m3"].append(L0[1])
        if bar:
            fill["m2"].append(("bar",))
            for i2, k in enumerate(("m4", "m5", "m6", "m7")): fill[k].append(R[i2])
            if n < 10:
                tu = ta_update(n + 2)
                for i2, x in enumerate(tu): fill["m%d" % (4 + i2)].append(("x", x, None))
                T = [("lg",) + x for x in vgen_tr(n + 2, 0)]
                fill["m9"].append(T[0]); fill["m10"].append(T[1])
        elif R:
            for i2, k in enumerate(("m2", "m4", "m5", "m6")): fill[k].append(R[i2])
        if L1: fill["m8"].append(L1[0])
    if q >= 80 and q - 80 < 14:
        fill["m8" if vg else "m7"].append(("lg",) + zr[q - 80][0])
    if q >= 81 and q - 81 < 14:
        k2 = q - 81
        fill["m4" if vg else "m9"].append(("x", zr[k2][1], None))
        fill["m11" if vg else "m10"].append(("needOR", k2))
        fill["m11" if vg else "m10"].append(("vm",) + zr[k2][2])
    vm.need({"U%d_%d" % (q, t) for t in range(3)}, A)
    lg.need({"B%d_%d" % (q, mt) for mt in range(4)}, A)
    for k in seq:
        if k[0] == "m":
            i = int(k[1:]); t = i // 4; mt = i % 4
            d = accr(st, j, mt, t); u = aUF + 12 * (q % 4) + 4 * t; b = vBF + 16 * (q & 1) + 4 * mt
            A("v_mfma_f32_16x16x32_bf16 %s, a[%d:%d], v[%d:%d], %s" % (rr(d), u, u + 3, b, b + 3, "0" if first else rr(d)))
        else:
            A(vgen_mfma(n + 1, gi, int(k[1])))
        for f in fill[k]:
            if f[0] == "needVA": lg.need("VA%d" % f[1], A); continue
            if f[0] == "needOR": lg.need("OR%d" % f[1], A); continue
            if f[0] == "bar":
                lg.drain(A)
                if n in (2, 10): stamp(1)
                A("s_barrier"); continue
            A(f[1])
            if f[2]: (lg if f[0] == "lg" else vm).issue(f[2])
stamp()
C("tail: Z1 transform (set V)")
A("v_add_u32 v28, %d, v%d" % (8 * RP, vOW4)); A("v_add_u32 v29, %d, v%d" % (8 * RP, vOW2))
A("s_nop 5")
for mt in range(4):
    for t in range(3):
        z = [accr("V", j, mt, t)[1] for j in range(4)]
        for h in (0, 2): A(pk(16 + h, z[1] + h, z[2] + h))
        for h in (0, 2): A(pk(z[1] + h, z[1] + h, z[2] + h, True))
        for h in (0, 2): A(pk(z[0] + h, z[0] + h, 16 + h))
        for h in (0, 2): A(pk(z[1] + h, z[1] + h, z[3] + h, True))
        for bb in range(2):
            dst = (accr("V", 2 + bb, mt, 0)[1] + 2 * t) if t < 2 else accr("V", 2 + bb, mt, 2)[1]
            A("v_cvt_pk_bf16_f32 v%d, v%d, v%d" % (dst, z[bb], z[bb] + 1))
            A("v_cvt_pk_bf16_f32 v%d, v%d, v%d" % (dst + 1, z[bb] + 2, z[bb] + 3))
    for bb in range(2):
        for x in stage_write(mt, 1, bb, accr("V", 2 + bb, mt, 0)[1], accr("V", 2 + bb, mt, 2)[1], 28, 29): A(x[0]); lg.issue(x[1])
lg.drain(A)
A("s_barrier")
tr_ = out_rounds(1, 12)
for rd, sa, st in tr_: A(rd[0]); lg.issue(rd[1])
for k, (rd, sa, st) in enumerate(tr_):
    A(sa); lg.need(rd[1], A); A(st[0])
if STAMPS:
    A("s_waitcnt vmcnt(0)")
    stamp()
    n = nst[0]
    if os.environ.get("DIAG"):
        i, j, K = [int(x) for x in os.environ["DIAG"].split(",")]
        A("s_sub_u32 s40, s%d, s%d" % (sSTAMP + 2 * j, sSTAMP + 2 * i))
        A("s_mul_i32 s40, s40, %d" % K)
        A("s_add_u32 s40, s40, s%d" % (sSTAMP + 2 * (n - 1)))
        L("L_diag")
        A("s_memrealtime s[42:43]"); A("s_waitcnt lgkmcnt(0)")
        A("s_sub_u32 s41, s42, s40"); A("s_cmp_lt_i32 s41, 0"); A("s_cbranch_scc1 L_diag")
        A("s_endpgm")
    sWS = 24; A("s_mov_b32 s%d, s100" % sWS); A("s_mov_b32 s%d, s101" % (sWS + 1)); A("s_mov_b32 s%d, 0x10000000" % (sWS + 2)); A("s_mov_b32 s%d, 0x00020000" % (sWS + 3))
    A("s_lshl_b32 s%d, s2, 2" % sT0)
    A("s_add_u32 s%d, s%d, s%d" % (sT0, sT0, sW))
    A("s_mul_i32 s%d, s%d, %d" % (sT0, sT0, 8 * n))
    A("s_add_u32 s%d, s%d, 0x1000000" % (sT0, sT0))
    A("v_mov_b32 v16, s%d" % sT0)
    A("v_and_b32 v17, 63, v0")
    A("v_cmp_eq_u32 vcc, 0, v17")
    A("s_and_saveexec_b64 s[40:41], vcc")
    for i in range(n):
        A("v_mov_b32 v18, s%d" % (sSTAMP + 2 * i))
        A("v_mov_b32 v19, s%d" % (sSTAMP + 2 * i + 1))
        A("buffer_store_dwordx2 v[18:19], v16, s[%d:%d], 0 offen offset:%d" % (sWS, sWS + 3, 8 * i))
        A("s_nop 1")
    sys.stderr.write("nstamps=%d\n" % n)
L("L_end")
A("s_endpgm")
errs = hazard_check(E.out[main_start:])
sys.stderr.write("hazard errors: %d\n" % errs)
E.raw(""".section .rodata,"a"
.p2align 6
.amdhsa_kernel %s
  .amdhsa_next_free_vgpr 512
  .amdhsa_next_free_sgpr 102
  .amdhsa_accum_offset 256
  .amdhsa_group_segment_fixed_size 0
  .amdhsa_kernarg_size 56
  .amdhsa_user_sgpr_count 2
  .amdhsa_user_sgpr_kernarg_segment_ptr 1
  .amdhsa_system_sgpr_workgroup_id_x 1
.end_amdhsa_kernel""" % KN)
print(E.text())
```

```python
import sys, os
from common import *
STAMPS = int(sys.argv[1]) if len(sys.argv) > 1 else 0
KN = "standalone__detection_seg_fpn_lateral__vision_kernel"
PP = 416; RP = 16 * PP; VB = 16 * RP; VS = 28672; STG = 3072
LDS = VB + 2 * VS
HUGE = 0x40000000
SZ_CF = 224 * 224 * 384; SZ_PC = 112 * 112 * 384; SZ_WL = 192 * 384; SZ_WO = 9 * 192 * 384; SZ_OUT = SZ_CF
SZ_U = 96 * 12288
E = Em(); A = E.A; L = E.L; C = E.C
E.raw("; @launch grid=(256,1,1) block=(256,1,1) lds=%d" % LDS)
E.raw('.amdgcn_target "amdgcn-amd-amdhsa--gfx950"')
E.raw(".text")
def upos(i, j): return ({1: 0, 2: 1, 0: 2, 3: 3}[i], j)
def ugam(p, kk, ks, pidx): return p * 24 + kk * 8 + (pidx >> 1) * 4 + ks * 2 + (pidx & 1)

vBR0, vBR1, vVW, vTA, vTAH, vUO, vSO4, vSO2, vSO4b, vSO2b, vRHO = 1, 2, 3, 4, 5, 6, 7, 8, 9, 10, 11
vX = 12; vVA = 16; vVT = 24; vBF = 32; ACC = 64
vLANE, vP, vG = 32, 33, 34
T0, T1, T2, T3, T4, T5, T6, T7, T8, T9 = 35, 36, 37, 38, 39, 40, 41, 42, 43, 44
vLB = 45; vMW4 = 47; vMW2 = 49; vTRB = 51; vWD = 54; vCFN, vCFL, vCFR = 57, 58, 59; vPC4, vPC2 = 60, 61; vUL, vUSo = 62, 63
vFLG, vFLO = 12, 13
XA, XB, XC, XD, XE, XF = 16, 17, 18, 19, 20, 21
aWL = 0; aPF = 72
aUF = 192; aT = 240
sCF, sPC, sWL, sU, sOUT, sWO, sDBG = 4, 8, 12, 16, 20, 24, 56
sW, sTY, sTX, sRB, sRB2, sDSO, sT0, sT1, sT2, sT3, sCFB, sCFL, sUS, sPCB, sUT, sUSB = 28, 29, 30, 31, 32, 33, 35, 39, 52, 53, 37, 36, 54, 55, 34, 38
sSTAMP = 64
def lacc(t, d): return ACC + (t * 3 + d) * 4
nst = [0]
CH = int(os.environ.get("CHSTAMP", "0"))
def stamp(kind=0):
    if not STAMPS: return
    if kind != 0 and kind != CH: return
    i = nst[0]; nst[0] += 1
    assert sSTAMP + 2 * i + 1 < 100
    A("%s s[%d:%d]" % ("s_memrealtime" if STAMPS >= 2 else "s_memtime", sSTAMP + 2 * i, sSTAMP + 2 * i + 1))
    A("s_waitcnt lgkmcnt(0)"); lg.clear()
lg = Trk("lgkmcnt", 15); vm = Trk("vmcnt", 63)

E.raw(".globl %s\n.p2align 8\n.type %s,@function\n%s:" % (KN, KN, KN))
main_start = len(E.out)
A("s_cmp_ge_u32 s2, 256")
A("s_cbranch_scc1 L_end")
stamp()
A("s_load_dwordx8 s[40:47], s[0:1], 0")
A("s_load_dwordx4 s[48:51], s[0:1], 32")
A("s_load_dwordx2 s[100:101], s[0:1], 48")
A("v_lshrrev_b32 v%d, 6, v0" % T0)
A("v_and_b32 v%d, 63, v0" % vLANE)
A("v_readfirstlane_b32 s%d, v%d" % (sW, T0))
A("v_and_b32 v%d, 15, v0" % vP)
A("v_lshrrev_b32 v%d, 4, v%d" % (vG, vLANE))
A("s_and_b32 s%d, s2, 7" % sT0)
A("s_lshl_b32 s%d, s%d, 5" % (sT0, sT0))
A("s_lshr_b32 s%d, s2, 3" % sT1)
A("s_add_u32 s%d, s%d, s%d" % (sT0, sT0, sT1))
A("s_lshr_b32 s%d, s%d, 4" % (sTY, sT0))
A("s_and_b32 s%d, s%d, 15" % (sTX, sT0))
C("U task ids: kc = wg/12, wt = wg%12, ww = wt/3, t = wt%3 ; g = wave")
A("s_mul_i32 s60, s2, 43691"); A("s_lshr_b32 s60, s60, 19")
A("s_mul_i32 s61, s60, 12"); A("s_sub_u32 s61, s2, s61")
A("s_mul_i32 s62, s61, 21846"); A("s_lshr_b32 s62, s62, 16")
A("s_mul_i32 s63, s62, 3"); A("s_sub_u32 s63, s61, s63")
A("v_lshrrev_b32 v%d, 2, v%d" % (T1, vLANE))
A("v_and_b32 v%d, 3, v%d" % (T2, vLANE))
A("v_lshrrev_b32 v%d, 2, v%d" % (T3, T1)); A("v_and_b32 v%d, 3, v%d" % (T4, T1))
A("v_lshl_add_u32 v%d, v%d, 3, v%d" % (T3, T3, T4))
A("s_lshl_b32 s%d, s63, 2" % sT0)
A("v_add_u32 v%d, s%d, v%d" % (T3, sT0, T3))
A("v_add_u32 v%d, 32, v%d" % (T4, T1))
A("s_cmp_eq_u32 s63, 2"); A("s_cselect_b64 vcc, -1, 0")
A("v_cndmask_b32 v%d, v%d, v%d, vcc" % (T3, T3, T4))
A("s_mul_i32 s%d, s62, 96" % sT0)
A("s_mul_i32 s%d, s%d, %d" % (sT1, sW, 8 * 384))
A("s_add_u32 s%d, s%d, s%d" % (sT0, sT0, sT1))
A("v_lshlrev_b32 v%d, 1, v%d" % (T3, T3))
A("v_mul_u32_u24 v%d, 768, v%d" % (T4, T2))
A("v_add3_u32 v%d, v%d, v%d, s%d" % (vUL, T3, T4, sT0))
A("s_lshl_b32 s%d, s61, 10" % sT0); A("s_lshl_b32 s%d, s%d, 8" % (sT1, sW)); A("s_add_u32 s%d, s%d, s%d" % (sT0, sT0, sT1))
A("v_lshlrev_b32 v%d, 2, v%d" % (T3, vLANE))
A("v_add_u32 v%d, s%d, v%d" % (vUSo, sT0, T3))
A("s_mul_i32 s%d, s60, 12288" % sUT)
A("s_lshr_b32 s%d, s60, 1" % sT0); A("s_lshl_b32 s%d, s%d, 3" % (sT0, sT0)); A("s_and_b32 s%d, s60, 1" % sT1); A("s_lshl_b32 s%d, s%d, 1" % (sT1, sT1))
A("s_add_u32 s%d, s%d, s%d" % (sT0, sT0, sT1)); A("s_mul_i32 s%d, s%d, 12288" % (sUSB, sT0))
A("s_cmp_lt_u32 s2, 72")
A("s_cselect_b32 s%d, s%d, 0x%x" % (sUT, sUT, HUGE))
A("s_cselect_b32 s%d, s%d, 0x%x" % (sUSB, sUSB, HUGE))
C("w_lat staging: stages 0..3 at VB + w*12288 ; stages 4,5 at 12*RP + w*6144")
A("s_mul_i32 s%d, s%d, 12288" % (sRB, sW)); A("s_add_u32 s%d, s%d, %d" % (sRB, sRB, VB))
A("s_mul_i32 s%d, s%d, 6144" % (sRB2, sW)); A("s_add_u32 s%d, s%d, %d" % (sRB2, sRB2, 12 * RP))
A("s_mul_i32 s%d, s%d, 96" % (sT1, sW))
for n in range(3):
    A("v_add_u32 v%d, %d, v%d" % (T0, 64 * n, vLANE))
    A("v_mul_u32_u24 v%d, 10923, v%d" % (T1, T0))
    A("v_lshrrev_b32 v%d, 16, v%d" % (T1, T1))
    A("v_mul_u32_u24 v%d, 6, v%d" % (T2, T1))
    A("v_sub_u32 v%d, v%d, v%d" % (T2, T0, T2))
    A("v_mul_u32_u24 v%d, 384, v%d" % (T3, T1))
    A("v_lshl_add_u32 v%d, v%d, 4, v%d" % (T3, T2, T3))
    A("s_sub_u32 s%d, s%d, %d" % (sT2, sT1, 1024 * n))
    A("v_add_u32 v%d, s%d, v%d" % (vWD + n, sT2, T3))
A("s_waitcnt lgkmcnt(0)")
for (s, p, sz) in ((sWO, 46, SZ_WO), (sWL, 44, SZ_WL), (sCF, 40, SZ_CF), (sPC, 42, SZ_PC), (sU, 100, SZ_U), (sOUT, 48, SZ_OUT), (sDBG, 50, 256)):
    A("s_mov_b32 s%d, s%d" % (s, p)); A("s_mov_b32 s%d, s%d" % (s + 1, p + 1))
    A("s_mov_b32 s%d, %d" % (s + 2, sz)); A("s_mov_b32 s%d, 0x00020000" % (s + 3))
stamp(3)
C("U task loads")
UG = lacc(8, 0)
for tap in range(9):
    for e in range(2):
        A("buffer_load_ushort v%d, v%d, s[%d:%d], s%d offen offset:%d" % (UG + 2 * tap + e, vUL, sWO, sWO + 3, sUT, 384 * e)); vm.issue("UG")
    if tap < 8: A("s_add_u32 s%d, s%d, 73728" % (sUT, sUT))
stamp(3)
C("w_lat DMAs")
for g in range(6):
    if g in (2, 4): stamp(3)
    A("s_mov_b32 s%d, %d" % (sDSO, g * 12288))
    if g < 4: A("s_add_u32 s%d, s%d, %d" % (sT0, sRB, g * STG))
    else: A("s_add_u32 s%d, s%d, %d" % (sT0, sRB2, (g - 4) * STG))
    A("s_mov_b32 m0, s%d" % sT0); A("s_nop 0")
    for n in range(3):
        A("buffer_load_dwordx4 v%d, s[%d:%d], s%d offen offset:%d lds" % (vWD + n, sWL, sWL + 3, sDSO, 1024 * n)); vm.issue("WL")
stamp(3)
C("c_fine DMA lane offsets (pad lanes & lanes>=52 -> handled by exec mask)")
A("v_cmp_lt_u32 vcc, 25, v%d" % vLANE)
A("v_subrev_u32 v%d, 26, v%d" % (T0, vLANE))
A("s_nop 0")
A("v_cndmask_b32 v%d, v%d, v%d, vcc" % (T0, vLANE, T0))
A("v_lshlrev_b32 v%d, 4, v%d" % (T0, T0))
A("v_add_u32 v%d, 384, v%d" % (T1, T0))
A("v_cndmask_b32 v%d, v%d, v%d, vcc" % (vCFN, T0, T1))
A("v_mov_b32 v%d, 0x%x" % (T2, HUGE))
A("v_cndmask_b32 v%d, v%d, v%d, vcc" % (vCFL, T2, T0))
A("v_cndmask_b32 v%d, v%d, v%d, vcc" % (vCFR, T0, T2))
A("s_cmp_eq_u32 s%d, 0" % sTX)
A("s_cselect_b64 vcc, -1, 0")
A("s_cselect_b32 s%d, 384, 0" % sT3)
A("v_cndmask_b32 v%d, v%d, v%d, vcc" % (vCFL, vCFN, vCFL))
A("s_cmp_eq_u32 s%d, 15" % sTX)
A("s_cselect_b64 vcc, -1, 0")
A("s_nop 0")
A("v_cndmask_b32 v%d, v%d, v%d, vcc" % (vCFR, vCFN, vCFR))
A("s_mul_i32 s%d, s%d, 14" % (sCFB, sTY))
A("s_add_u32 s%d, s%d, s%d" % (sCFB, sCFB, sW))
A("s_mul_i32 s%d, s%d, 224" % (sCFB, sCFB))
A("s_mul_i32 s%d, s%d, 14" % (sT2, sTX))
A("s_add_u32 s%d, s%d, s%d" % (sCFB, sCFB, sT2))
A("s_sub_u32 s%d, s%d, 225" % (sCFB, sCFB))
A("s_mul_i32 s%d, s%d, 384" % (sCFB, sCFB))
A("s_mul_i32 s%d, s%d, %d" % (sCFL, sW, RP))
C("p_coarse lane offsets")
A("s_sub_u32 s%d, s%d, 1" % (sT2, sT2))
A("v_add_u32 v%d, s%d, v%d" % (T0, sT2, vP))
A("v_cmp_gt_u32 vcc, 224, v%d" % T0)
A("v_lshrrev_b32 v%d, 1, v%d" % (T0, T0))
A("v_mul_u32_u24 v%d, 384, v%d" % (T0, T0))
A("s_mul_i32 s%d, s%d, 96" % (sT2, sW))
A("v_add_u32 v%d, s%d, v%d" % (T0, sT2, T0))
A("v_lshl_add_u32 v%d, v%d, 4, v%d" % (T1, vG, T0))
A("v_lshlrev_b32 v%d, 3, v%d" % (T2, vG))
A("v_add3_u32 v%d, v%d, v%d, 64" % (T2, T0, T2))
A("v_mov_b32 v%d, 0x%x" % (T3, HUGE))
A("v_cndmask_b32 v%d, v%d, v%d, vcc" % (vPC4, T3, T1))
A("v_cndmask_b32 v%d, v%d, v%d, vcc" % (vPC2, T3, T2))
A("s_mul_i32 s%d, s%d, 7" % (sPCB, sTY))
A("s_sub_u32 s%d, s%d, 1" % (sPCB, sPCB))
A("s_mul_i32 s%d, s%d, %d" % (sPCB, sPCB, 112 * 384))

def cf_row(i):
    units = []
    for j in range(8):
        u = []
        if i == 0:
            u += [("s_add_u32 s%d, s%d, s%d" % (sT2, sTY, sW), None), ("s_cmp_eq_u32 s%d, 0" % sT2, None),
                  ("s_cselect_b32 s%d, 0x%x, s%d" % (sT2, HUGE, sCFB), None)]
            if j == 0: u.append(("s_add_u32 s%d, s%d, s%d" % (sT2, sT2, sT3), None))
            else: u.append(("s_add_u32 s%d, s%d, %d" % (sT2, sT2, j * 768), None))
        else:
            u.append(("s_add_u32 s%d, s%d, %d" % (sT2, sCFB, i * 4 * 224 * 384 + j * 768), None))
            if j == 0: u.append(("s_add_u32 s%d, s%d, s%d" % (sT2, sT2, sT3), None))
        u.append(("s_add_u32 s%d, s%d, %d" % (sT0, sCFL, i * 4 * RP + j * 2 * PP), None))
        u.append(("s_mov_b32 m0, s%d" % sT0, None))
        u.append(("s_mov_b64 exec, s[98:99]", None))
        u.append(("buffer_load_dwordx4 v%d, s[%d:%d], s%d offen lds" % (vCFL if j == 0 else (vCFR if j == 7 else vCFN), sCF, sCF + 3, sT2), "CF%d" % i))
        u.append(("s_mov_b64 exec, -1", None))
        units.append(u)
    return units
def pc_tile(j): return 0 if j == 0 else 2 * j - 1
def pc_load(j):
    b = lacc(pc_tile(j), 0)
    u = []
    if j == 0: u += [("s_cmp_eq_u32 s%d, 0" % sTY, None), ("s_cselect_b32 s%d, 0x%x, s%d" % (sT2, HUGE, sPCB), None)]
    else: u.append(("s_add_u32 s%d, s%d, %d" % (sT2, sPCB, j * 112 * 384), None))
    u.append(("buffer_load_dwordx4 v[%d:%d], v%d, s[%d:%d], s%d offen" % (b + 6, b + 9, vPC4, sPC, sPC + 3, sT2), "PC%d" % j))
    u.append(("buffer_load_dwordx2 v[%d:%d], v%d, s[%d:%d], s%d offen" % (b + 10, b + 11, vPC2, sPC, sPC + 3, sT2), "PC%d" % j))
    return [u]
def emit_units(units):
    for u in units:
        for x in u:
            A(x[0])
            if x[1]: vm.issue(x[1])
A("s_mov_b32 s98, 0xFCFFFFFF"); A("s_mov_b32 s99, 0x0003FFFF")
stamp(3)
cr = cf_row(0)
emit_units(cr[:4]); stamp(3); emit_units(cr[4:]); stamp(3); emit_units(pc_load(0) + pc_load(1) + pc_load(2)); stamp(3)
stamp(2)
C("address regs")
A("v_mul_u32_u24 v%d, %d, v%d" % (T0, PP, vP))
A("v_lshl_add_u32 v%d, v%d, 4, v%d" % (vLB, vG, T0))
A("v_add_u32 v%d, %d, v%d" % (vLB + 1, 8 * RP, vLB))
A("s_mul_i32 s%d, s%d, 96" % (sT2, sW))
A("v_add_u32 v%d, s%d, v%d" % (vMW4, sT2, vLB))
A("v_add_u32 v%d, %d, v%d" % (vMW4 + 1, 8 * RP, vMW4))
A("v_add_u32 v%d, s%d, v%d" % (T0, sT2, T0))
A("v_lshlrev_b32 v%d, 3, v%d" % (T2, vG))
A("v_add3_u32 v%d, v%d, v%d, 64" % (vMW2, T0, T2))
A("v_add_u32 v%d, %d, v%d" % (vMW2 + 1, 8 * RP, vMW2))
A("v_lshrrev_b32 v%d, 2, v%d" % (T0, vP))
A("v_and_b32 v%d, 3, v%d" % (T1, vP))
A("v_lshrrev_b32 v%d, 1, v%d" % (T2, vG))
A("v_and_b32 v%d, 1, v%d" % (T3, vG))
C("w_lat tr base (relative): 96*(8g + r) + 16cc  [tile0], +8 tile1, tile2: +64+8cc")
A("v_lshl_add_u32 v%d, v%d, 3, v%d" % (T6, vG, T0))
A("v_mul_u32_u24 v%d, 96, v%d" % (T6, T6))
A("v_lshl_add_u32 v%d, v%d, 4, v%d" % (vTRB, T1, T6))
A("v_lshlrev_b32 v%d, 3, v%d" % (T4, T1))
A("v_add3_u32 v%d, v%d, v%d, 64" % (vTRB + 1, T6, T4))
C("V-gen tr base")
A("v_lshl_add_u32 v%d, v%d, 2, v%d" % (T6, T3, T0))
A("v_mul_u32_u24 v%d, %d, v%d" % (T6, PP, T6))
A("v_mul_u32_u24 v%d, %d, v%d" % (T7, RP, T2))
A("v_add3_u32 v%d, v%d, v%d, v%d" % (T6, T6, T7, T4))
A("s_lshl_b32 s%d, s%d, 5" % (sT2, sW))
A("s_add_u32 s%d, s%d, %d" % (sT2, sT2, RP))
A("v_add_u32 v%d, s%d, v%d" % (vTA, sT2, T6))
A("v_add_u32 v%d, %d, v%d" % (vTAH, 8 * RP, vTA))
A("v_sub_u32 v%d, %d, v%d" % (vRHO, RP, T7))
A("v_and_b32 v%d, 7, v%d" % (T6, vP))
A("v_xor_b32 v%d, v%d, v%d" % (T7, vG, T6))
A("v_lshlrev_b32 v%d, 4, v%d" % (T7, T7))
A("v_lshl_add_u32 v%d, v%d, 7, v%d" % (T7, vP, T7))
A("v_add_u32 v%d, %d, v%d" % (vBR0, VB, T7))
A("v_xor_b32 v%d, 64, v%d" % (vBR1, vBR0))
A("v_cmp_gt_u32 vcc, 8, v%d" % vP)
A("v_mov_b32 v%d, 0x30000" % T9)
A("s_nop 0")
A("v_cndmask_b32 v14, v%d, v%d, vcc" % (T9, vBR0))
A("v_cndmask_b32 v15, v%d, v%d, vcc" % (T9, vBR1))
A("s_lshl_b32 s%d, s%d, 1" % (sT2, sW))
A("v_add_u32 v%d, s%d, v%d" % (T7, sT2, T2))
A("v_xor_b32 v%d, v%d, v%d" % (T7, T7, T6))
A("v_lshlrev_b32 v%d, 4, v%d" % (T7, T7))
A("v_lshl_add_u32 v%d, v%d, 7, v%d" % (T7, T6, T7))
A("v_lshl_add_u32 v%d, v%d, 3, v%d" % (T7, T3, T7))
A("v_lshrrev_b32 v%d, 3, v%d" % (T8, vP))
A("v_mul_u32_u24 v%d, 7168, v%d" % (T9, T8))
A("v_add_u32 v%d, v%d, v%d" % (T7, T7, T9))
A("v_add_u32 v%d, %d, v%d" % (vVW, VB, T7))
C("output staging: OW4 = (n>>3)*2RP + tx_*784 + 96w + 16G ; OW2 = ... + 64 + 8G ; RB = w*784 + lane*16 ; GO = tile base + w*768 + lane*16 (lane<48)")
vOW4, vOW2, vRB, vGO = 7, 8, 9, 10
A("v_mul_u32_u24 v%d, %d, v%d" % (T7, 2 * RP, T8))
A("v_mul_u32_u24 v%d, 784, v%d" % (T9, T6))
A("s_mul_i32 s%d, s%d, 96" % (sT2, sW))
A("v_add3_u32 v%d, v%d, v%d, s%d" % (T7, T7, T9, sT2))
A("v_lshl_add_u32 v%d, v%d, 4, v%d" % (vOW4, vG, T7))
A("v_lshl_add_u32 v%d, v%d, 3, v%d" % (vOW2, vG, T7))
A("v_add_u32 v%d, 64, v%d" % (vOW2, vOW2))
A("v_lshlrev_b32 v%d, 4, v%d" % (T7, vLANE))
A("s_mul_i32 s%d, s%d, 784" % (sT2, sW))
A("v_add_u32 v%d, s%d, v%d" % (vRB, sT2, T7))
A("s_mul_i32 s%d, s%d, %d" % (sT1, sTY, 14 * 224 * 384))
A("s_mul_i32 s%d, s%d, %d" % (sT2, sTX, 14 * 384))
A("s_add_u32 s%d, s%d, s%d" % (sT1, sT1, sT2))
A("s_mul_i32 s%d, s%d, 768" % (sT2, sW))
A("s_add_u32 s%d, s%d, s%d" % (sT1, sT1, sT2))
A("v_add_u32 v%d, s%d, v%d" % (vGO, sT1, T7))
A("v_cmp_gt_u32 vcc, 48, v%d" % vLANE)
A("v_mov_b32 v%d, 0x%x" % (T9, HUGE))
A("s_nop 0")
A("v_cndmask_b32 v%d, v%d, v%d, vcc" % (vGO, T9, vGO))
C("s97 = 3072 (second pair offset) or HUGE for wave 3")
A("s_cmp_eq_u32 s%d, 3" % sW); A("s_cselect_b32 s97, 0x%x, 3072" % HUGE) if False else None
A("s_mov_b32 s96, 12288"); A("s_mov_b32 s97, 3072"); A("s_cmp_eq_u32 s%d, 3" % sW); A("s_cselect_b32 s97, 0x%x, s97" % HUGE)
C("U stream voffset; flag store offset (tid==0 && wg<72 -> wg else HUGE); poll offset lane*4 (lane<18)")
A("v_lshlrev_b32 v%d, 4, v%d" % (T0, vLANE))
A("s_mul_i32 s%d, s%d, 3072" % (sT2, sW))
A("v_add_u32 v%d, s%d, v%d" % (vUO, sT2, T0))
A("v_cmp_eq_u32 vcc, 0, v0")
A("s_cmp_lt_u32 s2, 72"); A("s_cselect_b32 s%d, s2, 0x%x" % (sT2, HUGE))
A("v_mov_b32 v%d, s%d" % (T0, sT2))
A("v_cndmask_b32 v%d, v%d, v%d, vcc" % (vFLO, T9, T0))
C("T matrices")
A("v_lshlrev_b32 v%d, 2, v%d" % (T7, T3))
A("v_lshlrev_b32 v%d, 1, v%d" % (T9, T6))
A("v_sub_u32 v%d, v%d, v%d" % (T7, T7, T9))
A("v_cmp_eq_u32 vcc, 7, v%d" % T6)
A("v_add_u32 v%d, 64, v%d" % (T9, T7))
A("s_nop 0")
A("v_cndmask_b32 v%d, v%d, v%d, vcc" % (T7, T7, T9))
P1, M1 = 0x3F80, 0xBF80
tab = {0: ((0, P1, 2, M1), (1, P1, 2, P1)), 1: ((1, M1, 2, P1), (1, P1, 3, M1))}
A("v_cmp_eq_u32 s[60:61], 1, v%d" % T8)
for nt in range(2):
    (a0, va0, b0, vb0), (a1, va1, b1, vb1) = tab[nt]
    for (dst, x0, x1) in ((XA, a0, a1), (XB, va0, va1), (XC, b0, b1), (XD, vb0, vb1)):
        A("v_mov_b32 v%d, 0x%x" % (dst, x0))
        A("v_mov_b32 v%d, 0x%x" % (XE, x1))
        A("v_cndmask_b32 v%d, v%d, v%d, s[60:61]" % (dst, dst, XE))
    for ep in range(4):
        for hh in range(2):
            e = 2 * ep + hh
            off = 8 * (e >> 2) + (e & 3)
            dst = T0 if hh == 0 else T1
            A("v_add_u32 v%d, %d, v%d" % (T9, off, T7))
            A("v_cmp_eq_u32 vcc, v%d, v%d" % (T9, XA))
            A("v_cmp_eq_u32 s[62:63], v%d, v%d" % (T9, XC))
            A("s_nop 0")
            A("v_cndmask_b32 v%d, 0, v%d, vcc" % (dst, XB))
            A("v_cndmask_b32 v%d, v%d, v%d, s[62:63]" % (dst, dst, XD))
        A("v_lshl_or_b32 v%d, v%d, 16, v%d" % (T0, T1, T0))
        A("v_accvgpr_write_b32 a%d, v%d" % (aT + 4 * nt + ep, T0))
aS = {0: aT, 1: aT + 8}; aR = {0: aT + 4, 1: aT + 12}
stamp(2)
C("U task compute")
vm.need("UG", A)
stamp(2)
for i in range(18): A("v_lshlrev_b32 v%d, 16, v%d" % (UG + i, UG + i))
RRg = UG + 18; TTg = UG + 24; URg = UG + 26; ORg = UG + 58
for e in range(2):
    g = lambda a, b: UG + (3 * a + b) * 2 + e
    R = {}
    for b in range(3):
        R[(0, b)] = g(0, b); R[(3, b)] = g(2, b)
        A("v_add_f32 v%d, v%d, v%d" % (TTg, g(0, b), g(2, b)))
        A("v_mul_f32 v%d, 0.5, v%d" % (TTg, TTg))
        A("v_fma_f32 v%d, 0.5, v%d, v%d" % (RRg + b, g(1, b), TTg)); R[(1, b)] = RRg + b
        A("v_fma_f32 v%d, -0.5, v%d, v%d" % (RRg + 3 + b, g(1, b), TTg)); R[(2, b)] = RRg + 3 + b
    ub = URg + 16 * e
    for i in range(4):
        A("v_mov_b32 v%d, v%d" % (ub + 4 * i + 0, R[(i, 0)]))
        A("v_mov_b32 v%d, v%d" % (ub + 4 * i + 3, R[(i, 2)]))
        A("v_add_f32 v%d, v%d, v%d" % (TTg, R[(i, 0)], R[(i, 2)]))
        A("v_mul_f32 v%d, 0.5, v%d" % (TTg, TTg))
        A("v_fma_f32 v%d, 0.5, v%d, v%d" % (ub + 4 * i + 1, R[(i, 1)], TTg))
        A("v_fma_f32 v%d, -0.5, v%d, v%d" % (ub + 4 * i + 2, R[(i, 1)], TTg))
for i in range(4):
    for j in range(4):
        n_ = "-" if i == 0 else ""
        p, pidx = upos(i, j)
        o = ORg + 4 * i + j
        A("v_cvt_pk_bf16_f32 v%d, %sv%d, %sv%d" % (o, n_, URg + 4 * i + j, n_, URg + 16 + 4 * i + j))
        A("s_add_u32 s%d, s%d, %d" % (sT2, sUSB, ugam(p, 0, 0, pidx) * 12288))
        A("buffer_store_dword v%d, v%d, s[%d:%d], s%d offen sc0 sc1" % (o, vUSo, sU, sU + 3, sT2)); vm.issue("UST")
VAR = os.environ.get("VAR", "C")
emit_units(cf_row(1)); emit_units(pc_load(3) + pc_load(4))
if VAR == "A": emit_units(cf_row(2)); emit_units(pc_load(5) + pc_load(6))
stamp(2)
C("w_lat frags -> a0..a71")
vm.need("WL", A)
A("v_add_u32 v%d, s%d, v%d" % (T0, sRB, vTRB)); A("v_add_u32 v%d, s%d, v%d" % (T1, sRB, vTRB + 1))
A("v_add_u32 v%d, s%d, v%d" % (T2, sRB2, vTRB)); A("v_add_u32 v%d, s%d, v%d" % (T3, sRB2, vTRB + 1))
for kc in range(6):
    for t in range(3):
        for h in range(2):
            a = aWL + (kc * 3 + t) * 4 + 2 * h
            base = (T0 if t < 2 else T1) if kc < 4 else (T2 if t < 2 else T3)
            off = (kc if kc < 4 else kc - 4) * STG + 384 * h + (8 if t == 1 else 0)
            A("ds_read_b64_tr_b16 a[%d:%d], v%d offset:%d" % (a, a + 1, base, off)); lg.issue("WLF")
def unpack_rows(js):
    ops = []
    for j in js:
        b = lacc(pc_tile(j), 0)
        dsts = [b] if j in (0, 8) else [lacc(2 * j, 0), b]
        for dbase in dsts:
            for i in range(6):
                ops.append("v_lshlrev_b32 v%d, 16, v%d" % (dbase + 2 * i, b + 6 + i))
                ops.append("v_and_b32 v%d, 0xffff0000, v%d" % (dbase + 2 * i + 1, b + 6 + i))
    return ops
def mwrite(r):
    b = lacc(r, 0)
    ops = [("x", "v_cvt_pk_bf16_f32 v%d, v%d, v%d" % (b + i, b + 2 * i, b + 2 * i + 1), None) for i in range(6)]
    ops.append(("lg", "ds_write_b128 v%d, v[%d:%d] offset:%d" % (vMW4 + (r >> 3), b, b + 3, (r & 7) * RP), "MW"))
    ops.append(("lg", "ds_write_b64 v%d, v[%d:%d] offset:%d" % (vMW2 + (r >> 3), b + 4, b + 5, (r & 7) * RP), "MW"))
    return ops
def pread(r, kc):
    a = aPF + ((r & 1) * 6 + kc) * 4
    return ("lg", "ds_read_b128 a[%d:%d], v%d offset:%d" % (a, a + 3, vLB + (r >> 3), (r & 7) * RP + 64 * kc), "P%d_%d" % (r, kc))

GORD = [(0, 0), (0, 1), (1, 0), (1, 1), (0, 2), (0, 3), (1, 2), (1, 3)]
groups = []
for n in range(12):
    for (ks, pidx) in GORD: groups.append((n, n // 3, n % 3, ks, pidx))
def uload(q, t):
    n, p, kk, ks, pidx = groups[q]
    a = aUF + 12 * (q % 4) + 4 * t
    r = []
    assert ugam(p, kk, ks, pidx) == q
    if t == 0: r.append((("s_mov_b32 s%d, 0" % sUS) if q == 0 else ("s_add_u32 s%d, s%d, s96" % (sUS, sUS)), None))
    r.append(("buffer_load_dwordx4 a[%d:%d], v%d, s[%d:%d], s%d offen offset:%d" % (a, a + 3, vUO, sU, sU + 3, sUS, 1024 * t), "U%d_%d" % (q, t)))
    return r

PCJ = {0: [0, 1, 2], 1: [3, 4], 2: [5, 6], 3: [7, 8]}
for k in range(4):
    need = {"CF%d" % k} | {"PC%d" % j for j in PCJ[k]}
    FK = 1 if VAR == "B" else 0
    if k == FK: need |= {"UST"}
    if k == 3: need |= {"POLL"}
    vm.need(need, A)
    stamp(2)
    if k == 3:
        C("check flags (wave 0 only); slow path polls again")
        A("s_cmp_lg_u32 s%d, 0" % sW)
        A("s_cbranch_scc1 L_polled")
        L("L_poll")
        A("v_cmp_ne_u32 vcc, 0x01010101, v%d" % vFLG)
        A("s_nop 1")
        A("s_and_b32 s60, vcc_lo, 0x3FFFF")
        A("s_cbranch_scc0 L_polled")
        A("s_sleep 20")
        A("buffer_load_dword v%d, v%d, s[%d:%d], 0 offen sc0 sc1" % (vFLG, T5, sDBG, sDBG + 3))
        A("s_waitcnt vmcnt(0)")
        A("s_branch L_poll")
        L("L_polled")
    for x in unpack_rows(PCJ[k]): A(x)
    lg.drain(A)
    A("s_barrier")
    stamp(2)
    units = []
    if k == FK:
        units.append([("v_mov_b32 v%d, 1" % T4, None), ("buffer_store_byte v%d, v%d, s[%d:%d], 0 offen sc0 sc1" % (T4, vFLO, sDBG, sDBG + 3), "FLAG")])
    if k == 0 and VAR != "A": units += cf_row(2) + pc_load(5) + pc_load(6)
    if k == 0: units += cf_row(3) + pc_load(7) + pc_load(8)
    if k == 2:
        units.append([("v_lshlrev_b32 v%d, 2, v0" % (T5,), None),
                      ("buffer_load_dword v%d, v%d, s[%d:%d], 0 offen sc0 sc1" % (vFLG, T5, sDBG, sDBG + 3), "POLL")])
    if k == 3:
        w = [("s_lshr_b32 s%d, s2, 3" % sT1, None), ("s_mul_i32 s%d, s%d, 36864" % (sT1, sT1), None)]
        units.append(w)
        for i in range(3):
            for n in range(3):
                u = [("buffer_load_dwordx4 a[%d:%d], v%d, s[%d:%d], s%d offen offset:%d" % (120 + 12 * i + 4 * n, 123 + 12 * i + 4 * n, vUO, sU, sU + 3, sT1, 1024 * n), "WARM")]
                if n == 2 and i < 2: u.append(("s_add_u32 s%d, s%d, 12288" % (sT1, sT1), None))
                units.append(u)

    mw = []
    if k > 0:
        for r in range(4 * k - 4, 4 * k): mw += mwrite(r)
    if k == 3:
        for i in range(0, 48, 2): units.append([("v_mov_b32 v%d, 0" % (ACC + i), None), ("v_mov_b32 v%d, 0" % (ACC + i + 1), None)])
    for kc in range(6):
        x = pread(4 * k, kc); A(x[1]); lg.issue(x[2])
    if k == 0: lg.need("WLF", A)
    for r in range(4 * k, 4 * k + 4):
        for kc in range(6):
            lg.need("P%d_%d" % (r, kc), A, 3)
            for d in range(3):
                a = lacc(r, d); w = aWL + (kc * 3 + d) * 4; p = aPF + ((r & 1) * 6 + kc) * 4
                A("v_mfma_f32_16x16x32_bf16 v[%d:%d], a[%d:%d], a[%d:%d], v[%d:%d]" % (a, a + 3, w, w + 3, p, p + 3, a, a + 3))
                if d == 0 and r < 4 * k + 3:
                    x = pread(r + 1, kc); A(x[1]); lg.issue(x[2])
                if (d == 1 or (d == 0 and r == 4 * k + 3)) and units:
                    for x in units.pop(0):
                        A(x[0])
                        if x[1]: vm.issue(x[1])
                if d == 2:
                    for _ in range(2):
                        if mw:
                            x = mw.pop(0); A(x[1])
                            if x[2]: lg.issue(x[2]); break
    for u in units:
        for x in u:
            A(x[0])
            if x[1]: vm.issue(x[1])
    assert not mw
lg.drain(A)
A("s_barrier")
stamp()
for q in range(4):
    for t in range(3):
        for x in uload(q, t):
            A(x[0])
            if x[1]: vm.issue(x[1])
for r in range(12, 16):
    for x in mwrite(r): A(x[1])
A("s_waitcnt lgkmcnt(0)")
A("s_barrier")
stamp()


aVA = aT + 8
aSV = 0
aOR = 96
sPAR, sKK, sPASS = 60, 61, 62
def acc(j, mt, t): return ACC + ((j * 4 + mt) * 3 + t) * 4
def pk(dst, a, b, neg=False):
    return "v_pk_add_f32 v[%d:%d], v[%d:%d], v[%d:%d]%s" % (dst, dst + 1, a, a + 1, b, b + 1, " neg_lo:[0,1] neg_hi:[0,1]" if neg else "")
def vgen_tr(k):
    x = aVA + 4 * (k & 1); base = vTA if k < 4 else vTAH
    return [("ds_read_b64_tr_b16 a[%d:%d], v%d offset:%d" % (x + 2 * h, x + 2 * h + 1, base, (k & 3) * 2 * RP + h * 8 * PP), "VA%d" % (k & 1)) for h in range(2)]
def vgen_mfma(k, which):
    x = aVA + 4 * (k & 1); tt = aT + 4 * which; d = vVT + 4 * which
    return "v_mfma_f32_16x16x32_bf16 v[%d:%d], a[%d:%d], a[%d:%d], 0" % (d, d + 3, x, x + 3, tt, tt + 3)
def vgen_out(k, which):
    d = vVT + 4 * which
    return [("v_cvt_pk_bf16_f32 v%d, v%d, v%d" % (d, d, d + 1), None), ("v_cvt_pk_bf16_f32 v%d, v%d, v%d" % (d + 1, d + 2, d + 3), None),
            ("ds_write_b64 v%d, v[%d:%d] offset:%d" % (vVW, d, d + 1, which * 14336 + k * 1024), "VW")]
def bread(gi, mt):
    ks, pidx = GORD[gi]
    b = vBF + 16 * (gi & 1) + 4 * mt
    reg = (15 if ks else 14) if mt == 3 else (vBR1 if ks else vBR0)
    return ("ds_read_b128 v[%d:%d], v%d offset:%d" % (b, b + 3, reg, pidx * 7168 + mt * 2048), "B%d_%d" % (gi, mt))
def uld(gi, t):
    a = aUF + 12 * (gi % 4) + 4 * t
    return ("buffer_load_dwordx4 a[%d:%d], v%d, s[%d:%d], s%d offen offset:%d" % (a, a + 3, vUO, sU, sU + 3, sUS, 1024 * t), "U%d_%d" % (gi % 8, t))

C("zero tiles j=3 ; V-gen chunk 0")
for i in range(48): A("v_mov_b32 v%d, 0" % (acc(3, 0, 0) + i))
for k in range(7):
    for x in vgen_tr(k): A(x[0]); lg.issue(x[1])
    lg.need("VA%d" % (k & 1), A)
    A(vgen_mfma(k, 0)); A(vgen_mfma(k, 1))
    A("s_nop 7")
    for w2 in range(2):
        for x in vgen_out(k, w2):
            A(x[0])
            if x[1]: lg.issue(x[1])
A("v_add_u32 v%d, 128, v%d" % (vTA, vTA)); A("v_add_u32 v%d, 128, v%d" % (vTAH, vTAH))
A("v_add_u32 v%d, %d, v%d" % (vVW, VS, vVW))
for x in vgen_tr(0): A(x[0]); lg.issue(x[1])
A("s_mov_b32 s%d, %d" % (sPAR, VS)); A("s_mov_b32 s%d, 0" % sPASS)
lg.drain(A)
A("s_barrier")
stamp()
for mt in range(4):
    x = bread(0, mt); A(x[0]); lg.issue(x[1])
C("all 12 first loads are waited here once so that the loop's counted waits are conservative")

def body(emit, first, lgt, vmt, name):
    for gi in range(8):
        ks, pidx = GORD[gi]
        vg = gi < 7
        seq = ["m0", "m1", "m2", "v0", "m3", "v1", "m4", "m5", "m6", "m7", "m8", "m9", "m10", "m11"] if vg else ["m%d" % i for i in range(12)]
        fill = {k: [] for k in seq}
        fill["m0"].append(("vm",) + uld(gi + 3, 2))
        R = [("lg",) + bread((gi + 1) % 8, mt) for mt in range(4)]
        S = ("x", "s_add_u32 s%d, s%d, s96" % (sUS, sUS), None)
        L0 = ("vm",) + uld(gi + 4, 0); L1 = ("vm",) + uld(gi + 4, 1)
        if vg:
            o0 = vgen_out(gi, 0); o1 = vgen_out(gi, 1)
            T = [("lg",) + x for x in vgen_tr(gi + 1)] if gi < 6 else [("x", "s_nop 0", None), ("x", "s_nop 0", None)]
            fill["m1"] += [R[0], S]; fill["m2"].append(R[1]); fill["v0"].append(R[2]); fill["m3"].append(R[3])
            fill["v1"].append(L0)
            fill["m4"].append(T[0]); fill["m5"].append(T[1])
            fill["m5"].append(("x",) + o0[0]); fill["m6"].append(("x",) + o0[1]); fill["m6"].append(("x",) + o1[0])
            fill["m7"].append(("lg",) + o0[2]); fill["m8"].append(("x",) + o1[1])
            fill["m9"].append(L1)
            fill["m10"].append(("lg",) + o1[2])
        else:
            va = lambda r, sr: ("x", "v_add_u32 v%d, s%d, v%d" % (r, sr, r), None)
            fill["m1"] += [S, va(vBR0, sPAR)]
            fill["m2"] += [("bar",)]
            fill["m3"].append(L0)
            fill["m4"] += [R[0], va(14, sPAR)]
            fill["m5"] += [R[1], va(vBR1, sPAR)]
            fill["m6"] += [R[2], va(15, sPAR)]
            fill["m7"] += [R[3], ("x", "v_subrev_u32 v%d, s%d, v%d" % (vVW, sPAR, vVW), None)]
            fill["m8"].append(L1)
            fill["m9"] += [("hook",)]
            T = [("lg",) + x for x in vgen_tr(0)]
            fill["m10"] += [T[0], ("x", "s_sub_u32 s%d, 0, s%d" % (sPAR, sPAR), None)]
            fill["m11"] += [T[1]]
        ws_ = []
        vmt.need({"U%d_%d" % (gi, t) for t in range(3)}, ws_.append)
        lgt.need({"B%d_%d" % (gi, mt) for mt in range(4)} | ({"VA%d" % (gi & 1)} if vg else set()), ws_.append)
        if ws_: emit("s_waitcnt " + " ".join(x.split()[1] for x in ws_))
        for k in seq:
            if k[0] == "m":
                i = int(k[1:]); t = i // 4; mt = i % 4
                d = acc(pidx, mt, t); u = aUF + 12 * (gi % 4) + 4 * t; b = vBF + 16 * (gi & 1) + 4 * mt
                z = first and ks == 0 and pidx in (1, 2)
                emit("v_mfma_f32_16x16x32_bf16 v[%d:%d], a[%d:%d], v[%d:%d], %s" % (d, d + 3, u, u + 3, b, b + 3, "0" if z else "v[%d:%d]" % (d, d + 3)))
            else:
                emit(vgen_mfma(gi, int(k[1])))
            for f in fill[k]:
                if f[0] == "bar": lgt.drain(emit); emit("s_barrier"); continue
                if f[0] == "hook":
                    if first:
                        emit("v_add_u32 v%d, 128, v%d" % (vTA, vTA)); emit("v_add_u32 v%d, 128, v%d" % (vTAH, vTAH))
                        emit("s_cmp_eq_u32 s%d, 3" % sPASS); emit("s_cbranch_scc1 L_out0"); emit("@L_out0_ret")
                    else:
                        emit("s_cmp_eq_u32 s%d, 1" % sKK); emit("s_cbranch_scc1 L_special")
                        emit("v_add_u32 v%d, 128, v%d" % (vTA, vTA)); emit("v_add_u32 v%d, 128, v%d" % (vTAH, vTAH))
                        emit("@L_special_ret")
                    continue
                emit(f[1])
                if f[2]: (lgt if f[0] == "lg" else vmt).issue(f[2])

lgt = Trk("lgkmcnt", 15); vmt = Trk("vmcnt", 63)
tmp = []
body(tmp.append, False, lgt, vmt, "x"); body(tmp.append, False, lgt, vmt, "x")
b0 = []; body(b0.append, True, lgt, vmt, "b0")
b1 = []; body(b1.append, False, lgt, vmt, "b1")
b2 = []; body(b2.append, False, lgt, vmt, "b1")
assert b1 == b2
def emit_body(b):
    for x in b:
        if x.startswith("@"): L(x[1:])
        else: A(x)
C("entering loop: the first group's L2 load (group 3 frag 2) is redundant on entry; sUS must point at group 3")
A("s_waitcnt vmcnt(0)")
def pstamp(base):
    if not (STAMPS and CH == 4): return
    A("%s s[40:41]" % ("s_memrealtime" if STAMPS >= 2 else "s_memtime")); A("s_waitcnt lgkmcnt(0)")
    for p in range(4):
        A("s_cmp_eq_u32 s%d, %d" % (sPASS, p))
        A("s_cselect_b32 s%d, s40, s%d" % (sSTAMP + 2 * (base + 2 * p), sSTAMP + 2 * (base + 2 * p)))
        A("s_cselect_b32 s%d, s41, s%d" % (sSTAMP + 2 * (base + 2 * p) + 1, sSTAMP + 2 * (base + 2 * p) + 1))
PB = nst[0]
if STAMPS and CH == 4: nst[0] += 8
L("L_pass")
pstamp(PB)
A("s_mov_b32 s%d, 0" % sKK)
emit_body(b0)
A("s_mov_b32 s%d, 1" % sKK)
L("L_body")
emit_body(b1)
A("s_add_u32 s%d, s%d, 1" % (sKK, sKK))
A("s_cmp_lt_u32 s%d, 3" % sKK)
A("s_cbranch_scc1 L_body")
pstamp(PB + 1)
C("---- pass end")
kept = [acc(0, 0, 0) + i for i in range(48)] + [acc(3, 0, 0) + i for i in range(48)]
def wt_pair(tl):
    o = []
    Z = [[acc(j, mt, t) for j in range(4)] for (mt, t) in tl]
    for i, z in enumerate(Z):
        for h in (0, 2): o.append(pk(16 + 4 * i + h, z[1] + h, z[2] + h))
    for i, z in enumerate(Z):
        for h in (0, 2): o.append(pk(z[3] + h, z[3] + h, z[2] + h))
    for i, z in enumerate(Z):
        for h in (0, 2): o.append(pk(z[0] + h, z[0] + h, 16 + 4 * i + h))
    for i, z in enumerate(Z):
        for h in (0, 2): o.append(pk(z[3] + h, z[3] + h, z[1] + h, True))
    return o
A("s_cmp_ge_u32 s%d, 2" % sPASS); A("s_cbranch_scc1 L_e2")
A("s_nop 2")
for mt in range(4):
    for x in wt_pair([(mt, t) for t in range(3)]): A(x)
A("s_cmp_eq_u32 s%d, 1" % sPASS); A("s_cbranch_scc1 L_e1")
C("E0: save R1")
for i, v in enumerate(kept): A("v_accvgpr_write_b32 a%d, v%d" % (aSV + i, v))
A("s_branch L_next")
L("L_e1")
C("E1: D = 2*R1 - S   (8 regs per step, in-place temps, software pipelined)")
def rd8(i): return ["v_accvgpr_read_b32 v%d, a%d" % (16 + 8 * ((i // 8) & 1) + r, aSV + i + r) for r in range(8)]
for x in rd8(0): A(x)
for i in range(0, 96, 8):
    x = 16 + 8 * ((i // 8) & 1)
    for h in (0, 2, 4, 6):
        A("v_pk_fma_f32 v[%d:%d], v[%d:%d], 2.0, v[%d:%d] op_sel_hi:[1,0,1] neg_lo:[0,0,1] neg_hi:[0,0,1]" % (x + h, x + h + 1, x + h, x + h + 1, kept[i] + h, kept[i] + h + 1))
    if i + 8 < 96:
        for y in rd8(i + 8): A(y)
    for r in range(8): A("v_accvgpr_write_b32 a%d, v%d" % (aSV + i + r, x + r))
A("s_branch L_next")
L("L_e2")
C("E2/E3: fused W transform + pack + stage to LDS; packed data goes into dead tiles j=1 (b=0) / j=2 (b=1)")
A("v_add_u32 v28, %d, v%d" % (8 * RP, vOW4)); A("v_add_u32 v29, %d, v%d" % (8 * RP, vOW2))
A("s_nop 0")
pend = []
for mt in range(4):
    va_ = wt_pair([(mt, t) for t in range(3)]); wr = []
    for bb in range(2):
        ng = "-" if bb else ""; jj = 3 if bb else 0
        dst = acc(1 + bb, mt, 0)
        for t in range(3):
            z = acc(jj, mt, t)
            va_.append("v_cvt_pk_bf16_f32 v%d, %sv%d, %sv%d" % (dst + 2 * t, ng, z, ng, z + 1))
            va_.append("v_cvt_pk_bf16_f32 v%d, %sv%d, %sv%d" % (dst + 2 * t + 1, ng, z + 2, ng, z + 3))
        o = (mt & 1) * 4 * RP + 384 * bb
        wr.append("ds_write_b128 v%d, v[%d:%d] offset:%d" % (28 if mt >= 2 else vOW4, dst, dst + 3, o))
        wr.append("ds_write_b64 v%d, v[%d:%d] offset:%d" % (29 if mt >= 2 else vOW2, dst + 4, dst + 5, o))
    for i, x in enumerate(va_):
        A(x)
        if pend and i % 9 == 4: A(pend.pop(0))
    pend = wr
for x in pend: A(x)
A("s_cmp_eq_u32 s%d, 3" % sPASS); A("s_cbranch_scc1 L_tail")
for i, v in enumerate(kept): A("v_accvgpr_read_b32 v%d, a%d" % (v, aSV + i))
A("v_add_u32 v%d, %d, v%d" % (vOW4, RP, vOW4)); A("v_add_u32 v%d, %d, v%d" % (vOW2, RP, vOW2))
L("L_next")
A("s_add_u32 s%d, s%d, 1" % (sPASS, sPASS))
A("s_branch L_pass")

L("L_special")
C("prepare V-gen addressing / T for the next pass (executed in kk==1 of pass p)")
A("v_add_u32 v%d, -256, v%d" % (vTA, vTA)); A("v_add_u32 v%d, -256, v%d" % (vTAH, vTAH))
A("s_cmp_eq_u32 s%d, 1" % sPASS); A("s_cbranch_scc1 L_sp1")
A("s_cmp_eq_u32 s%d, 2" % sPASS); A("s_cbranch_scc1 L_sp2")
A("s_cmp_eq_u32 s%d, 0" % sPASS); A("s_cbranch_scc0 L_special_ret")
C("flip sign of rho0 half of T")
A("v_cmp_ne_u32 vcc, 0, v%d" % vRHO)
A("v_mov_b32 v16, 0x80008000")
A("s_nop 0")
A("v_cndmask_b32 v16, 0, v16, vcc")
for i in range(8):
    A("v_accvgpr_read_b32 v17, a%d" % (aT + i)); A("v_xor_b32 v17, v17, v16"); A("v_accvgpr_write_b32 a%d, v17" % (aT + i))
A("s_branch L_special_ret")
L("L_sp1")
A("v_sub_u32 v%d, v%d, v%d" % (vTA, vTA, vRHO)); A("v_sub_u32 v%d, v%d, v%d" % (vTAH, vTAH, vRHO))
A("s_branch L_special_ret")
L("L_sp2")
A("v_add_u32 v%d, %d, v%d" % (vTA, RP, vTA)); A("v_add_u32 v%d, %d, v%d" % (vTAH, RP, vTAH))
A("s_branch L_special_ret")

L("L_tail")
stamp()
A("s_waitcnt lgkmcnt(0)")
A("s_barrier")
A("v_add_u32 v%d, %d, v%d" % (vRB, RP, vRB))
A("v_add_u32 v%d, %d, v%d" % (vGO, 224 * 384, vGO))
L("L_out0")
C("read back staged rows and store coalesced (used for both output row parities)")
A("v_add_u32 v16, %d, v%d" % (8 * RP, vRB))
for k in range(14):
    rho = k >> 1; pr = k & 1
    off = 2 * rho * RP + pr * 4 * 784; base = vRB
    if rho >= 4: off -= 8 * RP; base = 16
    A("ds_read_b128 a[%d:%d], v%d offset:%d" % (aOR + 4 * k, aOR + 4 * k + 3, base, off))
for k in range(14):
    rho = k >> 1; pr = k & 1
    if pr == 0: A("s_mov_b32 s%d, %d" % (sT0, 2 * rho * 224 * 384))
    else: A("s_add_u32 s%d, s%d, s97" % (sT0, sT0))
    A("s_waitcnt lgkmcnt(%d)" % (13 - k))
    A("buffer_store_dwordx4 a[%d:%d], v%d, s[%d:%d], s%d offen" % (aOR + 4 * k, aOR + 4 * k + 3, vGO, sOUT, sOUT + 3, sT0))
A("s_cmp_eq_u32 s%d, 3" % sKK)
A("s_cbranch_scc0 L_out0_ret")
if STAMPS:
    A("s_waitcnt vmcnt(0)")
    stamp()
    n = nst[0]
    if os.environ.get("DIAG"):
        i, j, K = [int(x) for x in os.environ["DIAG"].split(",")]
        A("s_sub_u32 s40, s%d, s%d" % (sSTAMP + 2 * j, sSTAMP + 2 * i))
        A("s_mul_i32 s40, s40, %d" % K)
        A("s_add_u32 s40, s40, s%d" % (sSTAMP + 2 * (n - 1)))
        L("L_diag")
        A("s_memrealtime s[42:43]"); A("s_waitcnt lgkmcnt(0)")
        A("s_sub_u32 s41, s42, s40"); A("s_cmp_lt_i32 s41, 0"); A("s_cbranch_scc1 L_diag")
        A("s_endpgm")
    sWS = 24; A("s_mov_b32 s%d, s100" % sWS); A("s_mov_b32 s%d, s101" % (sWS + 1)); A("s_mov_b32 s%d, 0x10000000" % (sWS + 2)); A("s_mov_b32 s%d, 0x00020000" % (sWS + 3))
    A("s_lshl_b32 s%d, s2, 2" % sT0)
    A("s_add_u32 s%d, s%d, s%d" % (sT0, sT0, sW))
    A("s_mul_i32 s%d, s%d, %d" % (sT0, sT0, 8 * n))
    A("s_add_u32 s%d, s%d, 0x1000000" % (sT0, sT0))
    A("v_mov_b32 v16, s%d" % sT0)
    A("v_and_b32 v17, 63, v0")
    A("v_cmp_eq_u32 vcc, 0, v17")
    A("s_and_saveexec_b64 s[40:41], vcc")
    for i in range(n):
        A("v_mov_b32 v18, s%d" % (sSTAMP + 2 * i))
        A("v_mov_b32 v19, s%d" % (sSTAMP + 2 * i + 1))
        A("buffer_store_dwordx2 v[18:19], v16, s[%d:%d], 0 offen offset:%d" % (sWS, sWS + 3, 8 * i))
        A("s_nop 1")
    sys.stderr.write("nstamps=%d\n" % n)
L("L_end")
A("s_endpgm")
errs = hazard_check(E.out[main_start:])
sys.stderr.write("hazard errors: %d\n" % errs)
E.raw(""".section .rodata,"a"
.p2align 6
.amdhsa_kernel %s
  .amdhsa_next_free_vgpr 512
  .amdhsa_next_free_sgpr 102
  .amdhsa_accum_offset 256
  .amdhsa_group_segment_fixed_size 0
  .amdhsa_kernarg_size 56
  .amdhsa_user_sgpr_count 2
  .amdhsa_user_sgpr_kernarg_segment_ptr 1
  .amdhsa_system_sgpr_workgroup_id_x 1
.end_amdhsa_kernel""" % KN)
print(E.text())
```

```python
import sys, os
from common import *
STAMPS = int(sys.argv[1]) if len(sys.argv) > 1 else 0
KN = "standalone__detection_seg_fpn_lateral__vision_kernel"
PP = 416; RP = 16 * PP; VB = 16 * RP; VS = 28672; STG = 3072
LDS = VB + 2 * VS
HUGE = 0x40000000
SZ_CF = 224 * 224 * 384; SZ_PC = 112 * 112 * 384; SZ_WL = 192 * 384; SZ_WO = 9 * 192 * 384; SZ_OUT = SZ_CF
SZ_U = 96 * 12288
E = Em(); A = E.A; L = E.L; C = E.C
E.raw("; @launch grid=(256,1,1) block=(256,1,1) lds=%d" % LDS)
E.raw('.amdgcn_target "amdgcn-amd-amdhsa--gfx950"')
E.raw(".text")
def upos(i, j): return ({1: 0, 2: 1, 0: 2, 3: 3}[i], j)
def ugam(p, kk, ks, pidx): return p * 24 + kk * 8 + (pidx >> 1) * 4 + ks * 2 + (pidx & 1)

vBR0, vBR1, vVW, vTA, vTAH, vUO, vSO4, vSO2, vSO4b, vSO2b, vRHO = 1, 2, 3, 4, 5, 6, 7, 8, 9, 10, 11
vX = 12; vVA = 16; vVT = 24; vBF = 32; ACC = 64
vLANE, vP, vG = 32, 33, 34
T0, T1, T2, T3, T4, T5, T6, T7, T8, T9 = 35, 36, 37, 38, 39, 40, 41, 42, 43, 44
vLB = 45; vMW4 = 47; vMW2 = 49; vTRB = 51; vWD = 54; vCFN, vCFL, vCFR = 57, 58, 59; vPC4, vPC2 = 60, 61; vUL, vUSo = 62, 63
vFLG, vFLO = 12, 13
XA, XB, XC, XD, XE, XF = 16, 17, 18, 19, 20, 21
aWL = 0; aPF = 72
aUF = 192; aT = 240
sCF, sPC, sWL, sU, sOUT, sWO, sDBG = 4, 8, 12, 16, 20, 24, 56
sW, sTY, sTX, sRB, sRB2, sDSO, sT0, sT1, sT2, sT3, sCFB, sCFL, sUS, sPCB, sUT, sUSB = 28, 29, 30, 31, 32, 33, 35, 39, 52, 53, 37, 36, 54, 55, 34, 38
sSTAMP = 64
def lacc(t, d): return ACC + (t * 3 + d) * 4
nst = [0]
CH = int(os.environ.get("CHSTAMP", "0"))
def stamp(kind=0):
    if not STAMPS: return
    if kind != 0 and kind != CH: return
    i = nst[0]; nst[0] += 1
    assert sSTAMP + 2 * i + 1 < 100
    A("%s s[%d:%d]" % ("s_memrealtime" if STAMPS >= 2 else "s_memtime", sSTAMP + 2 * i, sSTAMP + 2 * i + 1))
    A("s_waitcnt lgkmcnt(0)"); lg.clear()
lg = Trk("lgkmcnt", 15); vm = Trk("vmcnt", 63)

E.raw(".globl %s\n.p2align 8\n.type %s,@function\n%s:" % (KN, KN, KN))
main_start = len(E.out)
A("s_cmp_ge_u32 s2, 256")
A("s_cbranch_scc1 L_end")
stamp()
A("s_load_dwordx8 s[40:47], s[0:1], 0")
A("s_load_dwordx4 s[48:51], s[0:1], 32")
A("s_load_dwordx2 s[100:101], s[0:1], 48")
A("v_lshrrev_b32 v%d, 6, v0" % T0)
A("v_and_b32 v%d, 63, v0" % vLANE)
A("v_readfirstlane_b32 s%d, v%d" % (sW, T0))
A("v_and_b32 v%d, 15, v0" % vP)
A("v_lshrrev_b32 v%d, 4, v%d" % (vG, vLANE))
A("s_and_b32 s%d, s2, 7" % sT0)
A("s_lshl_b32 s%d, s%d, 5" % (sT0, sT0))
A("s_lshr_b32 s%d, s2, 3" % sT1)
A("s_add_u32 s%d, s%d, s%d" % (sT0, sT0, sT1))
A("s_lshr_b32 s%d, s%d, 4" % (sTY, sT0))
A("s_and_b32 s%d, s%d, 15" % (sTX, sT0))
C("U task ids: kc = wg/12, wt = wg%12, ww = wt/3, t = wt%3 ; g = wave")
A("s_mul_i32 s60, s2, 43691"); A("s_lshr_b32 s60, s60, 19")
A("s_mul_i32 s61, s60, 12"); A("s_sub_u32 s61, s2, s61")
A("s_mul_i32 s62, s61, 21846"); A("s_lshr_b32 s62, s62, 16")
A("s_mul_i32 s63, s62, 3"); A("s_sub_u32 s63, s61, s63")
A("v_lshrrev_b32 v%d, 2, v%d" % (T1, vLANE))
A("v_and_b32 v%d, 3, v%d" % (T2, vLANE))
A("v_lshrrev_b32 v%d, 2, v%d" % (T3, T1)); A("v_and_b32 v%d, 3, v%d" % (T4, T1))
A("v_lshl_add_u32 v%d, v%d, 3, v%d" % (T3, T3, T4))
A("s_lshl_b32 s%d, s63, 2" % sT0)
A("v_add_u32 v%d, s%d, v%d" % (T3, sT0, T3))
A("v_add_u32 v%d, 32, v%d" % (T4, T1))
A("s_cmp_eq_u32 s63, 2"); A("s_cselect_b64 vcc, -1, 0")
A("v_cndmask_b32 v%d, v%d, v%d, vcc" % (T3, T3, T4))
A("s_mul_i32 s%d, s62, 96" % sT0)
A("s_mul_i32 s%d, s%d, %d" % (sT1, sW, 8 * 384))
A("s_add_u32 s%d, s%d, s%d" % (sT0, sT0, sT1))
A("v_lshlrev_b32 v%d, 1, v%d" % (T3, T3))
A("v_mul_u32_u24 v%d, 768, v%d" % (T4, T2))
A("v_add3_u32 v%d, v%d, v%d, s%d" % (vUL, T3, T4, sT0))
A("s_lshl_b32 s%d, s61, 10" % sT0); A("s_lshl_b32 s%d, s%d, 8" % (sT1, sW)); A("s_add_u32 s%d, s%d, s%d" % (sT0, sT0, sT1))
A("v_lshlrev_b32 v%d, 2, v%d" % (T3, vLANE))
A("v_add_u32 v%d, s%d, v%d" % (vUSo, sT0, T3))
A("s_mul_i32 s%d, s60, 12288" % sUT)
A("s_lshr_b32 s%d, s60, 1" % sT0); A("s_lshl_b32 s%d, s%d, 3" % (sT0, sT0)); A("s_and_b32 s%d, s60, 1" % sT1); A("s_lshl_b32 s%d, s%d, 1" % (sT1, sT1))
A("s_add_u32 s%d, s%d, s%d" % (sT0, sT0, sT1)); A("s_mul_i32 s%d, s%d, 12288" % (sUSB, sT0))
A("s_cmp_lt_u32 s2, 72")
A("s_cselect_b32 s%d, s%d, 0x%x" % (sUT, sUT, HUGE))
A("s_cselect_b32 s%d, s%d, 0x%x" % (sUSB, sUSB, HUGE))
C("w_lat staging: stages 0..3 at VB + w*12288 ; stages 4,5 at 12*RP + w*6144")
A("s_mul_i32 s%d, s%d, 12288" % (sRB, sW)); A("s_add_u32 s%d, s%d, %d" % (sRB, sRB, VB))
A("s_mul_i32 s%d, s%d, 6144" % (sRB2, sW)); A("s_add_u32 s%d, s%d, %d" % (sRB2, sRB2, 12 * RP))
A("s_mul_i32 s%d, s%d, 96" % (sT1, sW))
for n in range(3):
    A("v_add_u32 v%d, %d, v%d" % (T0, 64 * n, vLANE))
    A("v_mul_u32_u24 v%d, 10923, v%d" % (T1, T0))
    A("v_lshrrev_b32 v%d, 16, v%d" % (T1, T1))
    A("v_mul_u32_u24 v%d, 6, v%d" % (T2, T1))
    A("v_sub_u32 v%d, v%d, v%d" % (T2, T0, T2))
    A("v_mul_u32_u24 v%d, 384, v%d" % (T3, T1))
    A("v_lshl_add_u32 v%d, v%d, 4, v%d" % (T3, T2, T3))
    A("s_sub_u32 s%d, s%d, %d" % (sT2, sT1, 1024 * n))
    A("v_add_u32 v%d, s%d, v%d" % (vWD + n, sT2, T3))
A("s_waitcnt lgkmcnt(0)")
for (s, p, sz) in ((sWO, 46, SZ_WO), (sWL, 44, SZ_WL), (sCF, 40, SZ_CF), (sPC, 42, SZ_PC), (sU, 100, SZ_U), (sOUT, 48, SZ_OUT), (sDBG, 50, 256)):
    A("s_mov_b32 s%d, s%d" % (s, p)); A("s_mov_b32 s%d, s%d" % (s + 1, p + 1))
    A("s_mov_b32 s%d, %d" % (s + 2, sz)); A("s_mov_b32 s%d, 0x00020000" % (s + 3))
UG = lacc(8, 0)
units1 = []
for tap in range(9):
    for e in range(2):
        u = [("buffer_load_ushort v%d, v%d, s[%d:%d], s%d offen offset:%d" % (UG + 2 * tap + e, vUL, sWO, sWO + 3, sUT, 384 * e), "UG")]
        if e == 1 and tap < 8: u.append(("s_add_u32 s%d, s%d, 73728" % (sUT, sUT), None))
        units1.append(u)
for g in range(6):
    for n in range(3):
        u = []
        if n == 0:
            u.append(("s_mov_b32 s%d, %d" % (sDSO, g * 12288), None))
            u.append((("s_add_u32 s%d, s%d, %d" % (sT0, sRB, g * STG)) if g < 4 else ("s_add_u32 s%d, s%d, %d" % (sT0, sRB2, (g - 4) * STG)), None))
            u.append(("s_mov_b32 m0, s%d" % sT0, None)); u.append(("s_nop 0", None))
        u.append(("buffer_load_dwordx4 v%d, s[%d:%d], s%d offen offset:%d lds" % (vWD + n, sWL, sWL + 3, sDSO, 1024 * n), "WL"))
        units1.append(u)
_save = E.out; E.out = []
_t = (sT0, sT1, sT2); sT0, sT1, sT2 = 40, 41, 42
C("c_fine DMA lane offsets (pad lanes & lanes>=52 -> handled by exec mask)")
A("v_cmp_lt_u32 vcc, 25, v%d" % vLANE)
A("v_subrev_u32 v%d, 26, v%d" % (T0, vLANE))
A("s_nop 0")
A("v_cndmask_b32 v%d, v%d, v%d, vcc" % (T0, vLANE, T0))
A("v_lshlrev_b32 v%d, 4, v%d" % (T0, T0))
A("v_add_u32 v%d, 384, v%d" % (T1, T0))
A("v_cndmask_b32 v%d, v%d, v%d, vcc" % (vCFN, T0, T1))
A("v_mov_b32 v%d, 0x%x" % (T2, HUGE))
A("v_cndmask_b32 v%d, v%d, v%d, vcc" % (vCFL, T2, T0))
A("v_cndmask_b32 v%d, v%d, v%d, vcc" % (vCFR, T0, T2))
A("s_cmp_eq_u32 s%d, 0" % sTX)
A("s_cselect_b64 vcc, -1, 0")
A("s_cselect_b32 s%d, 384, 0" % sT3)
A("v_cndmask_b32 v%d, v%d, v%d, vcc" % (vCFL, vCFN, vCFL))
A("s_cmp_eq_u32 s%d, 15" % sTX)
A("s_cselect_b64 vcc, -1, 0")
A("s_nop 0")
A("v_cndmask_b32 v%d, v%d, v%d, vcc" % (vCFR, vCFN, vCFR))
A("s_mul_i32 s%d, s%d, 14" % (sCFB, sTY))
A("s_add_u32 s%d, s%d, s%d" % (sCFB, sCFB, sW))
A("s_mul_i32 s%d, s%d, 224" % (sCFB, sCFB))
A("s_mul_i32 s%d, s%d, 14" % (sT2, sTX))
A("s_add_u32 s%d, s%d, s%d" % (sCFB, sCFB, sT2))
A("s_sub_u32 s%d, s%d, 225" % (sCFB, sCFB))
A("s_mul_i32 s%d, s%d, 384" % (sCFB, sCFB))
A("s_mul_i32 s%d, s%d, %d" % (sCFL, sW, RP))
C("p_coarse lane offsets")
A("s_sub_u32 s%d, s%d, 1" % (sT2, sT2))
A("v_add_u32 v%d, s%d, v%d" % (T0, sT2, vP))
A("v_cmp_gt_u32 vcc, 224, v%d" % T0)
A("v_lshrrev_b32 v%d, 1, v%d" % (T0, T0))
A("v_mul_u32_u24 v%d, 384, v%d" % (T0, T0))
A("s_mul_i32 s%d, s%d, 96" % (sT2, sW))
A("v_add_u32 v%d, s%d, v%d" % (T0, sT2, T0))
A("v_lshl_add_u32 v%d, v%d, 4, v%d" % (T1, vG, T0))
A("v_lshlrev_b32 v%d, 3, v%d" % (T2, vG))
A("v_add3_u32 v%d, v%d, v%d, 64" % (T2, T0, T2))
A("v_mov_b32 v%d, 0x%x" % (T3, HUGE))
A("v_cndmask_b32 v%d, v%d, v%d, vcc" % (vPC4, T3, T1))
A("v_cndmask_b32 v%d, v%d, v%d, vcc" % (vPC2, T3, T2))
A("s_mul_i32 s%d, s%d, 7" % (sPCB, sTY))
A("s_sub_u32 s%d, s%d, 1" % (sPCB, sPCB))
A("s_mul_i32 s%d, s%d, %d" % (sPCB, sPCB, 112 * 384))

A("s_mov_b32 s46, 0xFCFFFFFF"); A("s_mov_b32 s47, 0x0003FFFF")
calc1 = E.out; E.out = _save; sT0, sT1, sT2 = _t
def cf_row(i):
    units = []
    for j in range(8):
        u = []
        if i == 0:
            u += [("s_add_u32 s%d, s%d, s%d" % (sT2, sTY, sW), None), ("s_cmp_eq_u32 s%d, 0" % sT2, None),
                  ("s_cselect_b32 s%d, 0x%x, s%d" % (sT2, HUGE, sCFB), None)]
            if j == 0: u.append(("s_add_u32 s%d, s%d, s%d" % (sT2, sT2, sT3), None))
            else: u.append(("s_add_u32 s%d, s%d, %d" % (sT2, sT2, j * 768), None))
        else:
            u.append(("s_add_u32 s%d, s%d, %d" % (sT2, sCFB, i * 4 * 224 * 384 + j * 768), None))
            if j == 0: u.append(("s_add_u32 s%d, s%d, s%d" % (sT2, sT2, sT3), None))
        u.append(("s_add_u32 s%d, s%d, %d" % (sT0, sCFL, i * 4 * RP + j * 2 * PP), None))
        u.append(("s_mov_b32 m0, s%d" % sT0, None))
        u.append(("s_mov_b64 exec, s[46:47]", None))
        u.append(("buffer_load_dwordx4 v%d, s[%d:%d], s%d offen lds" % (vCFL if j == 0 else (vCFR if j == 7 else vCFN), sCF, sCF + 3, sT2), "CF%d" % i))
        u.append(("s_mov_b64 exec, -1", None))
        units.append(u)
    return units
def pc_tile(j): return 0 if j == 0 else 2 * j - 1
def pc_load(j):
    b = lacc(pc_tile(j), 0)
    u = []
    if j == 0: u += [("s_cmp_eq_u32 s%d, 0" % sTY, None), ("s_cselect_b32 s%d, 0x%x, s%d" % (sT2, HUGE, sPCB), None)]
    else: u.append(("s_add_u32 s%d, s%d, %d" % (sT2, sPCB, j * 112 * 384), None))
    u.append(("buffer_load_dwordx4 v[%d:%d], v%d, s[%d:%d], s%d offen" % (b + 6, b + 9, vPC4, sPC, sPC + 3, sT2), "PC%d" % j))
    u.append(("buffer_load_dwordx2 v[%d:%d], v%d, s[%d:%d], s%d offen" % (b + 10, b + 11, vPC2, sPC, sPC + 3, sT2), "PC%d" % j))
    return [u]
def emit_units(units):
    for u in units:
        for x in u:
            A(x[0])
            if x[1]: vm.issue(x[1])
units2 = cf_row(0) + pc_load(0) + pc_load(1) + pc_load(2)
_save = E.out; E.out = []
sT0, sT1, sT2 = 40, 41, 42
C("address regs")
A("v_mul_u32_u24 v%d, %d, v%d" % (T0, PP, vP))
A("v_lshl_add_u32 v%d, v%d, 4, v%d" % (vLB, vG, T0))
A("v_add_u32 v%d, %d, v%d" % (vLB + 1, 8 * RP, vLB))
A("s_mul_i32 s%d, s%d, 96" % (sT2, sW))
A("v_add_u32 v%d, s%d, v%d" % (vMW4, sT2, vLB))
A("v_add_u32 v%d, %d, v%d" % (vMW4 + 1, 8 * RP, vMW4))
A("v_add_u32 v%d, s%d, v%d" % (T0, sT2, T0))
A("v_lshlrev_b32 v%d, 3, v%d" % (T2, vG))
A("v_add3_u32 v%d, v%d, v%d, 64" % (vMW2, T0, T2))
A("v_add_u32 v%d, %d, v%d" % (vMW2 + 1, 8 * RP, vMW2))
A("v_lshrrev_b32 v%d, 2, v%d" % (T0, vP))
A("v_and_b32 v%d, 3, v%d" % (T1, vP))
A("v_lshrrev_b32 v%d, 1, v%d" % (T2, vG))
A("v_and_b32 v%d, 1, v%d" % (T3, vG))
C("w_lat tr base (relative): 96*(8g + r) + 16cc  [tile0], +8 tile1, tile2: +64+8cc")
A("v_lshl_add_u32 v%d, v%d, 3, v%d" % (T6, vG, T0))
A("v_mul_u32_u24 v%d, 96, v%d" % (T6, T6))
A("v_lshl_add_u32 v%d, v%d, 4, v%d" % (vTRB, T1, T6))
A("v_lshlrev_b32 v%d, 3, v%d" % (T4, T1))
A("v_add3_u32 v%d, v%d, v%d, 64" % (vTRB + 1, T6, T4))
C("V-gen tr base")
A("v_lshl_add_u32 v%d, v%d, 2, v%d" % (T6, T3, T0))
A("v_mul_u32_u24 v%d, %d, v%d" % (T6, PP, T6))
A("v_mul_u32_u24 v%d, %d, v%d" % (T7, RP, T2))
A("v_add3_u32 v%d, v%d, v%d, v%d" % (T6, T6, T7, T4))
A("s_lshl_b32 s%d, s%d, 5" % (sT2, sW))
A("s_add_u32 s%d, s%d, %d" % (sT2, sT2, RP))
A("v_add_u32 v%d, s%d, v%d" % (vTA, sT2, T6))
A("v_add_u32 v%d, %d, v%d" % (vTAH, 8 * RP, vTA))
A("v_sub_u32 v%d, %d, v%d" % (vRHO, RP, T7))
A("v_and_b32 v%d, 7, v%d" % (T6, vP))
A("v_xor_b32 v%d, v%d, v%d" % (T7, vG, T6))
A("v_lshlrev_b32 v%d, 4, v%d" % (T7, T7))
A("v_lshl_add_u32 v%d, v%d, 7, v%d" % (T7, vP, T7))
A("v_add_u32 v%d, %d, v%d" % (vBR0, VB, T7))
A("v_xor_b32 v%d, 64, v%d" % (vBR1, vBR0))
A("v_cmp_gt_u32 vcc, 8, v%d" % vP)
A("v_mov_b32 v%d, 0x30000" % T9)
A("s_nop 0")
A("v_cndmask_b32 v14, v%d, v%d, vcc" % (T9, vBR0))
A("v_cndmask_b32 v15, v%d, v%d, vcc" % (T9, vBR1))
A("s_lshl_b32 s%d, s%d, 1" % (sT2, sW))
A("v_add_u32 v%d, s%d, v%d" % (T7, sT2, T2))
A("v_xor_b32 v%d, v%d, v%d" % (T7, T7, T6))
A("v_lshlrev_b32 v%d, 4, v%d" % (T7, T7))
A("v_lshl_add_u32 v%d, v%d, 7, v%d" % (T7, T6, T7))
A("v_lshl_add_u32 v%d, v%d, 3, v%d" % (T7, T3, T7))
A("v_lshrrev_b32 v%d, 3, v%d" % (T8, vP))
A("v_mul_u32_u24 v%d, 7168, v%d" % (T9, T8))
A("v_add_u32 v%d, v%d, v%d" % (T7, T7, T9))
A("v_add_u32 v%d, %d, v%d" % (vVW, VB, T7))
C("output staging: OW4 = (n>>3)*2RP + tx_*784 + 96w + 16G ; OW2 = ... + 64 + 8G ; RB = w*784 + lane*16 ; GO = tile base + w*768 + lane*16 (lane<48)")
vOW4, vOW2, vRB, vGO = 7, 8, 9, 10
A("v_mul_u32_u24 v%d, %d, v%d" % (T7, 2 * RP, T8))
A("v_mul_u32_u24 v%d, 784, v%d" % (T9, T6))
A("s_mul_i32 s%d, s%d, 96" % (sT2, sW))
A("v_add3_u32 v%d, v%d, v%d, s%d" % (T7, T7, T9, sT2))
A("v_lshl_add_u32 v%d, v%d, 4, v%d" % (vOW4, vG, T7))
A("v_lshl_add_u32 v%d, v%d, 3, v%d" % (vOW2, vG, T7))
A("v_add_u32 v%d, 64, v%d" % (vOW2, vOW2))
A("v_lshlrev_b32 v%d, 4, v%d" % (T7, vLANE))
A("s_mul_i32 s%d, s%d, 784" % (sT2, sW))
A("v_add_u32 v%d, s%d, v%d" % (vRB, sT2, T7))
A("s_mul_i32 s%d, s%d, %d" % (sT1, sTY, 14 * 224 * 384))
A("s_mul_i32 s%d, s%d, %d" % (sT2, sTX, 14 * 384))
A("s_add_u32 s%d, s%d, s%d" % (sT1, sT1, sT2))
A("s_mul_i32 s%d, s%d, 768" % (sT2, sW))
A("s_add_u32 s%d, s%d, s%d" % (sT1, sT1, sT2))
A("v_add_u32 v%d, s%d, v%d" % (vGO, sT1, T7))
A("v_cmp_gt_u32 vcc, 48, v%d" % vLANE)
A("v_mov_b32 v%d, 0x%x" % (T9, HUGE))
A("s_nop 0")
A("v_cndmask_b32 v%d, v%d, v%d, vcc" % (vGO, T9, vGO))
C("s45 = 3072 (second pair offset) or HUGE for wave 3")
A("s_cmp_eq_u32 s%d, 3" % sW); A("s_cselect_b32 s45, 0x%x, 3072" % HUGE) if False else None
A("s_mov_b32 s44, 12288"); A("s_mov_b32 s45, 3072"); A("s_cmp_eq_u32 s%d, 3" % sW); A("s_cselect_b32 s45, 0x%x, s45" % HUGE)
C("U stream voffset; flag store offset (tid==0 && wg<72 -> wg else HUGE); poll offset lane*4 (lane<18)")
A("v_lshlrev_b32 v%d, 4, v%d" % (T0, vLANE))
A("s_mul_i32 s%d, s%d, 3072" % (sT2, sW))
A("v_add_u32 v%d, s%d, v%d" % (vUO, sT2, T0))
A("v_cmp_eq_u32 vcc, 0, v0")
A("s_and_b32 s%d, s2, 3" % sT1); A("s_lshl_b32 s%d, s%d, 6" % (sT1, sT1)); A("s_lshr_b32 s%d, s2, 2" % sT2); A("s_add_u32 s%d, s%d, s%d" % (sT1, sT1, sT2))
A("s_cmp_lt_u32 s2, 72"); A("s_cselect_b32 s%d, s%d, 0x%x" % (sT2, sT1, HUGE))
A("v_mov_b32 v%d, s%d" % (T0, sT2))
A("v_cndmask_b32 v%d, v%d, v%d, vcc" % (vFLO, T9, T0))
C("T matrices")
A("v_lshlrev_b32 v%d, 2, v%d" % (T7, T3))
A("v_lshlrev_b32 v%d, 1, v%d" % (T9, T6))
A("v_sub_u32 v%d, v%d, v%d" % (T7, T7, T9))
A("v_cmp_eq_u32 vcc, 7, v%d" % T6)
A("v_add_u32 v%d, 64, v%d" % (T9, T7))
A("s_nop 0")
A("v_cndmask_b32 v%d, v%d, v%d, vcc" % (T7, T7, T9))
P1, M1 = 0x3F80, 0xBF80
tab = {0: ((0, P1, 2, M1), (1, P1, 2, P1)), 1: ((1, M1, 2, P1), (1, P1, 3, M1))}
A("v_cmp_eq_u32 s[60:61], 1, v%d" % T8)
for nt in range(2):
    (a0, va0, b0, vb0), (a1, va1, b1, vb1) = tab[nt]
    for (dst, x0, x1) in ((XA, a0, a1), (XB, va0, va1), (XC, b0, b1), (XD, vb0, vb1)):
        A("v_mov_b32 v%d, 0x%x" % (dst, x0))
        A("v_mov_b32 v%d, 0x%x" % (XE, x1))
        A("v_cndmask_b32 v%d, v%d, v%d, s[60:61]" % (dst, dst, XE))
    for ep in range(4):
        for hh in range(2):
            e = 2 * ep + hh
            off = 8 * (e >> 2) + (e & 3)
            dst = T0 if hh == 0 else T1
            A("v_add_u32 v%d, %d, v%d" % (T9, off, T7))
            A("v_cmp_eq_u32 vcc, v%d, v%d" % (T9, XA))
            A("v_cmp_eq_u32 s[62:63], v%d, v%d" % (T9, XC))
            A("s_nop 0")
            A("v_cndmask_b32 v%d, 0, v%d, vcc" % (dst, XB))
            A("v_cndmask_b32 v%d, v%d, v%d, s[62:63]" % (dst, dst, XD))
        A("v_lshl_or_b32 v%d, v%d, 16, v%d" % (T0, T1, T0))
        A("v_accvgpr_write_b32 a%d, v%d" % (aT + 4 * nt + ep, T0))
calc2 = E.out; E.out = _save; sT0, sT1, sT2 = _t
def interleave(units, calc, per):
    calc = [c for c in calc if not c.strip().startswith(";")]
    ci = 0
    for u in units:
        for x in u:
            A(x[0])
            if x[1]: vm.issue(x[1])
        k = 0
        while ci < len(calc) and (k < per or calc[ci].strip().startswith("s_cselect") or calc[ci - 1].strip().startswith("s_cmp")):
            E.out.append(calc[ci]); ci += 1; k += 1
    return calc[ci:]
rest = interleave(units1[:12], calc1, 4)
assert not rest, len(rest)
rest = interleave(units1[12:] + units2, calc2, 5)
E.out += rest
stamp(2)
stamp(2)
C("U task compute")
vm.need("UG", A)
stamp(2)
for i in range(18): A("v_lshlrev_b32 v%d, 16, v%d" % (UG + i, UG + i))
RRg = UG + 18; TTg = UG + 24; URg = UG + 26; ORg = UG + 58
for e in range(2):
    g = lambda a, b: UG + (3 * a + b) * 2 + e
    R = {}
    for b in range(3):
        R[(0, b)] = g(0, b); R[(3, b)] = g(2, b)
        A("v_add_f32 v%d, v%d, v%d" % (TTg, g(0, b), g(2, b)))
        A("v_mul_f32 v%d, 0.5, v%d" % (TTg, TTg))
        A("v_fma_f32 v%d, 0.5, v%d, v%d" % (RRg + b, g(1, b), TTg)); R[(1, b)] = RRg + b
        A("v_fma_f32 v%d, -0.5, v%d, v%d" % (RRg + 3 + b, g(1, b), TTg)); R[(2, b)] = RRg + 3 + b
    ub = URg + 16 * e
    for i in range(4):
        A("v_mov_b32 v%d, v%d" % (ub + 4 * i + 0, R[(i, 0)]))
        A("v_mov_b32 v%d, v%d" % (ub + 4 * i + 3, R[(i, 2)]))
        A("v_add_f32 v%d, v%d, v%d" % (TTg, R[(i, 0)], R[(i, 2)]))
        A("v_mul_f32 v%d, 0.5, v%d" % (TTg, TTg))
        A("v_fma_f32 v%d, 0.5, v%d, v%d" % (ub + 4 * i + 1, R[(i, 1)], TTg))
        A("v_fma_f32 v%d, -0.5, v%d, v%d" % (ub + 4 * i + 2, R[(i, 1)], TTg))
for i in range(4):
    for j in range(4):
        n_ = "-" if i == 0 else ""
        p, pidx = upos(i, j)
        o = ORg + 4 * i + j
        A("v_cvt_pk_bf16_f32 v%d, %sv%d, %sv%d" % (o, n_, URg + 4 * i + j, n_, URg + 16 + 4 * i + j))
        A("s_add_u32 s%d, s%d, %d" % (sT2, sUSB, ugam(p, 0, 0, pidx) * 12288))
        A("buffer_store_dword v%d, v%d, s[%d:%d], s%d offen sc0 sc1" % (o, vUSo, sU, sU + 3, sT2)); vm.issue("UST")
VAR = os.environ.get("VAR", "C")
emit_units(cf_row(1)); emit_units(pc_load(3) + pc_load(4))
if VAR == "A": emit_units(cf_row(2)); emit_units(pc_load(5) + pc_load(6))
stamp(2)
C("w_lat frags -> a0..a71")
vm.need("WL", A)
A("v_add_u32 v%d, s%d, v%d" % (T0, sRB, vTRB)); A("v_add_u32 v%d, s%d, v%d" % (T1, sRB, vTRB + 1))
A("v_add_u32 v%d, s%d, v%d" % (T2, sRB2, vTRB)); A("v_add_u32 v%d, s%d, v%d" % (T3, sRB2, vTRB + 1))
for kc in range(6):
    for t in range(3):
        for h in range(2):
            a = aWL + (kc * 3 + t) * 4 + 2 * h
            base = (T0 if t < 2 else T1) if kc < 4 else (T2 if t < 2 else T3)
            off = (kc if kc < 4 else kc - 4) * STG + 384 * h + (8 if t == 1 else 0)
            A("ds_read_b64_tr_b16 a[%d:%d], v%d offset:%d" % (a, a + 1, base, off)); lg.issue("WLF")
def unpack_rows(js):
    ops = []
    for j in js:
        b = lacc(pc_tile(j), 0)
        dsts = [b] if j in (0, 8) else [lacc(2 * j, 0), b]
        for dbase in dsts:
            for i in range(6):
                ops.append("v_lshlrev_b32 v%d, 16, v%d" % (dbase + 2 * i, b + 6 + i))
                ops.append("v_and_b32 v%d, 0xffff0000, v%d" % (dbase + 2 * i + 1, b + 6 + i))
    return ops
def mwrite(r):
    b = lacc(r, 0)
    ops = [("x", "v_cvt_pk_bf16_f32 v%d, v%d, v%d" % (b + i, b + 2 * i, b + 2 * i + 1), None) for i in range(6)]
    ops.append(("lg", "ds_write_b128 v%d, v[%d:%d] offset:%d" % (vMW4 + (r >> 3), b, b + 3, (r & 7) * RP), "MW"))
    ops.append(("lg", "ds_write_b64 v%d, v[%d:%d] offset:%d" % (vMW2 + (r >> 3), b + 4, b + 5, (r & 7) * RP), "MW"))
    return ops
def pread(r, kc):
    a = aPF + ((r & 1) * 6 + kc) * 4
    return ("lg", "ds_read_b128 a[%d:%d], v%d offset:%d" % (a, a + 3, vLB + (r >> 3), (r & 7) * RP + 64 * kc), "P%d_%d" % (r, kc))

GORD = [(0, 0), (0, 1), (1, 0), (1, 1), (0, 2), (0, 3), (1, 2), (1, 3)]
groups = []
for n in range(12):
    for (ks, pidx) in GORD: groups.append((n, n // 3, n % 3, ks, pidx))
def uload(q, t):
    n, p, kk, ks, pidx = groups[q]
    a = aUF + 12 * (q % 4) + 4 * t
    r = []
    assert ugam(p, kk, ks, pidx) == q
    if t == 0: r.append((("s_mov_b32 s%d, 0" % sUS) if q == 0 else ("s_add_u32 s%d, s%d, s44" % (sUS, sUS)), None))
    r.append(("buffer_load_dwordx4 a[%d:%d], v%d, s[%d:%d], s%d offen offset:%d" % (a, a + 3, vUO, sU, sU + 3, sUS, 1024 * t), "U%d_%d" % (q, t)))
    return r

PCJ = {0: [0, 1, 2], 1: [3, 4], 2: [5, 6], 3: [7, 8]}
for k in range(4):
    need = {"CF%d" % k} | {"PC%d" % j for j in PCJ[k]}
    FK = 1 if VAR == "B" else 0
    if k == FK: need |= {"UST"}
    if k == 3: need |= {"POLL"}
    vm.need(need, A)
    stamp(2)
    if k == 3:
        C("check flags (wave 0 only); slow path polls again")
        A("s_cmp_lg_u32 s%d, 0" % sW)
        A("s_cbranch_scc1 L_polled")
        A("v_cmp_gt_u32 vcc, 4, v%d" % vP)
        A("v_mov_b32 v%d, 0x01010101" % T4)
        A("v_cmp_eq_u32 s[60:61], 4, v%d" % vP)
        A("v_cndmask_b32 v%d, 0, v%d, vcc" % (T4, T4))
        A("v_mov_b32 v%d, 0x0101" % T3)
        A("v_cndmask_b32 v%d, v%d, v%d, s[60:61]" % (T4, T4, T3))
        L("L_poll")
        A("v_cmp_ne_u32 vcc, v%d, v%d" % (T4, vFLG))
        A("s_nop 1")
        A("s_or_b32 s60, vcc_lo, vcc_hi")
        A("s_cbranch_scc0 L_polled")
        A("s_sleep 20")
        A("buffer_load_dword v%d, v%d, s[%d:%d], 0 offen sc0 sc1" % (vFLG, T5, sDBG, sDBG + 3))
        A("s_waitcnt vmcnt(0)")
        A("s_branch L_poll")
        L("L_polled")
    for x in unpack_rows(PCJ[k]): A(x)
    lg.drain(A)
    A("s_barrier")
    stamp(2)
    units = []
    fu = [("v_mov_b32 v%d, 1" % T4, None), ("buffer_store_byte v%d, v%d, s[%d:%d], 0 offen sc0 sc1" % (T4, vFLO, sDBG, sDBG + 3), "FLAG")]
    FLAST = int(os.environ.get("FLAST", "0"))
    if k == FK and not FLAST: units.append(fu)
    if k == 0 and VAR != "A": units += cf_row(2) + pc_load(5) + pc_load(6)
    if k == 0: units += cf_row(3) + pc_load(7) + pc_load(8)
    if k == FK and FLAST: units.append(fu)
    if k == 2:
        units.append([("v_lshlrev_b32 v%d, 2, v0" % (T5,), None),
                      ("buffer_load_dword v%d, v%d, s[%d:%d], 0 offen sc0 sc1" % (vFLG, T5, sDBG, sDBG + 3), "POLL")])
    if k == 3:
        w = [("s_lshr_b32 s%d, s2, 3" % sT1, None), ("s_mul_i32 s%d, s%d, 36864" % (sT1, sT1), None)]
        units.append(w)
        for i in range(3):
            for n in range(3):
                u = [("buffer_load_dwordx4 a[%d:%d], v%d, s[%d:%d], s%d offen offset:%d" % (128 + 12 * i + 4 * n, 131 + 12 * i + 4 * n, vUO, sU, sU + 3, sT1, 1024 * n), "WARM")]
                if n == 2 and i < 2: u.append(("s_add_u32 s%d, s%d, 12288" % (sT1, sT1), None))
                units.append(u)

    mw = []
    if k > 0:
        for r in range(4 * k - 4, 4 * k): mw += mwrite(r)
    if k == 3:
        for i in range(0, 48, 2): units.append([("v_mov_b32 v%d, 0" % (ACC + i), None), ("v_mov_b32 v%d, 0" % (ACC + i + 1), None)])
    for kc in range(6):
        x = pread(4 * k, kc); A(x[1]); lg.issue(x[2])
    if k == 0: lg.need("WLF", A)
    for r in range(4 * k, 4 * k + 4):
        for kc in range(6):
            lg.need("P%d_%d" % (r, kc), A, 3)
            for d in range(3):
                a = lacc(r, d); w = aWL + (kc * 3 + d) * 4; p = aPF + ((r & 1) * 6 + kc) * 4
                A("v_mfma_f32_16x16x32_bf16 v[%d:%d], a[%d:%d], a[%d:%d], v[%d:%d]" % (a, a + 3, w, w + 3, p, p + 3, a, a + 3))
                if d == 0 and r < 4 * k + 3:
                    x = pread(r + 1, kc); A(x[1]); lg.issue(x[2])
                if (d == 1 or (d == 0 and r == 4 * k + 3)) and units:
                    for x in units.pop(0):
                        A(x[0])
                        if x[1]: vm.issue(x[1])
                if d == 2:
                    for _ in range(2):
                        if mw:
                            x = mw.pop(0); A(x[1])
                            if x[2]: lg.issue(x[2]); break
    for u in units:
        for x in u:
            A(x[0])
            if x[1]: vm.issue(x[1])
    assert not mw
lg.drain(A)
A("s_barrier")
stamp()
A("s_nop 4")
for r in range(12, 16):
    for x in mwrite(r): A(x[1])
A("s_waitcnt lgkmcnt(0)")
A("s_barrier")
stamp()


aVA = aT + 8
aSV = 0
aOR = 96
sPAR, sKK, sPASS = 60, 61, 62
def acc(j, mt, t): return ACC + ((j * 4 + mt) * 3 + t) * 4
def pk(dst, a, b, neg=False):
    return "v_pk_add_f32 v[%d:%d], v[%d:%d], v[%d:%d]%s" % (dst, dst + 1, a, a + 1, b, b + 1, " neg_lo:[0,1] neg_hi:[0,1]" if neg else "")
def vgen_tr(k):
    x = aVA + 4 * (k & 1); base = vTA if k < 4 else vTAH
    return [("ds_read_b64_tr_b16 a[%d:%d], v%d offset:%d" % (x + 2 * h, x + 2 * h + 1, base, (k & 3) * 2 * RP + h * 8 * PP), "VA%d" % (k & 1)) for h in range(2)]
def vgen_mfma(k, which):
    x = aVA + 4 * (k & 1); tt = aT + 4 * which; d = vVT + 4 * which
    return "v_mfma_f32_16x16x32_bf16 v[%d:%d], a[%d:%d], a[%d:%d], 0" % (d, d + 3, x, x + 3, tt, tt + 3)
def vgen_out(k, which):
    d = vVT + 4 * which
    return [("v_cvt_pk_bf16_f32 v%d, v%d, v%d" % (d, d, d + 1), None), ("v_cvt_pk_bf16_f32 v%d, v%d, v%d" % (d + 1, d + 2, d + 3), None),
            ("ds_write_b64 v%d, v[%d:%d] offset:%d" % (vVW, d, d + 1, which * 14336 + k * 1024), "VW")]
def bread(gi, mt):
    ks, pidx = GORD[gi]
    b = vBF + 16 * (gi & 1) + 4 * mt
    reg = (15 if ks else 14) if mt == 3 else (vBR1 if ks else vBR0)
    return ("ds_read_b128 v[%d:%d], v%d offset:%d" % (b, b + 3, reg, pidx * 7168 + mt * 2048), "B%d_%d" % (gi, mt))
def uld(gi, t):
    a = aUF + 12 * (gi % 4) + 4 * t
    return ("buffer_load_dwordx4 a[%d:%d], v%d, s[%d:%d], s%d offen offset:%d" % (a, a + 3, vUO, sU, sU + 3, sUS, 1024 * t), "U%d_%d" % (gi % 8, t))

C("V-gen chunk 0 (pipelined) + zero tiles j=3 + first U loads")
ul0 = []
for q in range(4):
    for t in range(3): ul0.append(uload(q, t))
def pop_ul():
    if ul0:
        for x in ul0.pop(0):
            A(x[0])
            if x[1]: vm.issue(x[1])
for k in range(7):
    base = vTA if k < 4 else vTAH
    for h in range(2):
        A("ds_read_b64_tr_b16 a[%d:%d], v%d offset:%d" % (96 + 4 * k + 2 * h, 97 + 4 * k + 2 * h, base, (k & 3) * 2 * RP + h * 8 * PP)); lg.issue("V0_%d" % k)
zq = ["v_mov_b32 v%d, 0" % (acc(3, 0, 0) + i) for i in range(48)]
for i in range(8): A(zq.pop(0))
dtmp = lambda k, w2: acc(1, 0, 0) + (2 * k + w2) * 4
for k in range(7):
    lg.need("V0_%d" % k, A)
    for w2 in range(2):
        d = dtmp(k, w2)
        A("v_mfma_f32_16x16x32_bf16 v[%d:%d], a[%d:%d], a[%d:%d], 0" % (d, d + 3, 96 + 4 * k, 99 + 4 * k, aT + 4 * w2, aT + 4 * w2 + 3))
        A(zq.pop(0)); A(zq.pop(0))
for k in range(7):
    for w2 in range(2):
        d = dtmp(k, w2)
        A("v_cvt_pk_bf16_f32 v%d, v%d, v%d" % (d, d, d + 1)); A("v_cvt_pk_bf16_f32 v%d, v%d, v%d" % (d + 1, d + 2, d + 3))
        A("ds_write_b64 v%d, v[%d:%d] offset:%d" % (vVW, d, d + 1, w2 * 14336 + k * 1024)); lg.issue("VW")
        if zq: A(zq.pop(0))
        pop_ul()
assert not zq and not ul0
A("v_add_u32 v%d, 128, v%d" % (vTA, vTA)); A("v_add_u32 v%d, 128, v%d" % (vTAH, vTAH))
A("v_add_u32 v%d, %d, v%d" % (vVW, VS, vVW))
for x in vgen_tr(0): A(x[0]); lg.issue(x[1])
A("s_mov_b32 s%d, %d" % (sPAR, VS)); A("s_mov_b32 s%d, 0" % sPASS)
lg.drain(A)
A("s_barrier")
stamp()
for mt in range(4):
    x = bread(0, mt); A(x[0]); lg.issue(x[1])
C("all 12 first loads are waited here once so that the loop's counted waits are conservative")

def body(emit, first, lgt, vmt, name):
    for gi in range(8):
        ks, pidx = GORD[gi]
        vg = gi < 7
        seq = ["m0", "m1", "m2", "v0", "m3", "v1", "m4", "m5", "m6", "m7", "m8", "m9", "m10", "m11"] if vg else ["m%d" % i for i in range(12)]
        fill = {k: [] for k in seq}
        fill["m0"].append(("vm",) + uld(gi + 3, 2))
        R = [("lg",) + bread((gi + 1) % 8, mt) for mt in range(4)]
        S = ("x", "s_add_u32 s%d, s%d, s44" % (sUS, sUS), None)
        L0 = ("vm",) + uld(gi + 4, 0); L1 = ("vm",) + uld(gi + 4, 1)
        if vg:
            o0 = vgen_out(gi, 0); o1 = vgen_out(gi, 1)
            T = [("lg",) + x for x in vgen_tr(gi + 1)] if gi < 6 else [("x", "s_nop 0", None), ("x", "s_nop 0", None)]
            fill["m1"] += [R[0], S]; fill["m2"].append(R[1]); fill["v0"].append(R[2]); fill["m3"].append(R[3])
            fill["v1"].append(L0)
            fill["m4"].append(T[0]); fill["m5"].append(T[1])
            fill["m5"].append(("x",) + o0[0]); fill["m6"].append(("x",) + o0[1]); fill["m6"].append(("x",) + o1[0])
            fill["m7"].append(("lg",) + o0[2]); fill["m8"].append(("x",) + o1[1])
            fill["m9"].append(L1)
            fill["m10"].append(("lg",) + o1[2])
        else:
            va = lambda r, sr: ("x", "v_add_u32 v%d, s%d, v%d" % (r, sr, r), None)
            fill["m1"] += [S, va(vBR0, sPAR)]
            fill["m2"] += [("bar",)]
            fill["m3"].append(L0)
            fill["m4"] += [R[0], va(14, sPAR)]
            fill["m5"] += [R[1], va(vBR1, sPAR)]
            fill["m6"] += [R[2], va(15, sPAR)]
            fill["m7"] += [R[3], ("x", "v_subrev_u32 v%d, s%d, v%d" % (vVW, sPAR, vVW), None)]
            fill["m8"].append(L1)
            fill["m9"] += [("hook",)]
            T = [("lg",) + x for x in vgen_tr(0)]
            fill["m10"] += [T[0], ("x", "s_sub_u32 s%d, 0, s%d" % (sPAR, sPAR), None)]
            fill["m11"] += [T[1]]
        ws_ = []
        vmt.need({"U%d_%d" % (gi, t) for t in range(3)}, ws_.append)
        lgt.need({"B%d_%d" % (gi, mt) for mt in range(4)} | ({"VA%d" % (gi & 1)} if vg else set()), ws_.append)
        if ws_: emit("s_waitcnt " + " ".join(x.split()[1] for x in ws_))
        for k in seq:
            if k[0] == "m":
                i = int(k[1:]); t = i // 4; mt = i % 4
                d = acc(pidx, mt, t); u = aUF + 12 * (gi % 4) + 4 * t; b = vBF + 16 * (gi & 1) + 4 * mt
                z = first and ks == 0 and pidx in (1, 2)
                emit("v_mfma_f32_16x16x32_bf16 v[%d:%d], a[%d:%d], v[%d:%d], %s" % (d, d + 3, u, u + 3, b, b + 3, "0" if z else "v[%d:%d]" % (d, d + 3)))
            else:
                emit(vgen_mfma(gi, int(k[1])))
            for f in fill[k]:
                if f[0] == "bar": lgt.drain(emit); emit("s_barrier"); continue
                if f[0] == "hook":
                    if first:
                        emit("v_add_u32 v%d, 128, v%d" % (vTA, vTA)); emit("v_add_u32 v%d, 128, v%d" % (vTAH, vTAH))
                        emit("s_cmp_eq_u32 s%d, 3" % sPASS); emit("s_cbranch_scc1 L_out0"); emit("@L_out0_ret")
                    else:
                        emit("s_cmp_eq_u32 s%d, 1" % sKK); emit("s_cbranch_scc1 L_special")
                        emit("v_add_u32 v%d, 128, v%d" % (vTA, vTA)); emit("v_add_u32 v%d, 128, v%d" % (vTAH, vTAH))
                        emit("@L_special_ret")
                    continue
                emit(f[1])
                if f[2]: (lgt if f[0] == "lg" else vmt).issue(f[2])

lgt = Trk("lgkmcnt", 15); vmt = Trk("vmcnt", 63)
tmp = []
body(tmp.append, False, lgt, vmt, "x"); body(tmp.append, False, lgt, vmt, "x")
b0 = []; body(b0.append, True, lgt, vmt, "b0")
b1 = []; body(b1.append, False, lgt, vmt, "b1")
b2 = []; body(b2.append, False, lgt, vmt, "b1")
assert b1 == b2
def emit_body(b):
    for x in b:
        if x.startswith("@"): L(x[1:])
        else: A(x)
C("entering loop: the first group's L2 load (group 3 frag 2) is redundant on entry; sUS must point at group 3")
A("s_waitcnt vmcnt(0)")
def pstamp(base):
    if not (STAMPS and CH == 4): return
    A("%s s[40:41]" % ("s_memrealtime" if STAMPS >= 2 else "s_memtime")); A("s_waitcnt lgkmcnt(0)")
    for p in range(4):
        A("s_cmp_eq_u32 s%d, %d" % (sPASS, p))
        A("s_cselect_b32 s%d, s40, s%d" % (sSTAMP + 2 * (base + 2 * p), sSTAMP + 2 * (base + 2 * p)))
        A("s_cselect_b32 s%d, s41, s%d" % (sSTAMP + 2 * (base + 2 * p) + 1, sSTAMP + 2 * (base + 2 * p) + 1))
PB = nst[0]
if STAMPS and CH == 4: nst[0] += 8
L("L_pass")
pstamp(PB)
A("s_mov_b32 s%d, 0" % sKK)
emit_body(b0)
A("s_mov_b32 s%d, 1" % sKK)
L("L_body")
emit_body(b1)
A("s_add_u32 s%d, s%d, 1" % (sKK, sKK))
A("s_cmp_lt_u32 s%d, 3" % sKK)
A("s_cbranch_scc1 L_body")
pstamp(PB + 1)
C("---- pass end")
kept = [acc(0, 0, 0) + i for i in range(48)] + [acc(3, 0, 0) + i for i in range(48)]
def wt_pair(tl):
    o = []
    Z = [[acc(j, mt, t) for j in range(4)] for (mt, t) in tl]
    for i, z in enumerate(Z):
        for h in (0, 2): o.append(pk(16 + 4 * i + h, z[1] + h, z[2] + h))
    for i, z in enumerate(Z):
        for h in (0, 2): o.append(pk(z[3] + h, z[3] + h, z[2] + h))
    for i, z in enumerate(Z):
        for h in (0, 2): o.append(pk(z[0] + h, z[0] + h, 16 + 4 * i + h))
    for i, z in enumerate(Z):
        for h in (0, 2): o.append(pk(z[3] + h, z[3] + h, z[1] + h, True))
    return o
A("s_cmp_ge_u32 s%d, 2" % sPASS); A("s_cbranch_scc1 L_e2")
A("s_nop 2")
for mt in range(4):
    for x in wt_pair([(mt, t) for t in range(3)]): A(x)
A("s_cmp_eq_u32 s%d, 1" % sPASS); A("s_cbranch_scc1 L_e1")
C("E0: save R1")
for i, v in enumerate(kept): A("v_accvgpr_write_b32 a%d, v%d" % (aSV + i, v))
A("s_branch L_next")
L("L_e1")
C("E1: D = 2*R1 - S   (8 regs per step, in-place temps, software pipelined)")
def rd8(i): return ["v_accvgpr_read_b32 v%d, a%d" % (16 + 8 * ((i // 8) & 1) + r, aSV + i + r) for r in range(8)]
for x in rd8(0): A(x)
for i in range(0, 96, 8):
    x = 16 + 8 * ((i // 8) & 1)
    for h in (0, 2, 4, 6):
        A("v_pk_fma_f32 v[%d:%d], v[%d:%d], 2.0, v[%d:%d] op_sel_hi:[1,0,1] neg_lo:[0,0,1] neg_hi:[0,0,1]" % (x + h, x + h + 1, x + h, x + h + 1, kept[i] + h, kept[i] + h + 1))
    if i + 8 < 96:
        for y in rd8(i + 8): A(y)
    for r in range(8): A("v_accvgpr_write_b32 a%d, v%d" % (aSV + i + r, x + r))
A("s_branch L_next")
L("L_e2")
C("E2/E3: fused W transform + pack + stage to LDS; packed data goes into dead tiles j=1 (b=0) / j=2 (b=1)")
A("v_add_u32 v28, %d, v%d" % (8 * RP, vOW4)); A("v_add_u32 v29, %d, v%d" % (8 * RP, vOW2))
A("s_nop 0")
pend = []
for mt in range(4):
    va_ = wt_pair([(mt, t) for t in range(3)]); wr = []
    for bb in range(2):
        ng = "-" if bb else ""; jj = 3 if bb else 0
        dst = acc(1 + bb, mt, 0)
        for t in range(3):
            z = acc(jj, mt, t)
            va_.append("v_cvt_pk_bf16_f32 v%d, %sv%d, %sv%d" % (dst + 2 * t, ng, z, ng, z + 1))
            va_.append("v_cvt_pk_bf16_f32 v%d, %sv%d, %sv%d" % (dst + 2 * t + 1, ng, z + 2, ng, z + 3))
        o = (mt & 1) * 4 * RP + 384 * bb
        wr.append("ds_write_b128 v%d, v[%d:%d] offset:%d" % (28 if mt >= 2 else vOW4, dst, dst + 3, o))
        wr.append("ds_write_b64 v%d, v[%d:%d] offset:%d" % (29 if mt >= 2 else vOW2, dst + 4, dst + 5, o))
    for i, x in enumerate(va_):
        A(x)
        if pend and i % 9 == 4: A(pend.pop(0))
    pend = wr
for x in pend: A(x)
A("s_cmp_eq_u32 s%d, 3" % sPASS); A("s_cbranch_scc1 L_tail")
for i, v in enumerate(kept): A("v_accvgpr_read_b32 v%d, a%d" % (v, aSV + i))
A("v_add_u32 v%d, %d, v%d" % (vOW4, RP, vOW4)); A("v_add_u32 v%d, %d, v%d" % (vOW2, RP, vOW2))
L("L_next")
A("s_add_u32 s%d, s%d, 1" % (sPASS, sPASS))
A("s_branch L_pass")

L("L_special")
C("prepare V-gen addressing / T for the next pass (executed in kk==1 of pass p)")
A("v_add_u32 v%d, -256, v%d" % (vTA, vTA)); A("v_add_u32 v%d, -256, v%d" % (vTAH, vTAH))
A("s_cmp_eq_u32 s%d, 1" % sPASS); A("s_cbranch_scc1 L_sp1")
A("s_cmp_eq_u32 s%d, 2" % sPASS); A("s_cbranch_scc1 L_sp2")
A("s_cmp_eq_u32 s%d, 0" % sPASS); A("s_cbranch_scc0 L_special_ret")
C("flip sign of rho0 half of T")
A("v_cmp_ne_u32 vcc, 0, v%d" % vRHO)
A("v_mov_b32 v16, 0x80008000")
A("s_nop 0")
A("v_cndmask_b32 v16, 0, v16, vcc")
for i in range(8):
    A("v_accvgpr_read_b32 v17, a%d" % (aT + i)); A("v_xor_b32 v17, v17, v16"); A("v_accvgpr_write_b32 a%d, v17" % (aT + i))
A("s_branch L_special_ret")
L("L_sp1")
A("v_sub_u32 v%d, v%d, v%d" % (vTA, vTA, vRHO)); A("v_sub_u32 v%d, v%d, v%d" % (vTAH, vTAH, vRHO))
A("s_branch L_special_ret")
L("L_sp2")
A("v_add_u32 v%d, %d, v%d" % (vTA, RP, vTA)); A("v_add_u32 v%d, %d, v%d" % (vTAH, RP, vTAH))
A("s_branch L_special_ret")

L("L_tail")
stamp()
A("s_waitcnt lgkmcnt(0)")
A("s_barrier")
A("v_add_u32 v%d, %d, v%d" % (vRB, RP, vRB))
A("v_add_u32 v%d, %d, v%d" % (vGO, 224 * 384, vGO))
L("L_out0")
C("read back staged rows and store coalesced (used for both output row parities)")
A("v_add_u32 v16, %d, v%d" % (8 * RP, vRB))
for k in range(14):
    rho = k >> 1; pr = k & 1
    off = 2 * rho * RP + pr * 4 * 784; base = vRB
    if rho >= 4: off -= 8 * RP; base = 16
    A("ds_read_b128 a[%d:%d], v%d offset:%d" % (aOR + 4 * k, aOR + 4 * k + 3, base, off))
for k in range(14):
    rho = k >> 1; pr = k & 1
    if pr == 0: A("s_mov_b32 s%d, %d" % (sT0, 2 * rho * 224 * 384))
    else: A("s_add_u32 s%d, s%d, s45" % (sT0, sT0))
    A("s_waitcnt lgkmcnt(%d)" % (13 - k))
    A("buffer_store_dwordx4 a[%d:%d], v%d, s[%d:%d], s%d offen" % (aOR + 4 * k, aOR + 4 * k + 3, vGO, sOUT, sOUT + 3, sT0))
A("s_cmp_eq_u32 s%d, 3" % sKK)
A("s_cbranch_scc0 L_out0_ret")
if STAMPS:
    A("s_waitcnt vmcnt(0)")
    stamp()
    n = nst[0]
    if os.environ.get("DIAG"):
        i, j, K = [int(x) for x in os.environ["DIAG"].split(",")]
        A("s_sub_u32 s40, s%d, s%d" % (sSTAMP + 2 * j, sSTAMP + 2 * i))
        A("s_mul_i32 s40, s40, %d" % K)
        A("s_add_u32 s40, s40, s%d" % (sSTAMP + 2 * (n - 1)))
        L("L_diag")
        A("s_memrealtime s[42:43]"); A("s_waitcnt lgkmcnt(0)")
        A("s_sub_u32 s41, s42, s40"); A("s_cmp_lt_i32 s41, 0"); A("s_cbranch_scc1 L_diag")
        A("s_endpgm")
    sWS = 24; A("s_mov_b32 s%d, s100" % sWS); A("s_mov_b32 s%d, s101" % (sWS + 1)); A("s_mov_b32 s%d, 0x10000000" % (sWS + 2)); A("s_mov_b32 s%d, 0x00020000" % (sWS + 3))
    A("s_lshl_b32 s%d, s2, 2" % sT0)
    A("s_add_u32 s%d, s%d, s%d" % (sT0, sT0, sW))
    A("s_mul_i32 s%d, s%d, %d" % (sT0, sT0, 8 * n))
    A("s_add_u32 s%d, s%d, 0x1000000" % (sT0, sT0))
    A("v_mov_b32 v16, s%d" % sT0)
    A("v_and_b32 v17, 63, v0")
    A("v_cmp_eq_u32 vcc, 0, v17")
    A("s_and_saveexec_b64 s[40:41], vcc")
    for i in range(n):
        A("v_mov_b32 v18, s%d" % (sSTAMP + 2 * i))
        A("v_mov_b32 v19, s%d" % (sSTAMP + 2 * i + 1))
        A("buffer_store_dwordx2 v[18:19], v16, s[%d:%d], 0 offen offset:%d" % (sWS, sWS + 3, 8 * i))
        A("s_nop 1")
    sys.stderr.write("nstamps=%d\n" % n)
L("L_end")
A("s_endpgm")
errs = hazard_check(E.out[main_start:])
sys.stderr.write("hazard errors: %d\n" % errs)
E.raw(""".section .rodata,"a"
.p2align 6
.amdhsa_kernel %s
  .amdhsa_next_free_vgpr 512
  .amdhsa_next_free_sgpr 102
  .amdhsa_accum_offset 256
  .amdhsa_group_segment_fixed_size 0
  .amdhsa_kernarg_size 56
  .amdhsa_user_sgpr_count 2
  .amdhsa_user_sgpr_kernarg_segment_ptr 1
  .amdhsa_system_sgpr_workgroup_id_x 1
.end_amdhsa_kernel""" % KN)
print(E.text())
```

```python
import sys, os
from common import *
STAMPS = int(sys.argv[1]) if len(sys.argv) > 1 else 0
KN = "standalone__detection_seg_fpn_lateral__vision_kernel"
PP = int(os.environ.get('PP', '416')); CPP = PP // 16; RP = 16 * PP; VB = 16 * RP; VS = 28672; STG = 3072
LDS = VB + 2 * VS
HUGE = 0x40000000
SZ_CF = 224 * 224 * 384; SZ_PC = 112 * 112 * 384; SZ_WL = 192 * 384; SZ_WO = 9 * 192 * 384; SZ_OUT = SZ_CF
SZ_U = 96 * 12288
E = Em(); A = E.A; L = E.L; C = E.C
E.raw("; @launch grid=(256,1,1) block=(256,1,1) lds=%d" % LDS)
E.raw('.amdgcn_target "amdgcn-amd-amdhsa--gfx950"')
E.raw(".text")
def upos(i, j): return ({1: 0, 2: 1, 0: 2, 3: 3}[i], j)
def ugam(p, kk, ks, pidx): return p * 24 + kk * 8 + (pidx >> 1) * 4 + ks * 2 + (pidx & 1)

vBR0, vBR1, vVW, vTA, vTAH, vUO, vSO4, vSO2, vSO4b, vSO2b, vRHO = 1, 2, 3, 4, 5, 6, 7, 8, 9, 10, 11
vX = 12; vVA = 16; vVT = 24; vBF = 32; ACC = 64
vLANE, vP, vG = 32, 33, 34
T0, T1, T2, T3, T4, T5, T6, T7, T8, T9 = 35, 36, 37, 38, 39, 40, 41, 42, 43, 44
vLB = 45; vMW4 = 47; vMW2 = 49; vTRB = 51; vWD = 54; vCFN, vCFL, vCFR = 57, 58, 59; vPC4, vPC2 = 60, 61; vUL, vUSo = 62, 63
vFLG, vFLO = 12, 13
XA, XB, XC, XD, XE, XF = 24, 25, 26, 27, 28, 29
aWL = 0; aPF = 72
aUF = 192; aT = 240
sCF, sPC, sWL, sU, sOUT, sWO, sDBG = 4, 8, 12, 16, 20, 24, 56
sW, sTY, sTX, sRB, sRB2, sDSO, sT0, sT1, sT2, sT3, sCFB, sCFL, sUS, sPCB, sUT, sUSB = 28, 29, 30, 31, 32, 33, 35, 39, 52, 53, 37, 36, 54, 55, 34, 38
sSTAMP = 64
def lacc(t, d): return ACC + (t * 3 + d) * 4
nst = [0]
CH = int(os.environ.get("CHSTAMP", "0"))
def stamp(kind=0):
    if not STAMPS: return
    if kind != 0 and kind != CH: return
    i = nst[0]; nst[0] += 1
    assert sSTAMP + 2 * i + 1 < 100
    A("%s s[%d:%d]" % ("s_memrealtime" if STAMPS >= 2 else "s_memtime", sSTAMP + 2 * i, sSTAMP + 2 * i + 1))
    A("s_waitcnt lgkmcnt(0)"); lg.clear()
lg = Trk("lgkmcnt", 15); vm = Trk("vmcnt", 63)

E.raw(".globl %s\n.p2align 8\n.type %s,@function\n%s:" % (KN, KN, KN))
main_start = len(E.out)
A("s_cmp_ge_u32 s2, 256")
A("s_cbranch_scc1 L_end")
stamp()
A("s_load_dwordx8 s[40:47], s[0:1], 0")
A("s_load_dwordx4 s[48:51], s[0:1], 32")
A("s_load_dwordx2 s[100:101], s[0:1], 48")
A("v_lshrrev_b32 v%d, 6, v0" % T0)
A("v_and_b32 v%d, 63, v0" % vLANE)
A("v_readfirstlane_b32 s%d, v%d" % (sW, T0))
A("v_and_b32 v%d, 15, v0" % vP)
A("v_lshrrev_b32 v%d, 4, v%d" % (vG, vLANE))
A("s_and_b32 s%d, s2, 7" % sT0)
A("s_lshl_b32 s%d, s%d, 5" % (sT0, sT0))
A("s_lshr_b32 s%d, s2, 3" % sT1)
A("s_add_u32 s%d, s%d, s%d" % (sT0, sT0, sT1))
A("s_lshr_b32 s%d, s%d, 4" % (sTY, sT0))
A("s_and_b32 s%d, s%d, 15" % (sTX, sT0))
C("U task ids: kc = wg/12, wt = wg%12, ww = wt/3, t = wt%3 ; g = wave")
A("s_mul_i32 s60, s2, 43691"); A("s_lshr_b32 s60, s60, 19")
A("s_mul_i32 s61, s60, 12"); A("s_sub_u32 s61, s2, s61")
A("s_mul_i32 s62, s61, 21846"); A("s_lshr_b32 s62, s62, 16")
A("s_mul_i32 s63, s62, 3"); A("s_sub_u32 s63, s61, s63")
A("v_lshrrev_b32 v%d, 2, v%d" % (T1, vLANE))
A("v_and_b32 v%d, 3, v%d" % (T2, vLANE))
A("v_lshrrev_b32 v%d, 2, v%d" % (T3, T1)); A("v_and_b32 v%d, 3, v%d" % (T4, T1))
A("v_lshl_add_u32 v%d, v%d, 3, v%d" % (T3, T3, T4))
A("s_lshl_b32 s%d, s63, 2" % sT0)
A("v_add_u32 v%d, s%d, v%d" % (T3, sT0, T3))
A("v_add_u32 v%d, 32, v%d" % (T4, T1))
A("s_cmp_eq_u32 s63, 2"); A("s_cselect_b64 vcc, -1, 0")
A("v_cndmask_b32 v%d, v%d, v%d, vcc" % (T3, T3, T4))
A("s_mul_i32 s%d, s62, 96" % sT0)
A("s_mul_i32 s%d, s%d, %d" % (sT1, sW, 8 * 384))
A("s_add_u32 s%d, s%d, s%d" % (sT0, sT0, sT1))
A("v_lshlrev_b32 v%d, 1, v%d" % (T3, T3))
A("v_mul_u32_u24 v%d, 768, v%d" % (T4, T2))
A("v_add3_u32 v%d, v%d, v%d, s%d" % (vUL, T3, T4, sT0))
A("s_lshl_b32 s%d, s61, 10" % sT0); A("s_lshl_b32 s%d, s%d, 8" % (sT1, sW)); A("s_add_u32 s%d, s%d, s%d" % (sT0, sT0, sT1))
A("v_lshlrev_b32 v%d, 2, v%d" % (T3, vLANE))
A("v_add_u32 v%d, s%d, v%d" % (vUSo, sT0, T3))
A("s_mul_i32 s%d, s60, 12288" % sUT)
A("s_lshr_b32 s%d, s60, 1" % sT0); A("s_lshl_b32 s%d, s%d, 3" % (sT0, sT0)); A("s_and_b32 s%d, s60, 1" % sT1); A("s_lshl_b32 s%d, s%d, 1" % (sT1, sT1))
A("s_add_u32 s%d, s%d, s%d" % (sT0, sT0, sT1)); A("s_mul_i32 s%d, s%d, 12288" % (sUSB, sT0))
A("s_cmp_lt_u32 s2, 72")
A("s_cselect_b32 s%d, s%d, 0x%x" % (sUT, sUT, HUGE))
A("s_cselect_b32 s%d, s%d, 0x%x" % (sUSB, sUSB, HUGE))
C("w_lat staging: stages 0..3 at VB + w*12288 ; stages 4,5 at 12*RP + w*6144")
A("s_mul_i32 s%d, s%d, 12288" % (sRB, sW)); A("s_add_u32 s%d, s%d, %d" % (sRB, sRB, VB))
A("s_mul_i32 s%d, s%d, 6144" % (sRB2, sW)); A("s_add_u32 s%d, s%d, %d" % (sRB2, sRB2, 12 * RP))
A("s_mul_i32 s%d, s%d, 96" % (sT1, sW))
for n in range(3):
    A("v_add_u32 v%d, %d, v%d" % (T0, 64 * n, vLANE))
    A("v_mul_u32_u24 v%d, 10923, v%d" % (T1, T0))
    A("v_lshrrev_b32 v%d, 16, v%d" % (T1, T1))
    A("v_mul_u32_u24 v%d, 6, v%d" % (T2, T1))
    A("v_sub_u32 v%d, v%d, v%d" % (T2, T0, T2))
    A("v_mul_u32_u24 v%d, 384, v%d" % (T3, T1))
    A("v_lshl_add_u32 v%d, v%d, 4, v%d" % (T3, T2, T3))
    A("s_sub_u32 s%d, s%d, %d" % (sT2, sT1, 1024 * n))
    A("v_add_u32 v%d, s%d, v%d" % (vWD + n, sT2, T3))
A("s_waitcnt lgkmcnt(0)")
for (s, p, sz) in ((sWO, 46, SZ_WO), (sWL, 44, SZ_WL), (sCF, 40, SZ_CF), (sPC, 42, SZ_PC), (sU, 100, SZ_U), (sOUT, 48, SZ_OUT), (sDBG, 50, 256)):
    A("s_mov_b32 s%d, s%d" % (s, p)); A("s_mov_b32 s%d, s%d" % (s + 1, p + 1))
    A("s_mov_b32 s%d, %d" % (s + 2, sz)); A("s_mov_b32 s%d, 0x00020000" % (s + 3))
UG = lacc(8, 0)
units1 = []
for tap in range(9):
    for e in range(2):
        u = [("buffer_load_ushort v%d, v%d, s[%d:%d], s%d offen offset:%d" % (UG + 2 * tap + e, vUL, sWO, sWO + 3, sUT, 384 * e), "UG")]
        if e == 1 and tap < 8: u.append(("s_add_u32 s%d, s%d, 73728" % (sUT, sUT), None))
        units1.append(u)
for g in range(6):
    for n in range(3):
        u = []
        if n == 0:
            u.append(("s_mov_b32 s%d, %d" % (sDSO, g * 12288), None))
            u.append((("s_add_u32 s%d, s%d, %d" % (sT0, sRB, g * STG)) if g < 4 else ("s_add_u32 s%d, s%d, %d" % (sT0, sRB2, (g - 4) * STG)), None))
            u.append(("s_mov_b32 m0, s%d" % sT0, None)); u.append(("s_nop 0", None))
        u.append(("buffer_load_dwordx4 v%d, s[%d:%d], s%d offen offset:%d lds" % (vWD + n, sWL, sWL + 3, sDSO, 1024 * n), "WL"))
        units1.append(u)
_save = E.out; E.out = []
_t = (sT0, sT1, sT2); sT0, sT1, sT2 = 40, 41, 42
C("c_fine DMA lane offsets (pad lanes & lanes>=52 -> handled by exec mask)")
A("v_cmp_lt_u32 vcc, %d, v%d" % (CPP - 1, vLANE))
A("v_subrev_u32 v%d, %d, v%d" % (T0, CPP, vLANE))
A("s_nop 0")
A("v_cndmask_b32 v%d, v%d, v%d, vcc" % (T0, vLANE, T0))
A("v_lshlrev_b32 v%d, 4, v%d" % (T0, T0))
A("v_add_u32 v%d, 384, v%d" % (T1, T0))
A("v_cndmask_b32 v%d, v%d, v%d, vcc" % (vCFN, T0, T1))
A("v_mov_b32 v%d, 0x%x" % (T2, HUGE))
A("v_cndmask_b32 v%d, v%d, v%d, vcc" % (vCFL, T2, T0))
A("v_cndmask_b32 v%d, v%d, v%d, vcc" % (vCFR, T0, T2))
A("s_cmp_eq_u32 s%d, 0" % sTX)
A("s_cselect_b64 vcc, -1, 0")
A("s_cselect_b32 s%d, 384, 0" % sT3)
A("v_cndmask_b32 v%d, v%d, v%d, vcc" % (vCFL, vCFN, vCFL))
A("s_cmp_eq_u32 s%d, 15" % sTX)
A("s_cselect_b64 vcc, -1, 0")
A("s_nop 0")
A("v_cndmask_b32 v%d, v%d, v%d, vcc" % (vCFR, vCFN, vCFR))
A("s_mul_i32 s%d, s%d, 14" % (sCFB, sTY))
A("s_add_u32 s%d, s%d, s%d" % (sCFB, sCFB, sW))
A("s_mul_i32 s%d, s%d, 224" % (sCFB, sCFB))
A("s_mul_i32 s%d, s%d, 14" % (sT2, sTX))
A("s_add_u32 s%d, s%d, s%d" % (sCFB, sCFB, sT2))
A("s_sub_u32 s%d, s%d, 225" % (sCFB, sCFB))
A("s_mul_i32 s%d, s%d, 384" % (sCFB, sCFB))
A("s_mul_i32 s%d, s%d, %d" % (sCFL, sW, RP))
C("p_coarse lane offsets")
A("s_sub_u32 s%d, s%d, 1" % (sT2, sT2))
A("v_add_u32 v%d, s%d, v%d" % (T0, sT2, vP))
A("v_cmp_gt_u32 vcc, 224, v%d" % T0)
A("v_lshrrev_b32 v%d, 1, v%d" % (T0, T0))
A("v_mul_u32_u24 v%d, 384, v%d" % (T0, T0))
A("s_mul_i32 s%d, s%d, 96" % (sT2, sW))
A("v_add_u32 v%d, s%d, v%d" % (T0, sT2, T0))
A("v_lshl_add_u32 v%d, v%d, 4, v%d" % (T1, vG, T0))
A("v_lshlrev_b32 v%d, 3, v%d" % (T2, vG))
A("v_add3_u32 v%d, v%d, v%d, 64" % (T2, T0, T2))
A("v_mov_b32 v%d, 0x%x" % (T3, HUGE))
A("v_cndmask_b32 v%d, v%d, v%d, vcc" % (vPC4, T3, T1))
A("v_cndmask_b32 v%d, v%d, v%d, vcc" % (vPC2, T3, T2))
A("s_mul_i32 s%d, s%d, 7" % (sPCB, sTY))
A("s_sub_u32 s%d, s%d, 1" % (sPCB, sPCB))
A("s_mul_i32 s%d, s%d, %d" % (sPCB, sPCB, 112 * 384))

_m = ((1 << 24) - 1) | (((1 << 24) - 1) << CPP)
A("s_mov_b32 s46, 0x%x" % (_m & 0xFFFFFFFF)); A("s_mov_b32 s47, 0x%x" % (_m >> 32))
calc1 = E.out; E.out = _save; sT0, sT1, sT2 = _t
def cf_row(i):
    units = []
    for j in range(8):
        u = []
        if i == 0:
            u += [("s_add_u32 s%d, s%d, s%d" % (sT2, sTY, sW), None), ("s_cmp_eq_u32 s%d, 0" % sT2, None),
                  ("s_cselect_b32 s%d, 0x%x, s%d" % (sT2, HUGE, sCFB), None)]
            if j == 0: u.append(("s_add_u32 s%d, s%d, s%d" % (sT2, sT2, sT3), None))
            else: u.append(("s_add_u32 s%d, s%d, %d" % (sT2, sT2, j * 768), None))
        else:
            u.append(("s_add_u32 s%d, s%d, %d" % (sT2, sCFB, i * 4 * 224 * 384 + j * 768), None))
            if j == 0: u.append(("s_add_u32 s%d, s%d, s%d" % (sT2, sT2, sT3), None))
        u.append(("s_add_u32 s%d, s%d, %d" % (sT0, sCFL, i * 4 * RP + j * 2 * PP), None))
        u.append(("s_mov_b32 m0, s%d" % sT0, None))
        u.append(("s_mov_b64 exec, s[46:47]", None))
        u.append(("buffer_load_dwordx4 v%d, s[%d:%d], s%d offen lds" % (vCFL if j == 0 else (vCFR if j == 7 else vCFN), sCF, sCF + 3, sT2), "CF%d" % i))
        u.append(("s_mov_b64 exec, -1", None))
        units.append(u)
    return units
def pc_tile(j): return 0 if j == 0 else 2 * j - 1
def pc_load(j):
    b = lacc(pc_tile(j), 0)
    u = []
    if j == 0: u += [("s_cmp_eq_u32 s%d, 0" % sTY, None), ("s_cselect_b32 s%d, 0x%x, s%d" % (sT2, HUGE, sPCB), None)]
    else: u.append(("s_add_u32 s%d, s%d, %d" % (sT2, sPCB, j * 112 * 384), None))
    u.append(("buffer_load_dwordx4 v[%d:%d], v%d, s[%d:%d], s%d offen" % (b + 6, b + 9, vPC4, sPC, sPC + 3, sT2), "PC%d" % j))
    u.append(("buffer_load_dwordx2 v[%d:%d], v%d, s[%d:%d], s%d offen" % (b + 10, b + 11, vPC2, sPC, sPC + 3, sT2), "PC%d" % j))
    return [u]
def emit_units(units):
    for u in units:
        for x in u:
            A(x[0])
            if x[1]: vm.issue(x[1])
units2 = cf_row(0) + pc_load(0) + pc_load(1) + pc_load(2)
_save = E.out; E.out = []
sT0, sT1, sT2 = 40, 41, 42
C("address regs")
A("v_mul_u32_u24 v%d, %d, v%d" % (T0, PP, vP))
A("v_lshl_add_u32 v%d, v%d, 4, v%d" % (vLB, vG, T0))
A("v_add_u32 v%d, %d, v%d" % (vLB + 1, 8 * RP, vLB))
A("s_mul_i32 s%d, s%d, 96" % (sT2, sW))
A("v_add_u32 v%d, s%d, v%d" % (vMW4, sT2, vLB))
A("v_add_u32 v%d, %d, v%d" % (vMW4 + 1, 8 * RP, vMW4))
A("v_add_u32 v%d, s%d, v%d" % (T0, sT2, T0))
A("v_lshlrev_b32 v%d, 3, v%d" % (T2, vG))
A("v_add3_u32 v%d, v%d, v%d, 64" % (vMW2, T0, T2))
A("v_add_u32 v%d, %d, v%d" % (vMW2 + 1, 8 * RP, vMW2))
A("v_lshrrev_b32 v%d, 2, v%d" % (T0, vP))
A("v_and_b32 v%d, 3, v%d" % (T1, vP))
A("v_lshrrev_b32 v%d, 1, v%d" % (T2, vG))
A("v_and_b32 v%d, 1, v%d" % (T3, vG))
C("w_lat tr base (relative): 96*(8g + r) + 16cc  [tile0], +8 tile1, tile2: +64+8cc")
A("v_lshl_add_u32 v%d, v%d, 3, v%d" % (T6, vG, T0))
A("v_mul_u32_u24 v%d, 96, v%d" % (T6, T6))
A("v_lshl_add_u32 v%d, v%d, 4, v%d" % (vTRB, T1, T6))
A("v_lshlrev_b32 v%d, 3, v%d" % (T4, T1))
A("v_add3_u32 v%d, v%d, v%d, 64" % (vTRB + 1, T6, T4))
C("V-gen tr base")
A("v_lshl_add_u32 v%d, v%d, 2, v%d" % (T6, T3, T0))
A("v_mul_u32_u24 v%d, %d, v%d" % (T6, PP, T6))
A("v_mul_u32_u24 v%d, %d, v%d" % (T7, RP, T2))
A("v_add3_u32 v%d, v%d, v%d, v%d" % (T6, T6, T7, T4))
A("s_lshl_b32 s%d, s%d, 5" % (sT2, sW))
A("s_add_u32 s%d, s%d, %d" % (sT2, sT2, RP))
A("v_add_u32 v%d, s%d, v%d" % (vTA, sT2, T6))
A("v_add_u32 v%d, %d, v%d" % (vTAH, 8 * RP, vTA))
A("v_sub_u32 v%d, %d, v%d" % (vRHO, RP, T7))
A("v_and_b32 v%d, 7, v%d" % (T6, vP))
A("v_xor_b32 v%d, v%d, v%d" % (T7, vG, T6))
A("v_lshlrev_b32 v%d, 4, v%d" % (T7, T7))
A("v_lshl_add_u32 v%d, v%d, 7, v%d" % (T7, vP, T7))
A("v_add_u32 v%d, %d, v%d" % (vBR0, VB, T7))
A("v_xor_b32 v%d, 64, v%d" % (vBR1, vBR0))
A("v_cmp_gt_u32 vcc, 8, v%d" % vP)
A("v_mov_b32 v%d, 0x30000" % T9)
A("s_nop 0")
A("v_cndmask_b32 v14, v%d, v%d, vcc" % (T9, vBR0))
A("v_cndmask_b32 v15, v%d, v%d, vcc" % (T9, vBR1))
A("s_lshl_b32 s%d, s%d, 1" % (sT2, sW))
A("v_add_u32 v%d, s%d, v%d" % (T7, sT2, T2))
A("v_xor_b32 v%d, v%d, v%d" % (T7, T7, T6))
A("v_lshlrev_b32 v%d, 4, v%d" % (T7, T7))
A("v_lshl_add_u32 v%d, v%d, 7, v%d" % (T7, T6, T7))
A("v_lshl_add_u32 v%d, v%d, 3, v%d" % (T7, T3, T7))
A("v_lshrrev_b32 v%d, 3, v%d" % (T8, vP))
A("v_mul_u32_u24 v%d, 7168, v%d" % (T9, T8))
A("v_add_u32 v%d, v%d, v%d" % (T7, T7, T9))
A("v_add_u32 v%d, %d, v%d" % (vVW, VB, T7))
C("output staging: OW4 = (n>>3)*2RP + tx_*784 + 96w + 16G ; OW2 = ... + 64 + 8G ; RB = w*784 + lane*16 ; GO = tile base + w*768 + lane*16 (lane<48)")
vOW4, vOW2, vRB, vGO = 7, 8, 9, 10
A("v_mul_u32_u24 v%d, %d, v%d" % (T7, 2 * RP, T8))
A("v_mul_u32_u24 v%d, 784, v%d" % (T9, T6))
A("s_mul_i32 s%d, s%d, 96" % (sT2, sW))
A("v_add3_u32 v%d, v%d, v%d, s%d" % (T7, T7, T9, sT2))
A("v_lshl_add_u32 v%d, v%d, 4, v%d" % (vOW4, vG, T7))
A("v_lshl_add_u32 v%d, v%d, 3, v%d" % (vOW2, vG, T7))
A("v_add_u32 v%d, 64, v%d" % (vOW2, vOW2))
A("v_lshlrev_b32 v%d, 4, v%d" % (T7, vLANE))
A("s_mul_i32 s%d, s%d, 784" % (sT2, sW))
A("v_add_u32 v%d, s%d, v%d" % (vRB, sT2, T7))
A("s_mul_i32 s%d, s%d, %d" % (sT1, sTY, 14 * 224 * 384))
A("s_mul_i32 s%d, s%d, %d" % (sT2, sTX, 14 * 384))
A("s_add_u32 s%d, s%d, s%d" % (sT1, sT1, sT2))
A("s_mul_i32 s%d, s%d, 768" % (sT2, sW))
A("s_add_u32 s%d, s%d, s%d" % (sT1, sT1, sT2))
A("v_add_u32 v%d, s%d, v%d" % (vGO, sT1, T7))
A("v_cmp_gt_u32 vcc, 48, v%d" % vLANE)
A("v_mov_b32 v%d, 0x%x" % (T9, HUGE))
A("s_nop 0")
A("v_cndmask_b32 v%d, v%d, v%d, vcc" % (vGO, T9, vGO))
C("s45 = 3072 (second pair offset) or HUGE for wave 3")
A("s_cmp_eq_u32 s%d, 3" % sW); A("s_cselect_b32 s45, 0x%x, 3072" % HUGE) if False else None
A("s_mov_b32 s44, 12288"); A("s_mov_b32 s45, 3072"); A("s_cmp_eq_u32 s%d, 3" % sW); A("s_cselect_b32 s45, 0x%x, s45" % HUGE)
C("U stream voffset; flag store offset (tid==0 && wg<72 -> wg else HUGE); poll offset lane*4 (lane<18)")
A("v_lshlrev_b32 v%d, 4, v%d" % (T0, vLANE))
A("s_mul_i32 s%d, s%d, 3072" % (sT2, sW))
A("v_add_u32 v%d, s%d, v%d" % (vUO, sT2, T0))
A("v_cmp_eq_u32 vcc, 0, v0")
A("s_and_b32 s%d, s2, 3" % sT1); A("s_lshl_b32 s%d, s%d, 6" % (sT1, sT1)); A("s_lshr_b32 s%d, s2, 2" % sT2); A("s_add_u32 s%d, s%d, s%d" % (sT1, sT1, sT2))
A("s_cmp_lt_u32 s2, 72"); A("s_cselect_b32 s%d, s%d, 0x%x" % (sT2, sT1, HUGE))
A("v_mov_b32 v%d, s%d" % (T0, sT2))
A("v_cndmask_b32 v%d, v%d, v%d, vcc" % (vFLO, T9, T0))
C("T matrices")
A("v_lshlrev_b32 v%d, 2, v%d" % (T7, T3))
A("v_lshlrev_b32 v%d, 1, v%d" % (T9, T6))
A("v_sub_u32 v%d, v%d, v%d" % (T7, T7, T9))
A("v_cmp_eq_u32 vcc, 7, v%d" % T6)
A("v_add_u32 v%d, 64, v%d" % (T9, T7))
A("s_nop 0")
A("v_cndmask_b32 v%d, v%d, v%d, vcc" % (T7, T7, T9))
P1, M1 = 0x3F80, 0xBF80
tab = {0: ((0, P1, 2, M1), (1, P1, 2, P1)), 1: ((1, M1, 2, P1), (1, P1, 3, M1))}
A("v_cmp_eq_u32 s[60:61], 1, v%d" % T8)
for nt in range(2):
    (a0, va0, b0, vb0), (a1, va1, b1, vb1) = tab[nt]
    for (dst, x0, x1) in ((XA, a0, a1), (XB, va0, va1), (XC, b0, b1), (XD, vb0, vb1)):
        A("v_mov_b32 v%d, 0x%x" % (dst, x0))
        A("v_mov_b32 v%d, 0x%x" % (XE, x1))
        A("v_cndmask_b32 v%d, v%d, v%d, s[60:61]" % (dst, dst, XE))
    for ep in range(4):
        for hh in range(2):
            e = 2 * ep + hh
            off = 8 * (e >> 2) + (e & 3)
            dst = T0 if hh == 0 else T1
            A("v_add_u32 v%d, %d, v%d" % (T9, off, T7))
            A("v_cmp_eq_u32 vcc, v%d, v%d" % (T9, XA))
            A("v_cmp_eq_u32 s[62:63], v%d, v%d" % (T9, XC))
            A("s_nop 0")
            A("v_cndmask_b32 v%d, 0, v%d, vcc" % (dst, XB))
            A("v_cndmask_b32 v%d, v%d, v%d, s[62:63]" % (dst, dst, XD))
        A("v_lshl_or_b32 v%d, v%d, 16, v%d" % (16 + 4 * nt + ep, T1, T0))
calc2 = E.out; E.out = _save; sT0, sT1, sT2 = _t
def interleave(units, calc, per):
    calc = [c for c in calc if not c.strip().startswith(";")]
    ci = 0
    for u in units:
        for x in u:
            A(x[0])
            if x[1]: vm.issue(x[1])
        k = 0
        while ci < len(calc) and (k < per or calc[ci].strip().startswith("s_cselect") or calc[ci - 1].strip().startswith("s_cmp")):
            E.out.append(calc[ci]); ci += 1; k += 1
    return calc[ci:]
rest = interleave(units1[:12], calc1, 4)
assert not rest, len(rest)
rest = interleave(units1[12:] + units2, calc2, 5)
E.out += rest
stamp(2)
stamp(2)
C("U task compute")
vm.need("UG", A)
stamp(2)
for i in range(18): A("v_lshlrev_b32 v%d, 16, v%d" % (UG + i, UG + i))
RRg = UG + 18; TTg = UG + 24; URg = UG + 26; ORg = UG + 58
for e in range(2):
    g = lambda a, b: UG + (3 * a + b) * 2 + e
    R = {}
    for b in range(3):
        R[(0, b)] = g(0, b); R[(3, b)] = g(2, b)
        A("v_add_f32 v%d, v%d, v%d" % (TTg, g(0, b), g(2, b)))
        A("v_mul_f32 v%d, 0.5, v%d" % (TTg, TTg))
        A("v_fma_f32 v%d, 0.5, v%d, v%d" % (RRg + b, g(1, b), TTg)); R[(1, b)] = RRg + b
        A("v_fma_f32 v%d, -0.5, v%d, v%d" % (RRg + 3 + b, g(1, b), TTg)); R[(2, b)] = RRg + 3 + b
    ub = URg + 16 * e
    for i in range(4):
        A("v_mov_b32 v%d, v%d" % (ub + 4 * i + 0, R[(i, 0)]))
        A("v_mov_b32 v%d, v%d" % (ub + 4 * i + 3, R[(i, 2)]))
        A("v_add_f32 v%d, v%d, v%d" % (TTg, R[(i, 0)], R[(i, 2)]))
        A("v_mul_f32 v%d, 0.5, v%d" % (TTg, TTg))
        A("v_fma_f32 v%d, 0.5, v%d, v%d" % (ub + 4 * i + 1, R[(i, 1)], TTg))
        A("v_fma_f32 v%d, -0.5, v%d, v%d" % (ub + 4 * i + 2, R[(i, 1)], TTg))
for i in range(4):
    for j in range(4):
        n_ = "-" if i == 0 else ""
        p, pidx = upos(i, j)
        o = ORg + 4 * i + j
        A("v_cvt_pk_bf16_f32 v%d, %sv%d, %sv%d" % (o, n_, URg + 4 * i + j, n_, URg + 16 + 4 * i + j))
        A("s_add_u32 s%d, s%d, %d" % (sT2, sUSB, ugam(p, 0, 0, pidx) * 12288))
        A("buffer_store_dword v%d, v%d, s[%d:%d], s%d offen sc0 sc1" % (o, vUSo, sU, sU + 3, sT2)); vm.issue("UST")
VAR = os.environ.get("VAR", "C")
emit_units(cf_row(1)); emit_units(pc_load(3) + pc_load(4))
if VAR == "A": emit_units(cf_row(2)); emit_units(pc_load(5) + pc_load(6))
stamp(2)
C("w_lat frags -> a0..a71")
vm.need("WL", A)
A("v_add_u32 v%d, s%d, v%d" % (T0, sRB, vTRB)); A("v_add_u32 v%d, s%d, v%d" % (T1, sRB, vTRB + 1))
A("v_add_u32 v%d, s%d, v%d" % (T2, sRB2, vTRB)); A("v_add_u32 v%d, s%d, v%d" % (T3, sRB2, vTRB + 1))
for kc in range(6):
    for t in range(3):
        for h in range(2):
            a = aWL + (kc * 3 + t) * 4 + 2 * h
            base = (T0 if t < 2 else T1) if kc < 4 else (T2 if t < 2 else T3)
            off = (kc if kc < 4 else kc - 4) * STG + 384 * h + (8 if t == 1 else 0)
            A("ds_read_b64_tr_b16 a[%d:%d], v%d offset:%d" % (a, a + 1, base, off)); lg.issue("WLF")
def unpack_rows(js):
    ops = []
    for j in js:
        b = lacc(pc_tile(j), 0)
        dsts = [b] if j in (0, 8) else [lacc(2 * j, 0), b]
        for dbase in dsts:
            for i in range(6):
                ops.append("v_lshlrev_b32 v%d, 16, v%d" % (dbase + 2 * i, b + 6 + i))
                ops.append("v_and_b32 v%d, 0xffff0000, v%d" % (dbase + 2 * i + 1, b + 6 + i))
    return ops
def mwrite(r):
    b = lacc(r, 0)
    ops = [("x", "v_cvt_pk_bf16_f32 v%d, v%d, v%d" % (b + i, b + 2 * i, b + 2 * i + 1), None) for i in range(6)]
    ops.append(("lg", "ds_write_b128 v%d, v[%d:%d] offset:%d" % (vMW4 + (r >> 3), b, b + 3, (r & 7) * RP), "MW"))
    ops.append(("lg", "ds_write_b64 v%d, v[%d:%d] offset:%d" % (vMW2 + (r >> 3), b + 4, b + 5, (r & 7) * RP), "MW"))
    return ops
def pread(r, kc):
    a = aPF + ((r & 1) * 6 + kc) * 4
    return ("lg", "ds_read_b128 a[%d:%d], v%d offset:%d" % (a, a + 3, vLB + (r >> 3), (r & 7) * RP + 64 * kc), "P%d_%d" % (r, kc))

GORD = [(0, 0), (0, 1), (1, 0), (1, 1), (0, 2), (0, 3), (1, 2), (1, 3)]
groups = []
for n in range(12):
    for (ks, pidx) in GORD: groups.append((n, n // 3, n % 3, ks, pidx))
def uload(q, t):
    n, p, kk, ks, pidx = groups[q]
    a = aUF + 12 * (q % 4) + 4 * t
    r = []
    assert ugam(p, kk, ks, pidx) == q
    if t == 0: r.append((("s_mov_b32 s%d, 0" % sUS) if q == 0 else ("s_add_u32 s%d, s%d, s44" % (sUS, sUS)), None))
    r.append(("buffer_load_dwordx4 a[%d:%d], v%d, s[%d:%d], s%d offen offset:%d" % (a, a + 3, vUO, sU, sU + 3, sUS, 1024 * t), "U%d_%d" % (q, t)))
    return r

PCJ = {0: [0, 1, 2], 1: [3, 4], 2: [5, 6], 3: [7, 8]}
for k in range(4):
    need = {"CF%d" % k} | {"PC%d" % j for j in PCJ[k]}
    FK = 1 if VAR == "B" else 0
    if k == FK: need |= {"UST"}
    if k == 3: need |= {"POLL"}
    vm.need(need, A)
    stamp(2)
    if k == 3:
        C("check flags (wave 0 only); slow path polls again")
        A("s_cmp_lg_u32 s%d, 0" % sW)
        A("s_cbranch_scc1 L_polled")
        A("v_cmp_gt_u32 vcc, 4, v%d" % vP)
        A("v_mov_b32 v%d, 0x01010101" % T4)
        A("v_cmp_eq_u32 s[60:61], 4, v%d" % vP)
        A("v_cndmask_b32 v%d, 0, v%d, vcc" % (T4, T4))
        A("v_mov_b32 v%d, 0x0101" % T3)
        A("v_cndmask_b32 v%d, v%d, v%d, s[60:61]" % (T4, T4, T3))
        L("L_poll")
        A("v_cmp_ne_u32 vcc, v%d, v%d" % (T4, vFLG))
        A("s_nop 1")
        A("s_or_b32 s60, vcc_lo, vcc_hi")
        A("s_cbranch_scc0 L_polled")
        A("s_sleep 20")
        A("buffer_load_dword v%d, v%d, s[%d:%d], 0 offen sc0 sc1" % (vFLG, T5, sDBG, sDBG + 3))
        A("s_waitcnt vmcnt(0)")
        A("s_branch L_poll")
        L("L_polled")
    if k == 0:
        for x in unpack_rows([0]): A(x)
    lg.drain(A)
    A("s_barrier")
    stamp(2)
    units = []
    fu = [("v_mov_b32 v%d, 1" % T4, None), ("buffer_store_byte v%d, v%d, s[%d:%d], 0 offen sc0 sc1" % (T4, vFLO, sDBG, sDBG + 3), "FLAG")]
    FLAST = int(os.environ.get("FLAST", "0"))
    if k == FK and not FLAST: units.append(fu)
    if k == 0 and VAR != "A": units += cf_row(2) + pc_load(5) + pc_load(6)
    if k == 0: units += cf_row(3) + pc_load(7) + pc_load(8)
    if k == FK and FLAST: units.append(fu)
    if k == 2:
        units.append([("v_lshlrev_b32 v%d, 2, v0" % (T5,), None),
                      ("buffer_load_dword v%d, v%d, s[%d:%d], 0 offen sc0 sc1" % (vFLG, T5, sDBG, sDBG + 3), "POLL")])
    if k == 3:
        w = [("s_lshr_b32 s%d, s2, 3" % sT1, None), ("s_mul_i32 s%d, s%d, 36864" % (sT1, sT1), None)]
        units.append(w)
        for i in range(3):
            for n in range(3):
                u = [("buffer_load_dwordx4 a[%d:%d], v%d, s[%d:%d], s%d offen offset:%d" % (128 + 12 * i + 4 * n, 131 + 12 * i + 4 * n, vUO, sU, sU + 3, sT1, 1024 * n), "WARM")]
                if n == 2 and i < 2: u.append(("s_add_u32 s%d, s%d, 12288" % (sT1, sT1), None))
                units.append(u)

    q1 = [(x, None, 4, 4 * k + 1) for x in unpack_rows([2 * k + 1])]
    q2 = [(x, None, 4, 4 * k + 3) for x in unpack_rows([2 * k + 2])]
    mw = []
    if k > 0:
        for r in range(4 * k - 4, 4 * k):
            for x in mwrite(r): mw.append((x[1], x[2], 8 if x[2] else 4, 99))
    zz = [("v_mov_b32 v%d, 0" % (ACC + i), None, 4, 99) for i in range(48)] if k == 3 else []
    sq = q1 + mw[:16] + q2 + mw[16:] + zz
    for kc in range(6):
        x = pread(4 * k, kc); A(x[1]); lg.issue(x[2])
    for _ in range(12):
        x = sq.pop(0); A(x[0])
    if k == 0: lg.need("WLF", A)
    for r in range(4 * k, 4 * k + 4):
        fl = False
        while any(x[3] <= r for x in sq):
            x = sq.pop(0); A(x[0]); fl = True
            if x[1]: lg.issue(x[1])
        if fl: A("s_nop 1")
        lg.need({"P%d_%d" % (r, kc) for kc in range(3)}, A)
        for kc in range(6):
            for d in range(3):
                a = lacc(r, d); w = aWL + (kc * 3 + d) * 4; p = aPF + ((r & 1) * 6 + kc) * 4
                A("v_mfma_f32_16x16x32_bf16 v[%d:%d], a[%d:%d], a[%d:%d], v[%d:%d]" % (a, a + 3, w, w + 3, p, p + 3, a, a + 3))
                bud = 8
                if d == 0 and r < 4 * k + 3:
                    x = pread(r + 1, kc); A(x[1]); lg.issue(x[2]); bud -= 4
                if d == 2 and kc == 2:
                    n0 = len(E.out); lg.need({"P%d_%d" % (r, c2) for c2 in range(3, 6)}, A)
                    if len(E.out) > n0: bud -= 4
                if d == 2 and kc == 5: bud -= 4
                if d == 1 and units:
                    for x in units.pop(0):
                        A(x[0])
                        if x[1]: vm.issue(x[1])
                    bud = 0
                while sq and sq[0][2] <= bud:
                    x = sq.pop(0); A(x[0]); bud -= x[2]
                    if x[1]: lg.issue(x[1])
    for x in sq:
        A(x[0])
        if x[1]: lg.issue(x[1])
    mw = []
    for u in units:
        for x in u:
            A(x[0])
            if x[1]: vm.issue(x[1])
    assert not mw
lg.drain(A)
A("s_barrier")
stamp()
A("s_nop 4")
for r in range(12, 16):
    for x in mwrite(r): A(x[1])
A("s_waitcnt lgkmcnt(0)")
A("s_barrier")
stamp()


aVA = aT + 8
aSV = 0
aOR = 96
sPAR, sKK, sPASS, sD1, sSPC = 60, 61, 62, 63, 40
def out_block():
    o = ["v_add_u32 v24, %d, v%d" % (8 * RP, vRB)]
    for k in range(14):
        rho = k >> 1; pr = k & 1
        off = 2 * rho * RP + pr * 4 * 784; base = vRB
        if rho >= 4: off -= 8 * RP; base = 24
        o.append("ds_read_b128 a[%d:%d], v%d offset:%d" % (aOR + 4 * k, aOR + 4 * k + 3, base, off))
    for k in range(14):
        rho = k >> 1; pr = k & 1
        o.append(("s_mov_b32 s%d, %d" % (sT0, 2 * rho * 224 * 384)) if pr == 0 else ("s_add_u32 s%d, s%d, s45" % (sT0, sT0)))
        o.append("s_waitcnt lgkmcnt(%d)" % (13 - k))
        o.append("buffer_store_dwordx4 a[%d:%d], v%d, s[%d:%d], s%d offen" % (aOR + 4 * k, aOR + 4 * k + 3, vGO, sOUT, sOUT + 3, sT0))
    o += ["s_cmp_eq_u32 s%d, 3" % sKK, "s_cbranch_scc1 L_fin"]
    return o
def acc(j, mt, t): return ACC + ((j * 4 + mt) * 3 + t) * 4
def pk(dst, a, b, neg=False):
    return "v_pk_add_f32 v[%d:%d], v[%d:%d], v[%d:%d]%s" % (dst, dst + 1, a, a + 1, b, b + 1, " neg_lo:[0,1] neg_hi:[0,1]" if neg else "")
def vgen_tr(k):
    x = aVA + 4 * (k & 1); base = vTA if k < 4 else vTAH
    return [("ds_read_b64_tr_b16 a[%d:%d], v%d offset:%d" % (x + 2 * h, x + 2 * h + 1, base, (k & 3) * 2 * RP + h * 8 * PP), "VA%d" % (k & 1)) for h in range(2)]
def vgen_mfma(k, which):
    x = aVA + 4 * (k & 1); tt = 16 + 4 * which; d = vVT + 4 * which
    return "v_mfma_f32_16x16x32_bf16 v[%d:%d], a[%d:%d], v[%d:%d], 0" % (d, d + 3, x, x + 3, tt, tt + 3)
def vgen_out(k, which):
    d = vVT + 4 * which
    return [("v_cvt_pk_bf16_f32 v%d, v%d, v%d" % (d, d, d + 1), None), ("v_cvt_pk_bf16_f32 v%d, v%d, v%d" % (d + 1, d + 2, d + 3), None),
            ("ds_write_b64 v%d, v[%d:%d] offset:%d" % (vVW, d, d + 1, which * 14336 + k * 1024), "VW")]
def bread(gi, mt):
    ks, pidx = GORD[gi]
    b = vBF + 16 * (gi & 1) + 4 * mt
    reg = (15 if ks else 14) if mt == 3 else (vBR1 if ks else vBR0)
    return ("ds_read_b128 v[%d:%d], v%d offset:%d" % (b, b + 3, reg, pidx * 7168 + mt * 2048), "B%d_%d" % (gi, mt))
def uld(gi, t):
    a = aUF + 12 * (gi % 4) + 4 * t
    return ("buffer_load_dwordx4 a[%d:%d], v%d, s[%d:%d], s%d offen offset:%d" % (a, a + 3, vUO, sU, sU + 3, sUS, 1024 * t), "U%d_%d" % (gi % 8, t))

C("V-gen chunk 0 (pipelined) + zero tiles j=3 + first U loads")
ul0 = []
for q in range(4):
    for t in range(3): ul0.append(uload(q, t))
def pop_ul():
    if ul0:
        for x in ul0.pop(0):
            A(x[0])
            if x[1]: vm.issue(x[1])
for k in range(7):
    base = vTA if k < 4 else vTAH
    for h in range(2):
        A("ds_read_b64_tr_b16 a[%d:%d], v%d offset:%d" % (96 + 4 * k + 2 * h, 97 + 4 * k + 2 * h, base, (k & 3) * 2 * RP + h * 8 * PP)); lg.issue("V0_%d" % k)
zq = ["v_mov_b32 v%d, 0" % (acc(3, 0, 0) + i) for i in range(48)]
for i in range(8): A(zq.pop(0))
dtmp = lambda k, w2: acc(1, 0, 0) + (2 * k + w2) * 4
for k in range(7):
    lg.need("V0_%d" % k, A)
    for w2 in range(2):
        d = dtmp(k, w2)
        A("v_mfma_f32_16x16x32_bf16 v[%d:%d], a[%d:%d], v[%d:%d], 0" % (d, d + 3, 96 + 4 * k, 99 + 4 * k, 16 + 4 * w2, 19 + 4 * w2))
        A(zq.pop(0)); A(zq.pop(0))
for k in range(7):
    for w2 in range(2):
        d = dtmp(k, w2)
        A("v_cvt_pk_bf16_f32 v%d, v%d, v%d" % (d, d, d + 1)); A("v_cvt_pk_bf16_f32 v%d, v%d, v%d" % (d + 1, d + 2, d + 3))
        A("ds_write_b64 v%d, v[%d:%d] offset:%d" % (vVW, d, d + 1, w2 * 14336 + k * 1024)); lg.issue("VW")
        if zq: A(zq.pop(0))
        pop_ul()
assert not zq and not ul0
A("v_add_u32 v%d, 128, v%d" % (vTA, vTA)); A("v_add_u32 v%d, 128, v%d" % (vTAH, vTAH))
A("v_add_u32 v%d, %d, v%d" % (vVW, VS, vVW))
for x in vgen_tr(0): A(x[0]); lg.issue(x[1])
A("s_mov_b32 s%d, %d" % (sPAR, VS)); A("s_mov_b32 s%d, 0" % sPASS)
lg.drain(A)
A("s_barrier")
stamp()
for mt in range(4):
    x = bread(0, mt); A(x[0]); lg.issue(x[1])
C("all 12 first loads are waited here once so that the loop's counted waits are conservative")

def body(emit, first, lgt, vmt, name):
    for gi in range(8):
        ks, pidx = GORD[gi]
        vg = gi < 7
        seq = ["m0", "m1", "m2", "v0", "m3", "v1", "m4", "m5", "m6", "m7", "m8", "m9", "m10", "m11"] if vg else ["m%d" % i for i in range(12)]
        fill = {k: [] for k in seq}
        fill["m0"].append(("vm",) + uld(gi + 3, 2))
        R = [("lg",) + bread((gi + 1) % 8, mt) for mt in range(4)]
        S = ("x", "s_add_u32 s%d, s%d, s44" % (sUS, sUS), None)
        L0 = ("vm",) + uld(gi + 4, 0); L1 = ("vm",) + uld(gi + 4, 1)
        if vg:
            o0 = vgen_out(gi, 0); o1 = vgen_out(gi, 1)
            T = [("lg",) + x for x in vgen_tr(gi + 1)] if gi < 6 else [("x", "s_nop 0", None), ("x", "s_nop 0", None)]
            fill["m1"] += [R[0], S]; fill["m2"].append(R[1]); fill["v0"].append(R[2]); fill["m3"].append(R[3])
            fill["v1"].append(L0)
            fill["m4"].append(T[0]); fill["m5"].append(T[1])
            fill["m5"].append(("x",) + o0[0]); fill["m6"].append(("x",) + o0[1]); fill["m6"].append(("x",) + o1[0])
            fill["m7"].append(("lg",) + o0[2]); fill["m8"].append(("x",) + o1[1])
            fill["m9"].append(L1)
            fill["m10"].append(("lg",) + o1[2])
        else:
            va = lambda r, sr: ("x", "v_add_u32 v%d, s%d, v%d" % (r, sr, r), None)
            fill["m1"] += [S, va(vBR0, sPAR)]
            fill["m2"] += [("bar",)]
            fill["m3"].append(L0)
            fill["m4"] += [R[0], va(14, sPAR)]
            fill["m5"] += [R[1], va(vBR1, sPAR)]
            fill["m6"] += [R[2], va(15, sPAR)]
            fill["m7"] += [R[3], ("x", "v_subrev_u32 v%d, s%d, v%d" % (vVW, sPAR, vVW), None)]
            fill["m8"].append(L1)
            fill["m9"] += [("hook",)]
            T = [("lg",) + x for x in vgen_tr(0)]
            fill["m10"] += [T[0], ("x", "s_sub_u32 s%d, 0, s%d" % (sPAR, sPAR), None)]
            fill["m11"] += [T[1]]
        ws_ = []
        vmt.need({"U%d_%d" % (gi, t) for t in range(3)}, ws_.append)
        lgt.need({"B%d_%d" % (gi, mt) for mt in range(4)} | ({"VA%d" % (gi & 1)} if vg else set()), ws_.append)
        if ws_: emit("s_waitcnt " + " ".join(x.split()[1] for x in ws_))
        for k in seq:
            if k[0] == "m":
                i = int(k[1:]); t = i // 4; mt = i % 4
                d = acc(pidx, mt, t); u = aUF + 12 * (gi % 4) + 4 * t; b = vBF + 16 * (gi & 1) + 4 * mt
                z = first and ks == 0 and pidx in (1, 2)
                emit("v_mfma_f32_16x16x32_bf16 v[%d:%d], a[%d:%d], v[%d:%d], %s" % (d, d + 3, u, u + 3, b, b + 3, "0" if z else "v[%d:%d]" % (d, d + 3)))
            else:
                emit(vgen_mfma(gi, int(k[1])))
            for f in fill[k]:
                if f[0] == "bar": lgt.drain(emit); emit("s_barrier"); continue
                if f[0] == "hook":
                    if first:
                        emit("v_add_u32 v%d, 128, v%d" % (vTA, vTA)); emit("v_add_u32 v%d, 128, v%d" % (vTAH, vTAH))
                        emit("s_cmp_eq_u32 s%d, 3" % sPASS); emit("s_cbranch_scc0 L_out0_ret")
                        emit("@L_out0")
                        for x in out_block(): emit(x)
                        emit("@L_out0_ret")
                    else:
                        emit("v_add_u32 v%d, s%d, v%d" % (vTA, sD1, vTA)); emit("v_add_u32 v%d, s%d, v%d" % (vTAH, sD1, vTAH))
                        emit("s_cmp_eq_u32 s%d, 0" % sSPC); emit("s_cbranch_scc1 L_special_ret")
                        emit("s_cmp_eq_u32 s%d, 2" % sSPC); emit("s_cbranch_scc1 L_sp2")
                        emit("v_cmp_ne_u32 vcc, 0, v%d" % vRHO)
                        emit("v_mov_b32 v24, 0x80008000")
                        emit("s_nop 0")
                        emit("v_cndmask_b32 v24, 0, v24, vcc")
                        for i in range(8): emit("v_xor_b32 v%d, v%d, v24" % (16 + i, 16 + i))
                        emit("s_branch L_special_ret")
                        emit("@L_sp2")
                        emit("v_sub_u32 v%d, v%d, v%d" % (vTA, vTA, vRHO)); emit("v_sub_u32 v%d, v%d, v%d" % (vTAH, vTAH, vRHO))
                        emit("@L_special_ret")
                        emit("s_mov_b32 s%d, 128" % sD1); emit("s_mov_b32 s%d, 0" % sSPC)
                    continue
                emit(f[1])
                if f[2]: (lgt if f[0] == "lg" else vmt).issue(f[2])

lgt = Trk("lgkmcnt", 15); vmt = Trk("vmcnt", 63)
tmp = []
body(tmp.append, False, lgt, vmt, "x"); body(tmp.append, False, lgt, vmt, "x")
b0 = []; body(b0.append, True, lgt, vmt, "b0")
b1 = []; body(b1.append, False, lgt, vmt, "b1")
b2 = []; body(b2.append, False, lgt, vmt, "b1")
assert b1 == b2
def emit_body(b):
    for x in b:
        if x.startswith("@"): L(x[1:])
        else: A(x)
C("entering loop: the first group's L2 load (group 3 frag 2) is redundant on entry; sUS must point at group 3")
A("s_waitcnt vmcnt(0)")
def pstamp(base):
    if not (STAMPS and CH == 4): return
    A("%s s[42:43]" % ("s_memrealtime" if STAMPS >= 2 else "s_memtime")); A("s_waitcnt lgkmcnt(0)")
    for p in range(4):
        A("s_cmp_eq_u32 s%d, %d" % (sPASS, p))
        A("s_cselect_b32 s%d, s42, s%d" % (sSTAMP + 2 * (base + 2 * p), sSTAMP + 2 * (base + 2 * p)))
        A("s_cselect_b32 s%d, s43, s%d" % (sSTAMP + 2 * (base + 2 * p) + 1, sSTAMP + 2 * (base + 2 * p) + 1))
PB = nst[0]
if STAMPS and CH == 4: nst[0] += 8
L("L_pass")
pstamp(PB)
A("s_mov_b32 s%d, 0" % sKK)
emit_body(b0)
A("s_mov_b32 s%d, 1" % sKK)
A("s_cmp_eq_u32 s%d, 2" % sPASS); A("s_cselect_b32 s%d, %d, -256" % (sD1, RP - 256)) if False else None
A("s_mov_b32 s%d, -256" % sD1); A("s_cmp_eq_u32 s%d, 2" % sPASS); A("s_cselect_b32 s%d, %d, s%d" % (sD1, RP - 256, sD1))
A("s_add_u32 s%d, s%d, 1" % (sSPC, sPASS)); A("s_cmp_lt_u32 s%d, 2" % sPASS); A("s_cselect_b32 s%d, s%d, 0" % (sSPC, sSPC))
L("L_body")
emit_body(b1)
A("s_add_u32 s%d, s%d, 1" % (sKK, sKK))
A("s_cmp_lt_u32 s%d, 3" % sKK)
A("s_cbranch_scc1 L_body")
pstamp(PB + 1)
C("---- pass end")
kept = [acc(0, 0, 0) + i for i in range(48)] + [acc(3, 0, 0) + i for i in range(48)]
def wt_pair(tl):
    o = []
    Z = [[acc(j, mt, t) for j in range(4)] for (mt, t) in tl]
    for z in Z:
        for h in (0, 2): o.append(pk(z[3] + h, z[3] + h, z[2] + h))
    for z in Z:
        for h in (0, 2): o.append(pk(z[2] + h, z[1] + h, z[2] + h))
    for z in Z:
        for h in (0, 2): o.append(pk(z[3] + h, z[3] + h, z[1] + h, True))
    for z in Z:
        for h in (0, 2): o.append(pk(z[0] + h, z[0] + h, z[2] + h))
    return o
A("s_cmp_ge_u32 s%d, 2" % sPASS); A("s_cbranch_scc1 L_e2")
A("s_nop 2")
for mt in range(4):
    for x in wt_pair([(mt, t) for t in range(3)]): A(x)
A("s_cmp_eq_u32 s%d, 1" % sPASS); A("s_cbranch_scc1 L_e1")
C("E0: save R1")
for i, v in enumerate(kept): A("v_accvgpr_write_b32 a%d, v%d" % (aSV + i, v))
A("s_branch L_next")
L("L_e1")
C("E1: D = 2*R1 - S   (8 regs per step, in-place temps, software pipelined)")
E1T = acc(1, 0, 0)
def rd8(i): return ["v_accvgpr_read_b32 v%d, a%d" % (E1T + 8 * ((i // 8) & 1) + r, aSV + i + r) for r in range(8)]
for x in rd8(0): A(x)
for i in range(0, 96, 8):
    x = E1T + 8 * ((i // 8) & 1)
    for h in (0, 2, 4, 6):
        A("v_pk_fma_f32 v[%d:%d], v[%d:%d], 2.0, v[%d:%d] op_sel_hi:[1,0,1] neg_lo:[0,0,1] neg_hi:[0,0,1]" % (x + h, x + h + 1, x + h, x + h + 1, kept[i] + h, kept[i] + h + 1))
    if i + 8 < 96:
        for y in rd8(i + 8): A(y)
    for r in range(8): A("v_accvgpr_write_b32 a%d, v%d" % (aSV + i + r, x + r))
A("s_branch L_next")
L("L_e2")
C("E2/E3: fused W transform + pack + stage to LDS; packed data goes into dead tiles j=1 (b=0) / j=2 (b=1)")
A("v_add_u32 v28, %d, v%d" % (8 * RP, vOW4)); A("v_add_u32 v29, %d, v%d" % (8 * RP, vOW2))
A("s_nop 0")
pend = []
for mt in range(4):
    va_ = wt_pair([(mt, t) for t in range(3)]); wr = []
    for bb in range(2):
        ng = "-" if bb else ""; jj = 3 if bb else 0
        dst = acc(1 + bb, mt, 0)
        for t in range(3):
            z = acc(jj, mt, t)
            va_.append("v_cvt_pk_bf16_f32 v%d, %sv%d, %sv%d" % (dst + 2 * t, ng, z, ng, z + 1))
            va_.append("v_cvt_pk_bf16_f32 v%d, %sv%d, %sv%d" % (dst + 2 * t + 1, ng, z + 2, ng, z + 3))
        o = (mt & 1) * 4 * RP + 384 * bb
        wr.append("ds_write_b128 v%d, v[%d:%d] offset:%d" % (28 if mt >= 2 else vOW4, dst, dst + 3, o))
        wr.append("ds_write_b64 v%d, v[%d:%d] offset:%d" % (29 if mt >= 2 else vOW2, dst + 4, dst + 5, o))
    for i, x in enumerate(va_):
        A(x)
        if pend and i % 9 == 4: A(pend.pop(0))
    pend = wr
for x in pend: A(x)
A("s_cmp_eq_u32 s%d, 3" % sPASS); A("s_cbranch_scc1 L_tail")
for i, v in enumerate(kept): A("v_accvgpr_read_b32 v%d, a%d" % (v, aSV + i))
A("v_add_u32 v%d, %d, v%d" % (vOW4, RP, vOW4)); A("v_add_u32 v%d, %d, v%d" % (vOW2, RP, vOW2))
L("L_next")
A("s_add_u32 s%d, s%d, 1" % (sPASS, sPASS))
A("s_branch L_pass")

L("L_tail")
stamp()
A("s_waitcnt lgkmcnt(0)")
A("s_barrier")
A("v_add_u32 v%d, %d, v%d" % (vRB, RP, vRB))
A("v_add_u32 v%d, %d, v%d" % (vGO, 224 * 384, vGO))
A("s_branch L_out0")
L("L_fin")
if STAMPS:
    A("s_waitcnt vmcnt(0)")
    stamp()
    n = nst[0]
    if os.environ.get("DIAG"):
        i, j, K = [int(x) for x in os.environ["DIAG"].split(",")]
        A("s_sub_u32 s40, s%d, s%d" % (sSTAMP + 2 * j, sSTAMP + 2 * i))
        A("s_mul_i32 s40, s40, %d" % K)
        A("s_add_u32 s40, s40, s%d" % (sSTAMP + 2 * (n - 1)))
        L("L_diag")
        A("s_memrealtime s[42:43]"); A("s_waitcnt lgkmcnt(0)")
        A("s_sub_u32 s41, s42, s40"); A("s_cmp_lt_i32 s41, 0"); A("s_cbranch_scc1 L_diag")
        A("s_endpgm")
    sWS = 24; A("s_mov_b32 s%d, s100" % sWS); A("s_mov_b32 s%d, s101" % (sWS + 1)); A("s_mov_b32 s%d, 0x10000000" % (sWS + 2)); A("s_mov_b32 s%d, 0x00020000" % (sWS + 3))
    A("s_lshl_b32 s%d, s2, 2" % sT0)
    A("s_add_u32 s%d, s%d, s%d" % (sT0, sT0, sW))
    A("s_mul_i32 s%d, s%d, %d" % (sT0, sT0, 8 * n))
    A("s_add_u32 s%d, s%d, 0x1000000" % (sT0, sT0))
    A("v_mov_b32 v16, s%d" % sT0)
    A("v_and_b32 v17, 63, v0")
    A("v_cmp_eq_u32 vcc, 0, v17")
    A("s_and_saveexec_b64 s[40:41], vcc")
    for i in range(n):
        A("v_mov_b32 v18, s%d" % (sSTAMP + 2 * i))
        A("v_mov_b32 v19, s%d" % (sSTAMP + 2 * i + 1))
        A("buffer_store_dwordx2 v[18:19], v16, s[%d:%d], 0 offen offset:%d" % (sWS, sWS + 3, 8 * i))
        A("s_nop 1")
    sys.stderr.write("nstamps=%d\n" % n)
L("L_end")
A("s_endpgm")
errs = hazard_check(E.out[main_start:])
sys.stderr.write("hazard errors: %d\n" % errs)
E.raw(""".section .rodata,"a"
.p2align 6
.amdhsa_kernel %s
  .amdhsa_next_free_vgpr 512
  .amdhsa_next_free_sgpr 102
  .amdhsa_accum_offset 256
  .amdhsa_group_segment_fixed_size 0
  .amdhsa_kernarg_size 56
  .amdhsa_user_sgpr_count 2
  .amdhsa_user_sgpr_kernarg_segment_ptr 1
  .amdhsa_system_sgpr_workgroup_id_x 1
.end_amdhsa_kernel""" % KN)
print(E.text())
```

```python
import sys, os
from common import *
STAMPS = int(sys.argv[1]) if len(sys.argv) > 1 else 0
KN = "standalone__detection_seg_fpn_lateral__vision_kernel"
PP = int(os.environ.get('PP', '400')); CPP = PP // 16; RP = 16 * PP; VB = 16 * RP; VS = 28672; STG = 3072
LDS = VB + 2 * VS
HUGE = 0x40000000
SZ_CF = 224 * 224 * 384; SZ_PC = 112 * 112 * 384; SZ_WL = 192 * 384; SZ_WO = 9 * 192 * 384; SZ_OUT = SZ_CF
SZ_U = 96 * 12288
E = Em(); A = E.A; L = E.L; C = E.C
E.raw("; @launch grid=(256,1,1) block=(256,1,1) lds=%d" % LDS)
E.raw('.amdgcn_target "amdgcn-amd-amdhsa--gfx950"')
E.raw(".text")
def upos(i, j): return ({1: 0, 2: 1, 0: 2, 3: 3}[i], j)
def ugam(p, kk, ks, pidx): return p * 24 + kk * 8 + (pidx >> 1) * 4 + ks * 2 + (pidx & 1)

vBR0, vBR1, vVW, vTA, vTAH, vUO, vSO4, vSO2, vSO4b, vSO2b, vRHO = 1, 2, 3, 4, 5, 6, 7, 8, 9, 10, 11
vX = 12; vVA = 16; vVT = 24; vBF = 32; ACC = 64
vLANE, vP, vG = 32, 33, 34
T0, T1, T2, T3, T4, T5, T6, T7, T8, T9 = 35, 36, 37, 38, 39, 40, 41, 42, 43, 44
vLB = 45; vMW4 = 47; vMW2 = 49; vTRB = 51; vWD = 54; vCFN, vCFL, vCFR = 57, 58, 59; vPC4, vPC2 = 60, 61; vUL, vUSo = 62, 63
vFLG, vFLO = 12, 13
XA, XB, XC, XD, XE, XF = 24, 25, 26, 27, 28, 29
aWL = 0; aPF = 72
aUF = 192; aT = 240
sCF, sPC, sWL, sU, sOUT, sWO, sDBG = 4, 8, 12, 16, 20, 24, 56
sW, sTY, sTX, sRB, sRB2, sDSO, sT0, sT1, sT2, sT3, sCFB, sCFL, sUS, sPCB, sUT, sUSB = 28, 29, 30, 31, 32, 33, 35, 39, 52, 53, 37, 36, 54, 55, 34, 38
sSTAMP = 64
def lacc(t, d): return ACC + (t * 3 + d) * 4
nst = [0]
CH = int(os.environ.get("CHSTAMP", "0"))
def stamp(kind=0):
    if not STAMPS: return
    if kind != 0 and kind != CH: return
    i = nst[0]; nst[0] += 1
    assert sSTAMP + 2 * i + 1 < 100
    A("%s s[%d:%d]" % ("s_memrealtime" if STAMPS >= 2 else "s_memtime", sSTAMP + 2 * i, sSTAMP + 2 * i + 1))
    A("s_waitcnt lgkmcnt(0)"); lg.clear()
lg = Trk("lgkmcnt", 15); vm = Trk("vmcnt", 63)

E.raw(".globl %s\n.p2align 8\n.type %s,@function\n%s:" % (KN, KN, KN))
main_start = len(E.out)
A("s_cmp_ge_u32 s2, 256")
A("s_cbranch_scc1 L_end")
stamp()
A("s_load_dwordx8 s[40:47], s[0:1], 0")
A("s_load_dwordx4 s[48:51], s[0:1], 32")
A("s_load_dwordx2 s[100:101], s[0:1], 48")
A("v_lshrrev_b32 v%d, 6, v0" % T0)
A("v_and_b32 v%d, 63, v0" % vLANE)
A("v_readfirstlane_b32 s%d, v%d" % (sW, T0))
A("v_and_b32 v%d, 15, v0" % vP)
A("v_lshrrev_b32 v%d, 4, v%d" % (vG, vLANE))
A("s_and_b32 s%d, s2, 7" % sT0)
A("s_lshl_b32 s%d, s%d, 5" % (sT0, sT0))
A("s_lshr_b32 s%d, s2, 3" % sT1)
A("s_add_u32 s%d, s%d, s%d" % (sT0, sT0, sT1))
A("s_lshr_b32 s%d, s%d, 4" % (sTY, sT0))
A("s_and_b32 s%d, s%d, 15" % (sTX, sT0))
C("U task ids: kc = wg/12, wt = wg%12, ww = wt/3, t = wt%3 ; g = wave")
A("s_mul_i32 s60, s2, 43691"); A("s_lshr_b32 s60, s60, 19")
A("s_mul_i32 s61, s60, 12"); A("s_sub_u32 s61, s2, s61")
A("s_mul_i32 s62, s61, 21846"); A("s_lshr_b32 s62, s62, 16")
A("s_mul_i32 s63, s62, 3"); A("s_sub_u32 s63, s61, s63")
A("v_lshrrev_b32 v%d, 2, v%d" % (T1, vLANE))
A("v_and_b32 v%d, 3, v%d" % (T2, vLANE))
A("v_lshrrev_b32 v%d, 2, v%d" % (T3, T1)); A("v_and_b32 v%d, 3, v%d" % (T4, T1))
A("v_lshl_add_u32 v%d, v%d, 3, v%d" % (T3, T3, T4))
A("s_lshl_b32 s%d, s63, 2" % sT0)
A("v_add_u32 v%d, s%d, v%d" % (T3, sT0, T3))
A("v_add_u32 v%d, 32, v%d" % (T4, T1))
A("s_cmp_eq_u32 s63, 2"); A("s_cselect_b64 vcc, -1, 0")
A("v_cndmask_b32 v%d, v%d, v%d, vcc" % (T3, T3, T4))
A("s_mul_i32 s%d, s62, 96" % sT0)
A("s_mul_i32 s%d, s%d, %d" % (sT1, sW, 8 * 384))
A("s_add_u32 s%d, s%d, s%d" % (sT0, sT0, sT1))
A("v_lshlrev_b32 v%d, 1, v%d" % (T3, T3))
A("v_mul_u32_u24 v%d, 768, v%d" % (T4, T2))
A("v_add3_u32 v%d, v%d, v%d, s%d" % (vUL, T3, T4, sT0))
A("s_lshl_b32 s%d, s61, 10" % sT0); A("s_lshl_b32 s%d, s%d, 8" % (sT1, sW)); A("s_add_u32 s%d, s%d, s%d" % (sT0, sT0, sT1))
A("v_lshlrev_b32 v%d, 2, v%d" % (T3, vLANE))
A("v_add_u32 v%d, s%d, v%d" % (vUSo, sT0, T3))
A("s_mul_i32 s%d, s60, 12288" % sUT)
A("s_lshr_b32 s%d, s60, 1" % sT0); A("s_lshl_b32 s%d, s%d, 3" % (sT0, sT0)); A("s_and_b32 s%d, s60, 1" % sT1); A("s_lshl_b32 s%d, s%d, 1" % (sT1, sT1))
A("s_add_u32 s%d, s%d, s%d" % (sT0, sT0, sT1)); A("s_mul_i32 s%d, s%d, 12288" % (sUSB, sT0))
A("s_cmp_lt_u32 s2, 72")
A("s_cselect_b32 s%d, s%d, 0x%x" % (sUT, sUT, HUGE))
A("s_cselect_b32 s%d, s%d, 0x%x" % (sUSB, sUSB, HUGE))
C("w_lat staging: stages 0..3 at VB + w*12288 ; stages 4,5 at 12*RP + w*6144")
A("s_mul_i32 s%d, s%d, 12288" % (sRB, sW)); A("s_add_u32 s%d, s%d, %d" % (sRB, sRB, VB))
A("s_mul_i32 s%d, s%d, 6144" % (sRB2, sW)); A("s_add_u32 s%d, s%d, %d" % (sRB2, sRB2, 12 * RP))
A("s_mul_i32 s%d, s%d, 96" % (sT1, sW))
for n in range(3):
    A("v_add_u32 v%d, %d, v%d" % (T0, 64 * n, vLANE))
    A("v_mul_u32_u24 v%d, 10923, v%d" % (T1, T0))
    A("v_lshrrev_b32 v%d, 16, v%d" % (T1, T1))
    A("v_mul_u32_u24 v%d, 6, v%d" % (T2, T1))
    A("v_sub_u32 v%d, v%d, v%d" % (T2, T0, T2))
    A("v_mul_u32_u24 v%d, 384, v%d" % (T3, T1))
    A("v_lshl_add_u32 v%d, v%d, 4, v%d" % (T3, T2, T3))
    A("s_sub_u32 s%d, s%d, %d" % (sT2, sT1, 1024 * n))
    A("v_add_u32 v%d, s%d, v%d" % (vWD + n, sT2, T3))
A("s_waitcnt lgkmcnt(0)")
for (s, p, sz) in ((sWO, 46, SZ_WO), (sWL, 44, SZ_WL), (sCF, 40, SZ_CF), (sPC, 42, SZ_PC), (sU, 100, SZ_U), (sOUT, 48, SZ_OUT), (sDBG, 50, 256)):
    A("s_mov_b32 s%d, s%d" % (s, p)); A("s_mov_b32 s%d, s%d" % (s + 1, p + 1))
    A("s_mov_b32 s%d, %d" % (s + 2, sz)); A("s_mov_b32 s%d, 0x00020000" % (s + 3))
UG = lacc(8, 0)
units1 = []
for tap in range(9):
    for e in range(2):
        u = [("buffer_load_ushort v%d, v%d, s[%d:%d], s%d offen offset:%d" % (UG + 2 * tap + e, vUL, sWO, sWO + 3, sUT, 384 * e), "UG")]
        if e == 1 and tap < 8: u.append(("s_add_u32 s%d, s%d, 73728" % (sUT, sUT), None))
        units1.append(u)
for g in range(6):
    for n in range(3):
        u = []
        if n == 0:
            u.append(("s_mov_b32 s%d, %d" % (sDSO, g * 12288), None))
            u.append((("s_add_u32 s%d, s%d, %d" % (sT0, sRB, g * STG)) if g < 4 else ("s_add_u32 s%d, s%d, %d" % (sT0, sRB2, (g - 4) * STG)), None))
            u.append(("s_mov_b32 m0, s%d" % sT0, None)); u.append(("s_nop 0", None))
        u.append(("buffer_load_dwordx4 v%d, s[%d:%d], s%d offen offset:%d lds" % (vWD + n, sWL, sWL + 3, sDSO, 1024 * n), "WL"))
        units1.append(u)
_save = E.out; E.out = []
_t = (sT0, sT1, sT2); sT0, sT1, sT2 = 40, 41, 42
C("c_fine DMA lane offsets (pad lanes & lanes>=52 -> handled by exec mask)")
A("v_cmp_lt_u32 vcc, %d, v%d" % (CPP - 1, vLANE))
A("v_subrev_u32 v%d, %d, v%d" % (T0, CPP, vLANE))
A("s_nop 0")
A("v_cndmask_b32 v%d, v%d, v%d, vcc" % (T0, vLANE, T0))
A("v_lshlrev_b32 v%d, 4, v%d" % (T0, T0))
A("v_add_u32 v%d, 384, v%d" % (T1, T0))
A("v_cndmask_b32 v%d, v%d, v%d, vcc" % (vCFN, T0, T1))
A("v_mov_b32 v%d, 0x%x" % (T2, HUGE))
A("v_cndmask_b32 v%d, v%d, v%d, vcc" % (vCFL, T2, T0))
A("v_cndmask_b32 v%d, v%d, v%d, vcc" % (vCFR, T0, T2))
A("s_cmp_eq_u32 s%d, 0" % sTX)
A("s_cselect_b64 vcc, -1, 0")
A("s_cselect_b32 s%d, 384, 0" % sT3)
A("v_cndmask_b32 v%d, v%d, v%d, vcc" % (vCFL, vCFN, vCFL))
A("s_cmp_eq_u32 s%d, 15" % sTX)
A("s_cselect_b64 vcc, -1, 0")
A("s_nop 0")
A("v_cndmask_b32 v%d, v%d, v%d, vcc" % (vCFR, vCFN, vCFR))
A("s_mul_i32 s%d, s%d, 14" % (sCFB, sTY))
A("s_add_u32 s%d, s%d, s%d" % (sCFB, sCFB, sW))
A("s_mul_i32 s%d, s%d, 224" % (sCFB, sCFB))
A("s_mul_i32 s%d, s%d, 14" % (sT2, sTX))
A("s_add_u32 s%d, s%d, s%d" % (sCFB, sCFB, sT2))
A("s_sub_u32 s%d, s%d, 225" % (sCFB, sCFB))
A("s_mul_i32 s%d, s%d, 384" % (sCFB, sCFB))
A("s_mul_i32 s%d, s%d, %d" % (sCFL, sW, RP))
C("p_coarse lane offsets")
A("s_sub_u32 s%d, s%d, 1" % (sT2, sT2))
A("v_add_u32 v%d, s%d, v%d" % (T0, sT2, vP))
A("v_cmp_gt_u32 vcc, 224, v%d" % T0)
A("v_lshrrev_b32 v%d, 1, v%d" % (T0, T0))
A("v_mul_u32_u24 v%d, 384, v%d" % (T0, T0))
A("s_mul_i32 s%d, s%d, 96" % (sT2, sW))
A("v_add_u32 v%d, s%d, v%d" % (T0, sT2, T0))
A("v_lshl_add_u32 v%d, v%d, 4, v%d" % (T1, vG, T0))
A("v_lshlrev_b32 v%d, 3, v%d" % (T2, vG))
A("v_add3_u32 v%d, v%d, v%d, 64" % (T2, T0, T2))
A("v_mov_b32 v%d, 0x%x" % (T3, HUGE))
A("v_cndmask_b32 v%d, v%d, v%d, vcc" % (vPC4, T3, T1))
A("v_cndmask_b32 v%d, v%d, v%d, vcc" % (vPC2, T3, T2))
A("s_mul_i32 s%d, s%d, 7" % (sPCB, sTY))
A("s_sub_u32 s%d, s%d, 1" % (sPCB, sPCB))
A("s_mul_i32 s%d, s%d, %d" % (sPCB, sPCB, 112 * 384))

_m = ((1 << 24) - 1) | (((1 << 24) - 1) << CPP)
A("s_mov_b32 s46, 0x%x" % (_m & 0xFFFFFFFF)); A("s_mov_b32 s47, 0x%x" % (_m >> 32))
calc1 = E.out; E.out = _save; sT0, sT1, sT2 = _t
def cf_row(i):
    units = []
    for j in range(8):
        u = []
        if i == 0:
            u += [("s_add_u32 s%d, s%d, s%d" % (sT2, sTY, sW), None), ("s_cmp_eq_u32 s%d, 0" % sT2, None),
                  ("s_cselect_b32 s%d, 0x%x, s%d" % (sT2, HUGE, sCFB), None)]
            if j == 0: u.append(("s_add_u32 s%d, s%d, s%d" % (sT2, sT2, sT3), None))
            else: u.append(("s_add_u32 s%d, s%d, %d" % (sT2, sT2, j * 768), None))
        else:
            u.append(("s_add_u32 s%d, s%d, %d" % (sT2, sCFB, i * 4 * 224 * 384 + j * 768), None))
            if j == 0: u.append(("s_add_u32 s%d, s%d, s%d" % (sT2, sT2, sT3), None))
        u.append(("s_add_u32 s%d, s%d, %d" % (sT0, sCFL, i * 4 * RP + j * 2 * PP), None))
        u.append(("s_mov_b32 m0, s%d" % sT0, None))
        u.append(("s_mov_b64 exec, s[46:47]", None))
        u.append(("buffer_load_dwordx4 v%d, s[%d:%d], s%d offen lds" % (vCFL if j == 0 else (vCFR if j == 7 else vCFN), sCF, sCF + 3, sT2), "CF%d" % i))
        u.append(("s_mov_b64 exec, -1", None))
        units.append(u)
    return units
def pc_tile(j): return 0 if j == 0 else 2 * j - 1
def pc_load(j):
    b = lacc(pc_tile(j), 0)
    u = []
    if j == 0: u += [("s_cmp_eq_u32 s%d, 0" % sTY, None), ("s_cselect_b32 s%d, 0x%x, s%d" % (sT2, HUGE, sPCB), None)]
    else: u.append(("s_add_u32 s%d, s%d, %d" % (sT2, sPCB, j * 112 * 384), None))
    u.append(("buffer_load_dwordx4 v[%d:%d], v%d, s[%d:%d], s%d offen" % (b + 6, b + 9, vPC4, sPC, sPC + 3, sT2), "PC%d" % j))
    u.append(("buffer_load_dwordx2 v[%d:%d], v%d, s[%d:%d], s%d offen" % (b + 10, b + 11, vPC2, sPC, sPC + 3, sT2), "PC%d" % j))
    return [u]
def emit_units(units):
    for u in units:
        for x in u:
            A(x[0])
            if x[1]: vm.issue(x[1])
units2 = cf_row(0) + pc_load(0) + pc_load(1) + pc_load(2)
_save = E.out; E.out = []
sT0, sT1, sT2 = 40, 41, 42
C("address regs")
A("v_mul_u32_u24 v%d, %d, v%d" % (T0, PP, vP))
A("v_lshl_add_u32 v%d, v%d, 4, v%d" % (vLB, vG, T0))
A("v_add_u32 v%d, %d, v%d" % (vLB + 1, 8 * RP, vLB))
A("s_mul_i32 s%d, s%d, 96" % (sT2, sW))
A("v_add_u32 v%d, s%d, v%d" % (vMW4, sT2, vLB))
A("v_add_u32 v%d, %d, v%d" % (vMW4 + 1, 8 * RP, vMW4))
A("v_add_u32 v%d, s%d, v%d" % (T0, sT2, T0))
A("v_lshlrev_b32 v%d, 3, v%d" % (T2, vG))
A("v_add3_u32 v%d, v%d, v%d, 64" % (vMW2, T0, T2))
A("v_add_u32 v%d, %d, v%d" % (vMW2 + 1, 8 * RP, vMW2))
A("v_lshrrev_b32 v%d, 2, v%d" % (T0, vP))
A("v_and_b32 v%d, 3, v%d" % (T1, vP))
A("v_lshrrev_b32 v%d, 1, v%d" % (T2, vG))
A("v_and_b32 v%d, 1, v%d" % (T3, vG))
C("w_lat tr base (relative): 96*(8g + r) + 16cc  [tile0], +8 tile1, tile2: +64+8cc")
A("v_lshl_add_u32 v%d, v%d, 3, v%d" % (T6, vG, T0))
A("v_mul_u32_u24 v%d, 96, v%d" % (T6, T6))
A("v_lshl_add_u32 v%d, v%d, 4, v%d" % (vTRB, T1, T6))
A("v_lshlrev_b32 v%d, 3, v%d" % (T4, T1))
A("v_add3_u32 v%d, v%d, v%d, 64" % (vTRB + 1, T6, T4))
C("V-gen tr base")
A("v_lshl_add_u32 v%d, v%d, 2, v%d" % (T6, T3, T0))
A("v_mul_u32_u24 v%d, %d, v%d" % (T6, PP, T6))
A("v_mul_u32_u24 v%d, %d, v%d" % (T7, RP, T2))
A("v_add3_u32 v%d, v%d, v%d, v%d" % (T6, T6, T7, T4))
A("s_lshl_b32 s%d, s%d, 5" % (sT2, sW))
A("s_add_u32 s%d, s%d, %d" % (sT2, sT2, RP))
A("v_add_u32 v%d, s%d, v%d" % (vTA, sT2, T6))
A("v_add_u32 v%d, %d, v%d" % (vTAH, 8 * RP, vTA))
A("v_sub_u32 v%d, %d, v%d" % (vRHO, RP, T7))
A("v_and_b32 v%d, 7, v%d" % (T6, vP))
A("v_xor_b32 v%d, v%d, v%d" % (T7, vG, T6))
A("v_lshlrev_b32 v%d, 4, v%d" % (T7, T7))
A("v_lshl_add_u32 v%d, v%d, 7, v%d" % (T7, vP, T7))
A("v_add_u32 v%d, %d, v%d" % (vBR0, VB, T7))
A("v_xor_b32 v%d, 64, v%d" % (vBR1, vBR0))
A("v_cmp_gt_u32 vcc, 8, v%d" % vP)
A("v_mov_b32 v%d, 0x30000" % T9)
A("s_nop 0")
A("v_cndmask_b32 v14, v%d, v%d, vcc" % (T9, vBR0))
A("v_cndmask_b32 v15, v%d, v%d, vcc" % (T9, vBR1))
A("s_lshl_b32 s%d, s%d, 1" % (sT2, sW))
A("v_add_u32 v%d, s%d, v%d" % (T7, sT2, T2))
A("v_xor_b32 v%d, v%d, v%d" % (T7, T7, T6))
A("v_lshlrev_b32 v%d, 4, v%d" % (T7, T7))
A("v_lshl_add_u32 v%d, v%d, 7, v%d" % (T7, T6, T7))
A("v_lshl_add_u32 v%d, v%d, 3, v%d" % (T7, T3, T7))
A("v_lshrrev_b32 v%d, 3, v%d" % (T8, vP))
A("v_mul_u32_u24 v%d, 7168, v%d" % (T9, T8))
A("v_add_u32 v%d, v%d, v%d" % (T7, T7, T9))
A("v_add_u32 v%d, %d, v%d" % (vVW, VB, T7))
C("output staging: OW4 = (n>>3)*2RP + tx_*784 + 96w + 16G ; OW2 = ... + 64 + 8G ; RB = w*784 + lane*16 ; GO = tile base + w*768 + lane*16 (lane<48)")
vOW4, vOW2, vRB, vGO = 7, 8, 9, 10
A("v_mul_u32_u24 v%d, %d, v%d" % (T7, 2 * RP, T8))
A("v_mul_u32_u24 v%d, 784, v%d" % (T9, T6))
A("s_mul_i32 s%d, s%d, 96" % (sT2, sW))
A("v_add3_u32 v%d, v%d, v%d, s%d" % (T7, T7, T9, sT2))
A("v_lshl_add_u32 v%d, v%d, 4, v%d" % (vOW4, vG, T7))
A("v_lshl_add_u32 v%d, v%d, 3, v%d" % (vOW2, vG, T7))
A("v_add_u32 v%d, 64, v%d" % (vOW2, vOW2))
A("v_lshlrev_b32 v%d, 4, v%d" % (T7, vLANE))
A("s_mul_i32 s%d, s%d, 784" % (sT2, sW))
A("v_add_u32 v%d, s%d, v%d" % (vRB, sT2, T7))
A("s_mul_i32 s%d, s%d, %d" % (sT1, sTY, 14 * 224 * 384))
A("s_mul_i32 s%d, s%d, %d" % (sT2, sTX, 14 * 384))
A("s_add_u32 s%d, s%d, s%d" % (sT1, sT1, sT2))
A("s_mul_i32 s%d, s%d, 768" % (sT2, sW))
A("s_add_u32 s%d, s%d, s%d" % (sT1, sT1, sT2))
A("v_add_u32 v%d, s%d, v%d" % (vGO, sT1, T7))
A("v_cmp_gt_u32 vcc, 48, v%d" % vLANE)
A("v_mov_b32 v%d, 0x%x" % (T9, HUGE))
A("s_nop 0")
A("v_cndmask_b32 v%d, v%d, v%d, vcc" % (vGO, T9, vGO))
C("s45 = 3072 (second pair offset) or HUGE for wave 3")
A("s_cmp_eq_u32 s%d, 3" % sW); A("s_cselect_b32 s45, 0x%x, 3072" % HUGE) if False else None
A("s_mov_b32 s44, 12288"); A("s_mov_b32 s45, 3072"); A("s_cmp_eq_u32 s%d, 3" % sW); A("s_cselect_b32 s45, 0x%x, s45" % HUGE)
C("U stream voffset; flag store offset (tid==0 && wg<72 -> wg else HUGE); poll offset lane*4 (lane<18)")
A("v_lshlrev_b32 v%d, 4, v%d" % (T0, vLANE))
A("s_mul_i32 s%d, s%d, 3072" % (sT2, sW))
A("v_add_u32 v%d, s%d, v%d" % (vUO, sT2, T0))
A("v_cmp_eq_u32 vcc, 0, v0")
A("s_and_b32 s%d, s2, 3" % sT1); A("s_lshl_b32 s%d, s%d, 6" % (sT1, sT1)); A("s_lshr_b32 s%d, s2, 2" % sT2); A("s_add_u32 s%d, s%d, s%d" % (sT1, sT1, sT2))
A("s_cmp_lt_u32 s2, 72"); A("s_cselect_b32 s%d, s%d, 0x%x" % (sT2, sT1, HUGE))
A("v_mov_b32 v%d, s%d" % (T0, sT2))
A("v_cndmask_b32 v%d, v%d, v%d, vcc" % (vFLO, T9, T0))
C("T matrices")
A("v_lshlrev_b32 v%d, 2, v%d" % (T7, T3))
A("v_lshlrev_b32 v%d, 1, v%d" % (T9, T6))
A("v_sub_u32 v%d, v%d, v%d" % (T7, T7, T9))
A("v_cmp_eq_u32 vcc, 7, v%d" % T6)
A("v_add_u32 v%d, 64, v%d" % (T9, T7))
A("s_nop 0")
A("v_cndmask_b32 v%d, v%d, v%d, vcc" % (T7, T7, T9))
P1, M1 = 0x3F80, 0xBF80
tab = {0: ((0, P1, 2, M1), (1, P1, 2, P1)), 1: ((1, M1, 2, P1), (1, P1, 3, M1))}
A("v_cmp_eq_u32 s[60:61], 1, v%d" % T8)
for nt in range(2):
    (a0, va0, b0, vb0), (a1, va1, b1, vb1) = tab[nt]
    for (dst, x0, x1) in ((XA, a0, a1), (XB, va0, va1), (XC, b0, b1), (XD, vb0, vb1)):
        A("v_mov_b32 v%d, 0x%x" % (dst, x0))
        A("v_mov_b32 v%d, 0x%x" % (XE, x1))
        A("v_cndmask_b32 v%d, v%d, v%d, s[60:61]" % (dst, dst, XE))
    for ep in range(4):
        for hh in range(2):
            e = 2 * ep + hh
            off = 8 * (e >> 2) + (e & 3)
            dst = T0 if hh == 0 else T1
            A("v_add_u32 v%d, %d, v%d" % (T9, off, T7))
            A("v_cmp_eq_u32 vcc, v%d, v%d" % (T9, XA))
            A("v_cmp_eq_u32 s[62:63], v%d, v%d" % (T9, XC))
            A("s_nop 0")
            A("v_cndmask_b32 v%d, 0, v%d, vcc" % (dst, XB))
            A("v_cndmask_b32 v%d, v%d, v%d, s[62:63]" % (dst, dst, XD))
        A("v_lshl_or_b32 v%d, v%d, 16, v%d" % (16 + 4 * nt + ep, T1, T0))
calc2 = E.out; E.out = _save; sT0, sT1, sT2 = _t
def interleave(units, calc, per):
    calc = [c for c in calc if not c.strip().startswith(";")]
    ci = 0
    for u in units:
        for x in u:
            A(x[0])
            if x[1]: vm.issue(x[1])
        k = 0
        while ci < len(calc) and (k < per or calc[ci].strip().startswith("s_cselect") or calc[ci - 1].strip().startswith("s_cmp")):
            E.out.append(calc[ci]); ci += 1; k += 1
    return calc[ci:]
rest = interleave(units1[:12], calc1, 4)
assert not rest, len(rest)
rest = interleave(units1[12:] + units2, calc2, 5)
E.out += rest
stamp(2)
stamp(2)
C("U task compute")
vm.need("UG", A)
stamp(2)
for i in range(18): A("v_lshlrev_b32 v%d, 16, v%d" % (UG + i, UG + i))
RRg = UG + 18; TTg = UG + 24; URg = UG + 26; ORg = UG + 58
for e in range(2):
    g = lambda a, b: UG + (3 * a + b) * 2 + e
    R = {}
    for b in range(3):
        R[(0, b)] = g(0, b); R[(3, b)] = g(2, b)
        A("v_add_f32 v%d, v%d, v%d" % (TTg, g(0, b), g(2, b)))
        A("v_mul_f32 v%d, 0.5, v%d" % (TTg, TTg))
        A("v_fma_f32 v%d, 0.5, v%d, v%d" % (RRg + b, g(1, b), TTg)); R[(1, b)] = RRg + b
        A("v_fma_f32 v%d, -0.5, v%d, v%d" % (RRg + 3 + b, g(1, b), TTg)); R[(2, b)] = RRg + 3 + b
    ub = URg + 16 * e
    for i in range(4):
        A("v_mov_b32 v%d, v%d" % (ub + 4 * i + 0, R[(i, 0)]))
        A("v_mov_b32 v%d, v%d" % (ub + 4 * i + 3, R[(i, 2)]))
        A("v_add_f32 v%d, v%d, v%d" % (TTg, R[(i, 0)], R[(i, 2)]))
        A("v_mul_f32 v%d, 0.5, v%d" % (TTg, TTg))
        A("v_fma_f32 v%d, 0.5, v%d, v%d" % (ub + 4 * i + 1, R[(i, 1)], TTg))
        A("v_fma_f32 v%d, -0.5, v%d, v%d" % (ub + 4 * i + 2, R[(i, 1)], TTg))
for i in range(4):
    for j in range(4):
        n_ = "-" if i == 0 else ""
        p, pidx = upos(i, j)
        o = ORg + 4 * i + j
        A("v_cvt_pk_bf16_f32 v%d, %sv%d, %sv%d" % (o, n_, URg + 4 * i + j, n_, URg + 16 + 4 * i + j))
        A("s_add_u32 s%d, s%d, %d" % (sT2, sUSB, ugam(p, 0, 0, pidx) * 12288))
        A("buffer_store_dword v%d, v%d, s[%d:%d], s%d offen sc0 sc1" % (o, vUSo, sU, sU + 3, sT2)); vm.issue("UST")
VAR = os.environ.get("VAR", "C")
emit_units(cf_row(1)); emit_units(pc_load(3) + pc_load(4))
if VAR == "A": emit_units(cf_row(2)); emit_units(pc_load(5) + pc_load(6))
stamp(2)
C("w_lat frags -> a0..a71")
vm.need("WL", A)
A("v_add_u32 v%d, s%d, v%d" % (T0, sRB, vTRB)); A("v_add_u32 v%d, s%d, v%d" % (T1, sRB, vTRB + 1))
A("v_add_u32 v%d, s%d, v%d" % (T2, sRB2, vTRB)); A("v_add_u32 v%d, s%d, v%d" % (T3, sRB2, vTRB + 1))
for kc in range(6):
    for t in range(3):
        for h in range(2):
            a = aWL + (kc * 3 + t) * 4 + 2 * h
            base = (T0 if t < 2 else T1) if kc < 4 else (T2 if t < 2 else T3)
            off = (kc if kc < 4 else kc - 4) * STG + 384 * h + (8 if t == 1 else 0)
            A("ds_read_b64_tr_b16 a[%d:%d], v%d offset:%d" % (a, a + 1, base, off)); lg.issue("WLF")
def unpack_rows(js):
    ops = []
    for j in js:
        b = lacc(pc_tile(j), 0)
        dsts = [b] if j in (0, 8) else [lacc(2 * j, 0), b]
        for dbase in dsts:
            for i in range(6):
                ops.append("v_lshlrev_b32 v%d, 16, v%d" % (dbase + 2 * i, b + 6 + i))
                ops.append("v_and_b32 v%d, 0xffff0000, v%d" % (dbase + 2 * i + 1, b + 6 + i))
    return ops
def mwrite(r):
    b = lacc(r, 0)
    ops = [("x", "v_cvt_pk_bf16_f32 v%d, v%d, v%d" % (b + i, b + 2 * i, b + 2 * i + 1), None) for i in range(6)]
    ops.append(("lg", "ds_write_b128 v%d, v[%d:%d] offset:%d" % (vMW4 + (r >> 3), b, b + 3, (r & 7) * RP), "MW"))
    ops.append(("lg", "ds_write_b64 v%d, v[%d:%d] offset:%d" % (vMW2 + (r >> 3), b + 4, b + 5, (r & 7) * RP), "MW"))
    return ops
def pread(r, kc):
    a = aPF + ((r & 1) * 6 + kc) * 4
    return ("lg", "ds_read_b128 a[%d:%d], v%d offset:%d" % (a, a + 3, vLB + (r >> 3), (r & 7) * RP + 64 * kc), "P%d_%d" % (r, kc))

GORD = [(0, 0), (0, 1), (1, 0), (1, 1), (0, 2), (0, 3), (1, 2), (1, 3)]
groups = []
for n in range(12):
    for (ks, pidx) in GORD: groups.append((n, n // 3, n % 3, ks, pidx))
def uload(q, t):
    n, p, kk, ks, pidx = groups[q]
    a = aUF + 12 * (q % 4) + 4 * t
    r = []
    assert ugam(p, kk, ks, pidx) == q
    if t == 0: r.append((("s_mov_b32 s%d, 0" % sUS) if q == 0 else ("s_add_u32 s%d, s%d, s44" % (sUS, sUS)), None))
    r.append(("buffer_load_dwordx4 a[%d:%d], v%d, s[%d:%d], s%d offen offset:%d" % (a, a + 3, vUO, sU, sU + 3, sUS, 1024 * t), "U%d_%d" % (q, t)))
    return r

PCJ = {0: [0, 1, 2], 1: [3, 4], 2: [5, 6], 3: [7, 8]}
for k in range(4):
    need = {"CF%d" % k} | {"PC%d" % j for j in PCJ[k]}
    FK = 1 if VAR == "B" else 0
    if k == FK: need |= {"UST"}
    if k == 3: need |= {"POLL"}
    vm.need(need, A)
    stamp(2)
    if k == 3:
        C("check flags (wave 0 only); slow path polls again")
        A("s_cmp_lg_u32 s%d, 0" % sW)
        A("s_cbranch_scc1 L_polled")
        A("v_cmp_gt_u32 vcc, 4, v%d" % vP)
        A("v_mov_b32 v%d, 0x01010101" % T4)
        A("v_cmp_eq_u32 s[60:61], 4, v%d" % vP)
        A("v_cndmask_b32 v%d, 0, v%d, vcc" % (T4, T4))
        A("v_mov_b32 v%d, 0x0101" % T3)
        A("v_cndmask_b32 v%d, v%d, v%d, s[60:61]" % (T4, T4, T3))
        L("L_poll")
        A("v_cmp_ne_u32 vcc, v%d, v%d" % (T4, vFLG))
        A("s_nop 1")
        A("s_or_b32 s60, vcc_lo, vcc_hi")
        A("s_cbranch_scc0 L_polled")
        A("s_sleep 20")
        A("buffer_load_dword v%d, v%d, s[%d:%d], 0 offen sc0 sc1" % (vFLG, T5, sDBG, sDBG + 3))
        A("s_waitcnt vmcnt(0)")
        A("s_branch L_poll")
        L("L_polled")
    if k == 0:
        for x in unpack_rows([0]): A(x)
    lg.drain(A)
    A("s_barrier")
    stamp(2)
    units = []
    fu = [("v_mov_b32 v%d, 1" % T4, None), ("buffer_store_byte v%d, v%d, s[%d:%d], 0 offen sc0 sc1" % (T4, vFLO, sDBG, sDBG + 3), "FLAG")]
    FLAST = int(os.environ.get("FLAST", "0"))
    if k == FK and not FLAST: units.append(fu)
    if k == 0 and VAR != "A": units += cf_row(2) + pc_load(5) + pc_load(6)
    if k == 0: units += cf_row(3) + pc_load(7) + pc_load(8)
    if k == FK and FLAST: units.append(fu)
    if k == 2:
        units.append([("v_lshlrev_b32 v%d, 2, v0" % (T5,), None),
                      ("buffer_load_dword v%d, v%d, s[%d:%d], 0 offen sc0 sc1" % (vFLG, T5, sDBG, sDBG + 3), "POLL")])
    if k == 3:
        w = [("s_lshr_b32 s%d, s2, 3" % sT1, None), ("s_mul_i32 s%d, s%d, 36864" % (sT1, sT1), None)]
        units.append(w)
        for i in range(3):
            for n in range(3):
                u = [("buffer_load_dwordx4 a[%d:%d], v%d, s[%d:%d], s%d offen offset:%d" % (128 + 12 * i + 4 * n, 131 + 12 * i + 4 * n, vUO, sU, sU + 3, sT1, 1024 * n), "WARM")]
                if n == 2 and i < 2: u.append(("s_add_u32 s%d, s%d, 12288" % (sT1, sT1), None))
                units.append(u)

    q1 = [(x, None, 4, 4 * k + 1) for x in unpack_rows([2 * k + 1])]
    q2 = [(x, None, 4, 4 * k + 3) for x in unpack_rows([2 * k + 2])]
    mw = []
    if k > 0:
        for r in range(4 * k - 4, 4 * k):
            for x in mwrite(r): mw.append((x[1], x[2], 8 if x[2] else 4, 99))
    zz = [("v_mov_b32 v%d, 0" % (ACC + i), None, 4, 99) for i in range(48)] if k == 3 else []
    sq = q1 + mw[:16] + q2 + mw[16:] + zz
    for kc in range(6):
        x = pread(4 * k, kc); A(x[1]); lg.issue(x[2])
    for _ in range(12):
        x = sq.pop(0); A(x[0])
    if k == 0: lg.need("WLF", A)
    for r in range(4 * k, 4 * k + 4):
        fl = False
        while any(x[3] <= r for x in sq):
            x = sq.pop(0); A(x[0]); fl = True
            if x[1]: lg.issue(x[1])
        if fl: A("s_nop 1")
        lg.need({"P%d_%d" % (r, kc) for kc in range(3)}, A)
        for kc in range(6):
            for d in range(3):
                a = lacc(r, d); w = aWL + (kc * 3 + d) * 4; p = aPF + ((r & 1) * 6 + kc) * 4
                A("v_mfma_f32_16x16x32_bf16 v[%d:%d], a[%d:%d], a[%d:%d], v[%d:%d]" % (a, a + 3, w, w + 3, p, p + 3, a, a + 3))
                bud = 8
                if d == 0 and r < 4 * k + 3:
                    x = pread(r + 1, kc); A(x[1]); lg.issue(x[2]); bud -= 4
                if d == 2 and kc == 2:
                    n0 = len(E.out); lg.need({"P%d_%d" % (r, c2) for c2 in range(3, 6)}, A)
                    if len(E.out) > n0: bud -= 4
                if d == 2 and kc == 5: bud -= 4
                if d == 1 and units:
                    for x in units.pop(0):
                        A(x[0])
                        if x[1]: vm.issue(x[1])
                    bud = 0
                while sq and sq[0][2] <= bud:
                    x = sq.pop(0); A(x[0]); bud -= x[2]
                    if x[1]: lg.issue(x[1])
    for x in sq:
        A(x[0])
        if x[1]: lg.issue(x[1])
    mw = []
    for u in units:
        for x in u:
            A(x[0])
            if x[1]: vm.issue(x[1])
    assert not mw
lg.drain(A)
A("s_barrier")
stamp()
A("s_nop 4")
for r in range(12, 16):
    for x in mwrite(r): A(x[1])
A("s_waitcnt lgkmcnt(0)")
A("s_barrier")
stamp()


aVA = aT + 8
aSV = 0
aOR = 96
sPAR, sKK, sPASS, sD1, sSPC = 60, 61, 62, 63, 40
def out_block():
    o = ["v_add_u32 v24, %d, v%d" % (8 * RP, vRB)]
    for k in range(14):
        rho = k >> 1; pr = k & 1
        off = 2 * rho * RP + pr * 4 * 784; base = vRB
        if rho >= 4: off -= 8 * RP; base = 24
        o.append("ds_read_b128 a[%d:%d], v%d offset:%d" % (aOR + 4 * k, aOR + 4 * k + 3, base, off))
    for k in range(14):
        rho = k >> 1; pr = k & 1
        o.append(("s_mov_b32 s%d, %d" % (sT0, 2 * rho * 224 * 384)) if pr == 0 else ("s_add_u32 s%d, s%d, s45" % (sT0, sT0)))
        o.append("s_waitcnt lgkmcnt(%d)" % (13 - k))
        o.append("buffer_store_dwordx4 a[%d:%d], v%d, s[%d:%d], s%d offen" % (aOR + 4 * k, aOR + 4 * k + 3, vGO, sOUT, sOUT + 3, sT0))
    o += ["s_cmp_eq_u32 s%d, 3" % sKK, "s_cbranch_scc1 L_fin"]
    return o
def acc(j, mt, t): return ACC + ((j * 4 + mt) * 3 + t) * 4
def pk(dst, a, b, neg=False):
    return "v_pk_add_f32 v[%d:%d], v[%d:%d], v[%d:%d]%s" % (dst, dst + 1, a, a + 1, b, b + 1, " neg_lo:[0,1] neg_hi:[0,1]" if neg else "")
def vgen_tr(k):
    x = aVA + 4 * (k & 1); base = vTA if k < 4 else vTAH
    return [("ds_read_b64_tr_b16 a[%d:%d], v%d offset:%d" % (x + 2 * h, x + 2 * h + 1, base, (k & 3) * 2 * RP + h * 8 * PP), "VA%d" % (k & 1)) for h in range(2)]
def vgen_mfma(k, which):
    x = aVA + 4 * (k & 1); tt = 16 + 4 * which; d = vVT + 4 * which
    return "v_mfma_f32_16x16x32_bf16 v[%d:%d], a[%d:%d], v[%d:%d], 0" % (d, d + 3, x, x + 3, tt, tt + 3)
def vgen_out(k, which):
    d = vVT + 4 * which
    return [("v_cvt_pk_bf16_f32 v%d, v%d, v%d" % (d, d, d + 1), None), ("v_cvt_pk_bf16_f32 v%d, v%d, v%d" % (d + 1, d + 2, d + 3), None),
            ("ds_write_b64 v%d, v[%d:%d] offset:%d" % (vVW, d, d + 1, which * 14336 + k * 1024), "VW")]
def bread(gi, mt):
    ks, pidx = GORD[gi]
    b = vBF + 16 * (gi & 1) + 4 * mt
    reg = (15 if ks else 14) if mt == 3 else (vBR1 if ks else vBR0)
    return ("ds_read_b128 v[%d:%d], v%d offset:%d" % (b, b + 3, reg, pidx * 7168 + mt * 2048), "B%d_%d" % (gi, mt))
def uld(gi, t):
    a = aUF + 12 * (gi % 4) + 4 * t
    return ("buffer_load_dwordx4 a[%d:%d], v%d, s[%d:%d], s%d offen offset:%d" % (a, a + 3, vUO, sU, sU + 3, sUS, 1024 * t), "U%d_%d" % (gi % 8, t))

C("V-gen chunk 0 (pipelined) + zero tiles j=3 + first U loads")
ul0 = []
for q in range(4):
    for t in range(3): ul0.append(uload(q, t))
def pop_ul():
    if ul0:
        for x in ul0.pop(0):
            A(x[0])
            if x[1]: vm.issue(x[1])
for k in range(7):
    base = vTA if k < 4 else vTAH
    for h in range(2):
        A("ds_read_b64_tr_b16 a[%d:%d], v%d offset:%d" % (96 + 4 * k + 2 * h, 97 + 4 * k + 2 * h, base, (k & 3) * 2 * RP + h * 8 * PP)); lg.issue("V0_%d" % k)
zq = ["v_mov_b32 v%d, 0" % (acc(3, 0, 0) + i) for i in range(48)]
for i in range(8): A(zq.pop(0))
dtmp = lambda k, w2: acc(1, 0, 0) + (2 * k + w2) * 4
for k in range(7):
    lg.need("V0_%d" % k, A)
    for w2 in range(2):
        d = dtmp(k, w2)
        A("v_mfma_f32_16x16x32_bf16 v[%d:%d], a[%d:%d], v[%d:%d], 0" % (d, d + 3, 96 + 4 * k, 99 + 4 * k, 16 + 4 * w2, 19 + 4 * w2))
        A(zq.pop(0)); A(zq.pop(0))
for k in range(7):
    for w2 in range(2):
        d = dtmp(k, w2)
        A("v_cvt_pk_bf16_f32 v%d, v%d, v%d" % (d, d, d + 1)); A("v_cvt_pk_bf16_f32 v%d, v%d, v%d" % (d + 1, d + 2, d + 3))
        A("ds_write_b64 v%d, v[%d:%d] offset:%d" % (vVW, d, d + 1, w2 * 14336 + k * 1024)); lg.issue("VW")
        if zq: A(zq.pop(0))
        pop_ul()
assert not zq and not ul0
A("v_add_u32 v%d, 128, v%d" % (vTA, vTA)); A("v_add_u32 v%d, 128, v%d" % (vTAH, vTAH))
A("v_add_u32 v%d, %d, v%d" % (vVW, VS, vVW))
for x in vgen_tr(0): A(x[0]); lg.issue(x[1])
A("s_mov_b32 s%d, %d" % (sPAR, VS)); A("s_mov_b32 s%d, 0" % sPASS)
lg.drain(A)
A("s_barrier")
stamp()
for mt in range(4):
    x = bread(0, mt); A(x[0]); lg.issue(x[1])
C("all 12 first loads are waited here once so that the loop's counted waits are conservative")

def body(emit, first, lgt, vmt, name):
    for gi in range(8):
        ks, pidx = GORD[gi]
        vg = gi < 7
        seq = ["m0", "m1", "m2", "v0", "m3", "v1", "m4", "m5", "m6", "m7", "m8", "m9", "m10", "m11"] if vg else ["m%d" % i for i in range(12)]
        fill = {k: [] for k in seq}
        fill["m0"].append(("vm",) + uld(gi + 3, 2))
        R = [("lg",) + bread((gi + 1) % 8, mt) for mt in range(4)]
        S = ("x", "s_add_u32 s%d, s%d, s44" % (sUS, sUS), None)
        L0 = ("vm",) + uld(gi + 4, 0); L1 = ("vm",) + uld(gi + 4, 1)
        if vg:
            o0 = vgen_out(gi, 0); o1 = vgen_out(gi, 1)
            T = [("lg",) + x for x in vgen_tr(gi + 1)] if gi < 6 else [("x", "s_nop 0", None), ("x", "s_nop 0", None)]
            fill["m1"] += [R[0], S]; fill["m2"].append(R[1]); fill["v0"].append(R[2]); fill["m3"].append(R[3])
            fill["v1"].append(L0)
            fill["m4"].append(T[0]); fill["m5"].append(T[1])
            fill["m5"].append(("x",) + o0[0]); fill["m6"].append(("x",) + o0[1]); fill["m6"].append(("x",) + o1[0])
            fill["m7"].append(("lg",) + o0[2]); fill["m8"].append(("x",) + o1[1])
            fill["m9"].append(L1)
            fill["m10"].append(("lg",) + o1[2])
        else:
            va = lambda r, sr: ("x", "v_add_u32 v%d, s%d, v%d" % (r, sr, r), None)
            fill["m1"] += [S, va(vBR0, sPAR)]
            fill["m2"] += [("bar",)]
            fill["m3"].append(L0)
            fill["m4"] += [R[0], va(14, sPAR)]
            fill["m5"] += [R[1], va(vBR1, sPAR)]
            fill["m6"] += [R[2], va(15, sPAR)]
            fill["m7"] += [R[3], ("x", "v_subrev_u32 v%d, s%d, v%d" % (vVW, sPAR, vVW), None)]
            fill["m8"].append(L1)
            fill["m9"] += [("hook",)]
            T = [("lg",) + x for x in vgen_tr(0)]
            fill["m10"] += [T[0], ("x", "s_sub_u32 s%d, 0, s%d" % (sPAR, sPAR), None)]
            fill["m11"] += [T[1]]
        ws_ = []
        vmt.need({"U%d_%d" % (gi, t) for t in range(3)}, ws_.append)
        lgt.need({"B%d_%d" % (gi, mt) for mt in range(4)} | ({"VA%d" % (gi & 1)} if vg else set()), ws_.append)
        if ws_: emit("s_waitcnt " + " ".join(x.split()[1] for x in ws_))
        for k in seq:
            if k[0] == "m":
                i = int(k[1:]); t = i // 4; mt = i % 4
                d = acc(pidx, mt, t); u = aUF + 12 * (gi % 4) + 4 * t; b = vBF + 16 * (gi & 1) + 4 * mt
                z = first and ks == 0 and pidx in (1, 2)
                emit("v_mfma_f32_16x16x32_bf16 v[%d:%d], a[%d:%d], v[%d:%d], %s" % (d, d + 3, u, u + 3, b, b + 3, "0" if z else "v[%d:%d]" % (d, d + 3)))
            else:
                emit(vgen_mfma(gi, int(k[1])))
            for f in fill[k]:
                if f[0] == "bar": lgt.drain(emit); emit("s_barrier"); continue
                if f[0] == "hook":
                    if first:
                        emit("v_add_u32 v%d, 128, v%d" % (vTA, vTA)); emit("v_add_u32 v%d, 128, v%d" % (vTAH, vTAH))
                    else:
                        emit("v_add_u32 v%d, s%d, v%d" % (vTA, sD1, vTA)); emit("v_add_u32 v%d, s%d, v%d" % (vTAH, sD1, vTAH))
                        emit("s_cmp_eq_u32 s%d, 0" % sSPC); emit("s_cbranch_scc1 L_special_ret")
                        emit("s_cmp_eq_u32 s%d, 2" % sSPC); emit("s_cbranch_scc1 L_sp2")
                        emit("v_cmp_ne_u32 vcc, 0, v%d" % vRHO)
                        emit("v_mov_b32 v24, 0x80008000")
                        emit("s_nop 0")
                        emit("v_cndmask_b32 v24, 0, v24, vcc")
                        for i in range(8): emit("v_xor_b32 v%d, v%d, v24" % (16 + i, 16 + i))
                        emit("s_branch L_special_ret")
                        emit("@L_sp2")
                        emit("v_sub_u32 v%d, v%d, v%d" % (vTA, vTA, vRHO)); emit("v_sub_u32 v%d, v%d, v%d" % (vTAH, vTAH, vRHO))
                        emit("@L_special_ret")
                        emit("s_mov_b32 s%d, 128" % sD1); emit("s_mov_b32 s%d, 0" % sSPC)
                    continue
                emit(f[1])
                if f[2]: (lgt if f[0] == "lg" else vmt).issue(f[2])

lgt = Trk("lgkmcnt", 15); vmt = Trk("vmcnt", 63)
tmp = []
body(tmp.append, False, lgt, vmt, "x"); body(tmp.append, False, lgt, vmt, "x")
b0 = []; body(b0.append, True, lgt, vmt, "b0")
b1 = []; body(b1.append, False, lgt, vmt, "b1")
b2 = []; body(b2.append, False, lgt, vmt, "b1")
assert b1 == b2
def emit_body(b):
    for x in b:
        if x.startswith("@"): L(x[1:])
        else: A(x)
C("entering loop: the first group's L2 load (group 3 frag 2) is redundant on entry; sUS must point at group 3")
A("s_waitcnt vmcnt(0)")
def pstamp(base):
    if not (STAMPS and CH == 4): return
    A("%s s[42:43]" % ("s_memrealtime" if STAMPS >= 2 else "s_memtime")); A("s_waitcnt lgkmcnt(0)")
    for p in range(4):
        A("s_cmp_eq_u32 s%d, %d" % (sPASS, p))
        A("s_cselect_b32 s%d, s42, s%d" % (sSTAMP + 2 * (base + 2 * p), sSTAMP + 2 * (base + 2 * p)))
        A("s_cselect_b32 s%d, s43, s%d" % (sSTAMP + 2 * (base + 2 * p) + 1, sSTAMP + 2 * (base + 2 * p) + 1))
PB = nst[0]
if STAMPS and CH == 4: nst[0] += 8
L("L_pass")
pstamp(PB)
A("s_mov_b32 s%d, 0" % sKK)
emit_body(b0)
A("s_mov_b32 s%d, 1" % sKK)
A("s_cmp_eq_u32 s%d, 2" % sPASS); A("s_cselect_b32 s%d, %d, -256" % (sD1, RP - 256)) if False else None
A("s_mov_b32 s%d, -256" % sD1); A("s_cmp_eq_u32 s%d, 2" % sPASS); A("s_cselect_b32 s%d, %d, s%d" % (sD1, RP - 256, sD1))
A("s_add_u32 s%d, s%d, 1" % (sSPC, sPASS)); A("s_cmp_lt_u32 s%d, 2" % sPASS); A("s_cselect_b32 s%d, s%d, 0" % (sSPC, sSPC))
L("L_body")
emit_body(b1)
A("s_add_u32 s%d, s%d, 1" % (sKK, sKK))
A("s_cmp_lt_u32 s%d, 3" % sKK)
A("s_cbranch_scc1 L_body")
pstamp(PB + 1)
C("---- pass end")
kept = [acc(0, 0, 0) + i for i in range(48)] + [acc(3, 0, 0) + i for i in range(48)]
def wt_pair(tl):
    o = []
    Z = [[acc(j, mt, t) for j in range(4)] for (mt, t) in tl]
    for z in Z:
        for h in (0, 2): o.append(pk(z[3] + h, z[3] + h, z[2] + h))
    for z in Z:
        for h in (0, 2): o.append(pk(z[2] + h, z[1] + h, z[2] + h))
    for z in Z:
        for h in (0, 2): o.append(pk(z[3] + h, z[3] + h, z[1] + h, True))
    for z in Z:
        for h in (0, 2): o.append(pk(z[0] + h, z[0] + h, z[2] + h))
    return o
A("s_cmp_ge_u32 s%d, 2" % sPASS); A("s_cbranch_scc1 L_e2")
A("s_nop 2")
for mt in range(4):
    for x in wt_pair([(mt, t) for t in range(3)]): A(x)
A("s_cmp_eq_u32 s%d, 1" % sPASS); A("s_cbranch_scc1 L_e1")
C("E0: save R1")
for i, v in enumerate(kept): A("v_accvgpr_write_b32 a%d, v%d" % (aSV + i, v))
A("s_branch L_next")
L("L_e1")
C("E1: D = 2*R1 - S   (8 regs per step, in-place temps, software pipelined)")
E1T = acc(1, 0, 0)
def rd8(i): return ["v_accvgpr_read_b32 v%d, a%d" % (E1T + 8 * ((i // 8) & 1) + r, aSV + i + r) for r in range(8)]
for x in rd8(0): A(x)
for i in range(0, 96, 8):
    x = E1T + 8 * ((i // 8) & 1)
    for h in (0, 2, 4, 6):
        A("v_pk_fma_f32 v[%d:%d], v[%d:%d], 2.0, v[%d:%d] op_sel_hi:[1,0,1] neg_lo:[0,0,1] neg_hi:[0,0,1]" % (x + h, x + h + 1, x + h, x + h + 1, kept[i] + h, kept[i] + h + 1))
    if i + 8 < 96:
        for y in rd8(i + 8): A(y)
    for r in range(8): A("v_accvgpr_write_b32 a%d, v%d" % (aSV + i + r, x + r))
A("s_branch L_next")
L("L_e2")
C("E2/E3: fused W transform + pack + stage to LDS; packed data goes into dead tiles j=1 (b=0) / j=2 (b=1)")
A("v_add_u32 v28, %d, v%d" % (8 * RP, vOW4)); A("v_add_u32 v29, %d, v%d" % (8 * RP, vOW2))
A("s_nop 0")
pend = []
for mt in range(4):
    va_ = wt_pair([(mt, t) for t in range(3)]); wr = []
    for bb in range(2):
        ng = "-" if bb else ""; jj = 3 if bb else 0
        dst = acc(1 + bb, mt, 0)
        for t in range(3):
            z = acc(jj, mt, t)
            va_.append("v_cvt_pk_bf16_f32 v%d, %sv%d, %sv%d" % (dst + 2 * t, ng, z, ng, z + 1))
            va_.append("v_cvt_pk_bf16_f32 v%d, %sv%d, %sv%d" % (dst + 2 * t + 1, ng, z + 2, ng, z + 3))
        o = (mt & 1) * 4 * RP + 384 * bb
        wr.append("ds_write_b128 v%d, v[%d:%d] offset:%d" % (28 if mt >= 2 else vOW4, dst, dst + 3, o))
        wr.append("ds_write_b64 v%d, v[%d:%d] offset:%d" % (29 if mt >= 2 else vOW2, dst + 4, dst + 5, o))
    for i, x in enumerate(va_):
        A(x)
        if pend and i % 9 == 4: A(pend.pop(0))
    pend = wr
for x in pend: A(x)
rs_ = ["v_accvgpr_read_b32 v%d, a%d" % (v, aSV + i) for i, v in enumerate(kept)]
for _ in range(12): A(rs_.pop(0))
A("s_waitcnt lgkmcnt(0)")
A("s_barrier")
ob = out_block()[:-2]
for x in ob[:15]: A(x)
ob = ob[15:]
for k in range(14):
    for x in ob[3 * k:3 * k + 3]: A(x)
    if k < 13:
        A("s_cbranch_vccnz L_skip%d" % k) if False else None
    for _ in range(6):
        if rs_: A(rs_.pop(0))
assert not rs_
A("s_cmp_eq_u32 s%d, 3" % sPASS); A("s_cbranch_scc1 L_fin")
A("v_add_u32 v%d, %d, v%d" % (vOW4, RP, vOW4)); A("v_add_u32 v%d, %d, v%d" % (vOW2, RP, vOW2))
A("v_add_u32 v%d, %d, v%d" % (vRB, RP, vRB))
A("v_add_u32 v%d, %d, v%d" % (vGO, 224 * 384, vGO))
L("L_next")
A("s_add_u32 s%d, s%d, 1" % (sPASS, sPASS))
A("s_branch L_pass")

L("L_fin")
stamp()
if STAMPS:
    A("s_waitcnt vmcnt(0)")
    stamp()
    n = nst[0]
    if os.environ.get("DIAG"):
        i, j, K = [int(x) for x in os.environ["DIAG"].split(",")]
        A("s_sub_u32 s40, s%d, s%d" % (sSTAMP + 2 * j, sSTAMP + 2 * i))
        A("s_mul_i32 s40, s40, %d" % K)
        A("s_add_u32 s40, s40, s%d" % (sSTAMP + 2 * (n - 1)))
        L("L_diag")
        A("s_memrealtime s[42:43]"); A("s_waitcnt lgkmcnt(0)")
        A("s_sub_u32 s41, s42, s40"); A("s_cmp_lt_i32 s41, 0"); A("s_cbranch_scc1 L_diag")
        A("s_endpgm")
    sWS = 24; A("s_mov_b32 s%d, s100" % sWS); A("s_mov_b32 s%d, s101" % (sWS + 1)); A("s_mov_b32 s%d, 0x10000000" % (sWS + 2)); A("s_mov_b32 s%d, 0x00020000" % (sWS + 3))
    A("s_lshl_b32 s%d, s2, 2" % sT0)
    A("s_add_u32 s%d, s%d, s%d" % (sT0, sT0, sW))
    A("s_mul_i32 s%d, s%d, %d" % (sT0, sT0, 8 * n))
    A("s_add_u32 s%d, s%d, 0x1000000" % (sT0, sT0))
    A("v_mov_b32 v16, s%d" % sT0)
    A("v_and_b32 v17, 63, v0")
    A("v_cmp_eq_u32 vcc, 0, v17")
    A("s_and_saveexec_b64 s[40:41], vcc")
    for i in range(n):
        A("v_mov_b32 v18, s%d" % (sSTAMP + 2 * i))
        A("v_mov_b32 v19, s%d" % (sSTAMP + 2 * i + 1))
        A("buffer_store_dwordx2 v[18:19], v16, s[%d:%d], 0 offen offset:%d" % (sWS, sWS + 3, 8 * i))
        A("s_nop 1")
    sys.stderr.write("nstamps=%d\n" % n)
L("L_end")
A("s_endpgm")
errs = hazard_check(E.out[main_start:])
sys.stderr.write("hazard errors: %d\n" % errs)
E.raw(""".section .rodata,"a"
.p2align 6
.amdhsa_kernel %s
  .amdhsa_next_free_vgpr 512
  .amdhsa_next_free_sgpr 102
  .amdhsa_accum_offset 256
  .amdhsa_group_segment_fixed_size 0
  .amdhsa_kernarg_size 56
  .amdhsa_user_sgpr_count 2
  .amdhsa_user_sgpr_kernarg_segment_ptr 1
  .amdhsa_system_sgpr_workgroup_id_x 1
.end_amdhsa_kernel""" % KN)
print(E.text())
```

```python
import sys, os
from common import *
STAMPS = int(sys.argv[1]) if len(sys.argv) > 1 else 0
KN = "standalone__detection_seg_fpn_lateral__vision_kernel"
PP = int(os.environ.get('PP', '400')); CPP = PP // 16; RP = 16 * PP; VB = 16 * RP; VS = 28672; STG = 3072
LDS = VB + 2 * VS
HUGE = 0x40000000
SZ_CF = 224 * 224 * 384; SZ_PC = 112 * 112 * 384; SZ_WL = 192 * 384; SZ_WO = 9 * 192 * 384; SZ_OUT = SZ_CF
SZ_U = 96 * 12288
E = Em(); A = E.A; L = E.L; C = E.C
E.raw("; @launch grid=(256,1,1) block=(256,1,1) lds=%d" % LDS)
E.raw('.amdgcn_target "amdgcn-amd-amdhsa--gfx950"')
E.raw(".text")
def upos(i, j): return ({1: 0, 2: 1, 0: 2, 3: 3}[i], j)
def ugam(p, kk, ks, pidx): return p * 24 + kk * 8 + (pidx >> 1) * 4 + ks * 2 + (pidx & 1)

vBR0, vBR1, vVW, vTA, vTAH, vUO, vSO4, vSO2, vSO4b, vSO2b, vRHO = 1, 2, 3, 4, 5, 6, 7, 8, 9, 10, 11
vX = 12; vVA = 16; vVT = 24; vBF = 32; ACC = 64
vLANE, vP, vG = 32, 33, 34
T0, T1, T2, T3, T4, T5, T6, T7, T8, T9 = 35, 36, 37, 38, 39, 40, 41, 42, 43, 44
vLB = 45; vMW4 = 47; vMW2 = 49; vTRB = 51; vWD = 54; vCFN, vCFL, vCFR = 57, 58, 59; vPC4, vPC2 = 60, 61; vUL, vUSo = 62, 63
vFLG, vFLO = 12, 13
XA, XB, XC, XD, XE, XF = 24, 25, 26, 27, 28, 29
aWL = 0; aPF = 72
aUF = 192; aT = 240
sCF, sPC, sWL, sU, sOUT, sWO, sDBG = 4, 8, 12, 16, 20, 24, 56
sW, sTY, sTX, sRB, sRB2, sDSO, sT0, sT1, sT2, sT3, sCFB, sCFL, sUS, sPCB, sUT, sUSB = 28, 29, 30, 31, 32, 33, 35, 39, 52, 53, 37, 36, 54, 55, 34, 38
sSTAMP = 64
def lacc(t, d): return ACC + (t * 3 + d) * 4
nst = [0]
CH = int(os.environ.get("CHSTAMP", "0"))
def stamp(kind=0):
    if not STAMPS: return
    if kind != 0 and kind != CH: return
    i = nst[0]; nst[0] += 1
    assert sSTAMP + 2 * i + 1 < 100
    A("%s s[%d:%d]" % ("s_memrealtime" if STAMPS >= 2 else "s_memtime", sSTAMP + 2 * i, sSTAMP + 2 * i + 1))
    A("s_waitcnt lgkmcnt(0)"); lg.clear()
lg = Trk("lgkmcnt", 15); vm = Trk("vmcnt", 63)

E.raw(".globl %s\n.p2align 8\n.type %s,@function\n%s:" % (KN, KN, KN))
main_start = len(E.out)
CW = int(os.environ.get("CW", "1")); CWS = int(os.environ.get("CWS", "128"))
A("s_getpc_b64 s[98:99]")
L("L_pc")
A("s_cmp_ge_u32 s2, 256")
A("s_cbranch_scc1 L_end")
if CW:
    C("warm L2 with this kernel's own code (read-only data loads, result unused)")
    A("v_mul_u32_u24 v250, %d, v0" % CWS)
    for i in range(int(os.environ.get("CWN", "2"))):
        if i: A("v_add_u32 v250, %d, v250" % (256 * CWS))
        A("v_min_u32 v%d, L_end-L_pc, v250" % (251 + i))
        A("global_load_dword v%d, v%d, s[98:99]" % (251 + i, 251 + i)); vm.issue("CW")
stamp()
A("s_load_dwordx8 s[40:47], s[0:1], 0")
A("s_load_dwordx4 s[48:51], s[0:1], 32")
A("s_load_dwordx2 s[100:101], s[0:1], 48")
A("v_lshrrev_b32 v%d, 6, v0" % T0)
A("v_and_b32 v%d, 63, v0" % vLANE)
A("v_readfirstlane_b32 s%d, v%d" % (sW, T0))
A("v_and_b32 v%d, 15, v0" % vP)
A("v_lshrrev_b32 v%d, 4, v%d" % (vG, vLANE))
A("s_and_b32 s%d, s2, 7" % sT0)
A("s_lshl_b32 s%d, s%d, 5" % (sT0, sT0))
A("s_lshr_b32 s%d, s2, 3" % sT1)
A("s_add_u32 s%d, s%d, s%d" % (sT0, sT0, sT1))
A("s_lshr_b32 s%d, s%d, 4" % (sTY, sT0))
A("s_and_b32 s%d, s%d, 15" % (sTX, sT0))
C("U task ids: kc = wg/12, wt = wg%12, ww = wt/3, t = wt%3 ; g = wave")
A("s_mul_i32 s60, s2, 43691"); A("s_lshr_b32 s60, s60, 19")
A("s_mul_i32 s61, s60, 12"); A("s_sub_u32 s61, s2, s61")
A("s_mul_i32 s62, s61, 21846"); A("s_lshr_b32 s62, s62, 16")
A("s_mul_i32 s63, s62, 3"); A("s_sub_u32 s63, s61, s63")
A("v_lshrrev_b32 v%d, 2, v%d" % (T1, vLANE))
A("v_and_b32 v%d, 3, v%d" % (T2, vLANE))
A("v_lshrrev_b32 v%d, 2, v%d" % (T3, T1)); A("v_and_b32 v%d, 3, v%d" % (T4, T1))
A("v_lshl_add_u32 v%d, v%d, 3, v%d" % (T3, T3, T4))
A("s_lshl_b32 s%d, s63, 2" % sT0)
A("v_add_u32 v%d, s%d, v%d" % (T3, sT0, T3))
A("v_add_u32 v%d, 32, v%d" % (T4, T1))
A("s_cmp_eq_u32 s63, 2"); A("s_cselect_b64 vcc, -1, 0")
A("v_cndmask_b32 v%d, v%d, v%d, vcc" % (T3, T3, T4))
A("s_mul_i32 s%d, s62, 96" % sT0)
A("s_mul_i32 s%d, s%d, %d" % (sT1, sW, 8 * 384))
A("s_add_u32 s%d, s%d, s%d" % (sT0, sT0, sT1))
A("v_lshlrev_b32 v%d, 1, v%d" % (T3, T3))
A("v_mul_u32_u24 v%d, 768, v%d" % (T4, T2))
A("v_add3_u32 v%d, v%d, v%d, s%d" % (vUL, T3, T4, sT0))
A("s_lshl_b32 s%d, s61, 10" % sT0); A("s_lshl_b32 s%d, s%d, 8" % (sT1, sW)); A("s_add_u32 s%d, s%d, s%d" % (sT0, sT0, sT1))
A("v_lshlrev_b32 v%d, 2, v%d" % (T3, vLANE))
A("v_add_u32 v%d, s%d, v%d" % (vUSo, sT0, T3))
A("s_mul_i32 s%d, s60, 12288" % sUT)
A("s_lshr_b32 s%d, s60, 1" % sT0); A("s_lshl_b32 s%d, s%d, 3" % (sT0, sT0)); A("s_and_b32 s%d, s60, 1" % sT1); A("s_lshl_b32 s%d, s%d, 1" % (sT1, sT1))
A("s_add_u32 s%d, s%d, s%d" % (sT0, sT0, sT1)); A("s_mul_i32 s%d, s%d, 12288" % (sUSB, sT0))
A("s_cmp_lt_u32 s2, 72")
A("s_cselect_b32 s%d, s%d, 0x%x" % (sUT, sUT, HUGE))
A("s_cselect_b32 s%d, s%d, 0x%x" % (sUSB, sUSB, HUGE))
C("w_lat staging: stages 0..3 at VB + w*12288 ; stages 4,5 at 12*RP + w*6144")
A("s_mul_i32 s%d, s%d, 12288" % (sRB, sW)); A("s_add_u32 s%d, s%d, %d" % (sRB, sRB, VB))
A("s_mul_i32 s%d, s%d, 6144" % (sRB2, sW)); A("s_add_u32 s%d, s%d, %d" % (sRB2, sRB2, 12 * RP))
A("s_mul_i32 s%d, s%d, 96" % (sT1, sW))
for n in range(3):
    A("v_add_u32 v%d, %d, v%d" % (T0, 64 * n, vLANE))
    A("v_mul_u32_u24 v%d, 10923, v%d" % (T1, T0))
    A("v_lshrrev_b32 v%d, 16, v%d" % (T1, T1))
    A("v_mul_u32_u24 v%d, 6, v%d" % (T2, T1))
    A("v_sub_u32 v%d, v%d, v%d" % (T2, T0, T2))
    A("v_mul_u32_u24 v%d, 384, v%d" % (T3, T1))
    A("v_lshl_add_u32 v%d, v%d, 4, v%d" % (T3, T2, T3))
    A("s_sub_u32 s%d, s%d, %d" % (sT2, sT1, 1024 * n))
    A("v_add_u32 v%d, s%d, v%d" % (vWD + n, sT2, T3))
A("s_waitcnt lgkmcnt(0)")
for (s, p, sz) in ((sWO, 46, SZ_WO), (sWL, 44, SZ_WL), (sCF, 40, SZ_CF), (sPC, 42, SZ_PC), (sU, 100, SZ_U), (sOUT, 48, SZ_OUT), (sDBG, 50, 256)):
    A("s_mov_b32 s%d, s%d" % (s, p)); A("s_mov_b32 s%d, s%d" % (s + 1, p + 1))
    A("s_mov_b32 s%d, %d" % (s + 2, sz)); A("s_mov_b32 s%d, 0x00020000" % (s + 3))
UG = lacc(8, 0)
units1 = []
for tap in range(9):
    for e in range(2):
        u = [("buffer_load_ushort v%d, v%d, s[%d:%d], s%d offen offset:%d" % (UG + 2 * tap + e, vUL, sWO, sWO + 3, sUT, 384 * e), "UG")]
        if e == 1 and tap < 8: u.append(("s_add_u32 s%d, s%d, 73728" % (sUT, sUT), None))
        units1.append(u)
for g in range(6):
    for n in range(3):
        u = []
        if n == 0:
            u.append(("s_mov_b32 s%d, %d" % (sDSO, g * 12288), None))
            u.append((("s_add_u32 s%d, s%d, %d" % (sT0, sRB, g * STG)) if g < 4 else ("s_add_u32 s%d, s%d, %d" % (sT0, sRB2, (g - 4) * STG)), None))
            u.append(("s_mov_b32 m0, s%d" % sT0, None)); u.append(("s_nop 0", None))
        u.append(("buffer_load_dwordx4 v%d, s[%d:%d], s%d offen offset:%d lds" % (vWD + n, sWL, sWL + 3, sDSO, 1024 * n), "WL"))
        units1.append(u)
_save = E.out; E.out = []
_t = (sT0, sT1, sT2); sT0, sT1, sT2 = 40, 41, 42
C("c_fine DMA lane offsets (pad lanes & lanes>=52 -> handled by exec mask)")
A("v_cmp_lt_u32 vcc, %d, v%d" % (CPP - 1, vLANE))
A("v_subrev_u32 v%d, %d, v%d" % (T0, CPP, vLANE))
A("s_nop 0")
A("v_cndmask_b32 v%d, v%d, v%d, vcc" % (T0, vLANE, T0))
A("v_lshlrev_b32 v%d, 4, v%d" % (T0, T0))
A("v_add_u32 v%d, 384, v%d" % (T1, T0))
A("v_cndmask_b32 v%d, v%d, v%d, vcc" % (vCFN, T0, T1))
A("v_mov_b32 v%d, 0x%x" % (T2, HUGE))
A("v_cndmask_b32 v%d, v%d, v%d, vcc" % (vCFL, T2, T0))
A("v_cndmask_b32 v%d, v%d, v%d, vcc" % (vCFR, T0, T2))
A("s_cmp_eq_u32 s%d, 0" % sTX)
A("s_cselect_b64 vcc, -1, 0")
A("s_cselect_b32 s%d, 384, 0" % sT3)
A("v_cndmask_b32 v%d, v%d, v%d, vcc" % (vCFL, vCFN, vCFL))
A("s_cmp_eq_u32 s%d, 15" % sTX)
A("s_cselect_b64 vcc, -1, 0")
A("s_nop 0")
A("v_cndmask_b32 v%d, v%d, v%d, vcc" % (vCFR, vCFN, vCFR))
A("s_mul_i32 s%d, s%d, 14" % (sCFB, sTY))
A("s_add_u32 s%d, s%d, s%d" % (sCFB, sCFB, sW))
A("s_mul_i32 s%d, s%d, 224" % (sCFB, sCFB))
A("s_mul_i32 s%d, s%d, 14" % (sT2, sTX))
A("s_add_u32 s%d, s%d, s%d" % (sCFB, sCFB, sT2))
A("s_sub_u32 s%d, s%d, 225" % (sCFB, sCFB))
A("s_mul_i32 s%d, s%d, 384" % (sCFB, sCFB))
A("s_mul_i32 s%d, s%d, %d" % (sCFL, sW, RP))
C("p_coarse lane offsets")
A("s_sub_u32 s%d, s%d, 1" % (sT2, sT2))
A("v_add_u32 v%d, s%d, v%d" % (T0, sT2, vP))
A("v_cmp_gt_u32 vcc, 224, v%d" % T0)
A("v_lshrrev_b32 v%d, 1, v%d" % (T0, T0))
A("v_mul_u32_u24 v%d, 384, v%d" % (T0, T0))
A("s_mul_i32 s%d, s%d, 96" % (sT2, sW))
A("v_add_u32 v%d, s%d, v%d" % (T0, sT2, T0))
A("v_lshl_add_u32 v%d, v%d, 4, v%d" % (T1, vG, T0))
A("v_lshlrev_b32 v%d, 3, v%d" % (T2, vG))
A("v_add3_u32 v%d, v%d, v%d, 64" % (T2, T0, T2))
A("v_mov_b32 v%d, 0x%x" % (T3, HUGE))
A("v_cndmask_b32 v%d, v%d, v%d, vcc" % (vPC4, T3, T1))
A("v_cndmask_b32 v%d, v%d, v%d, vcc" % (vPC2, T3, T2))
A("s_mul_i32 s%d, s%d, 7" % (sPCB, sTY))
A("s_sub_u32 s%d, s%d, 1" % (sPCB, sPCB))
A("s_mul_i32 s%d, s%d, %d" % (sPCB, sPCB, 112 * 384))

_m = ((1 << 24) - 1) | (((1 << 24) - 1) << CPP)
A("s_mov_b32 s46, 0x%x" % (_m & 0xFFFFFFFF)); A("s_mov_b32 s47, 0x%x" % (_m >> 32))
calc1 = E.out; E.out = _save; sT0, sT1, sT2 = _t
def cf_row(i):
    units = []
    for j in range(8):
        u = []
        if i == 0:
            u += [("s_add_u32 s%d, s%d, s%d" % (sT2, sTY, sW), None), ("s_cmp_eq_u32 s%d, 0" % sT2, None),
                  ("s_cselect_b32 s%d, 0x%x, s%d" % (sT2, HUGE, sCFB), None)]
            if j == 0: u.append(("s_add_u32 s%d, s%d, s%d" % (sT2, sT2, sT3), None))
            else: u.append(("s_add_u32 s%d, s%d, %d" % (sT2, sT2, j * 768), None))
        else:
            u.append(("s_add_u32 s%d, s%d, %d" % (sT2, sCFB, i * 4 * 224 * 384 + j * 768), None))
            if j == 0: u.append(("s_add_u32 s%d, s%d, s%d" % (sT2, sT2, sT3), None))
        u.append(("s_add_u32 s%d, s%d, %d" % (sT0, sCFL, i * 4 * RP + j * 2 * PP), None))
        u.append(("s_mov_b32 m0, s%d" % sT0, None))
        u.append(("s_mov_b64 exec, s[46:47]", None))
        u.append(("buffer_load_dwordx4 v%d, s[%d:%d], s%d offen lds" % (vCFL if j == 0 else (vCFR if j == 7 else vCFN), sCF, sCF + 3, sT2), "CF%d" % i))
        u.append(("s_mov_b64 exec, -1", None))
        units.append(u)
    return units
def pc_tile(j): return 0 if j == 0 else 2 * j - 1
def pc_load(j):
    b = lacc(pc_tile(j), 0)
    u = []
    if j == 0: u += [("s_cmp_eq_u32 s%d, 0" % sTY, None), ("s_cselect_b32 s%d, 0x%x, s%d" % (sT2, HUGE, sPCB), None)]
    else: u.append(("s_add_u32 s%d, s%d, %d" % (sT2, sPCB, j * 112 * 384), None))
    u.append(("buffer_load_dwordx4 v[%d:%d], v%d, s[%d:%d], s%d offen" % (b + 6, b + 9, vPC4, sPC, sPC + 3, sT2), "PC%d" % j))
    u.append(("buffer_load_dwordx2 v[%d:%d], v%d, s[%d:%d], s%d offen" % (b + 10, b + 11, vPC2, sPC, sPC + 3, sT2), "PC%d" % j))
    return [u]
def emit_units(units):
    for u in units:
        for x in u:
            A(x[0])
            if x[1]: vm.issue(x[1])
units2 = cf_row(0) + pc_load(0) + pc_load(1) + pc_load(2)
R1E = int(os.environ.get("R1E", "0")); R3S = int(os.environ.get("R3S", "0")); FKE = int(os.environ.get("FKE", "0")); PPOS = int(os.environ.get("PPOS", "0"))
if R1E: units2 += cf_row(1) + pc_load(3) + pc_load(4)
_save = E.out; E.out = []
sT0, sT1, sT2 = 40, 41, 42
C("address regs")
A("v_mul_u32_u24 v%d, %d, v%d" % (T0, PP, vP))
A("v_lshl_add_u32 v%d, v%d, 4, v%d" % (vLB, vG, T0))
A("v_add_u32 v%d, %d, v%d" % (vLB + 1, 8 * RP, vLB))
A("s_mul_i32 s%d, s%d, 96" % (sT2, sW))
A("v_add_u32 v%d, s%d, v%d" % (vMW4, sT2, vLB))
A("v_add_u32 v%d, %d, v%d" % (vMW4 + 1, 8 * RP, vMW4))
A("v_add_u32 v%d, s%d, v%d" % (T0, sT2, T0))
A("v_lshlrev_b32 v%d, 3, v%d" % (T2, vG))
A("v_add3_u32 v%d, v%d, v%d, 64" % (vMW2, T0, T2))
A("v_add_u32 v%d, %d, v%d" % (vMW2 + 1, 8 * RP, vMW2))
A("v_lshrrev_b32 v%d, 2, v%d" % (T0, vP))
A("v_and_b32 v%d, 3, v%d" % (T1, vP))
A("v_lshrrev_b32 v%d, 1, v%d" % (T2, vG))
A("v_and_b32 v%d, 1, v%d" % (T3, vG))
C("w_lat tr base (relative): 96*(8g + r) + 16cc  [tile0], +8 tile1, tile2: +64+8cc")
A("v_lshl_add_u32 v%d, v%d, 3, v%d" % (T6, vG, T0))
A("v_mul_u32_u24 v%d, 96, v%d" % (T6, T6))
A("v_lshl_add_u32 v%d, v%d, 4, v%d" % (vTRB, T1, T6))
A("v_lshlrev_b32 v%d, 3, v%d" % (T4, T1))
A("v_add3_u32 v%d, v%d, v%d, 64" % (vTRB + 1, T6, T4))
C("V-gen tr base")
A("v_lshl_add_u32 v%d, v%d, 2, v%d" % (T6, T3, T0))
A("v_mul_u32_u24 v%d, %d, v%d" % (T6, PP, T6))
A("v_mul_u32_u24 v%d, %d, v%d" % (T7, RP, T2))
A("v_add3_u32 v%d, v%d, v%d, v%d" % (T6, T6, T7, T4))
A("s_lshl_b32 s%d, s%d, 5" % (sT2, sW))
A("s_add_u32 s%d, s%d, %d" % (sT2, sT2, RP))
A("v_add_u32 v%d, s%d, v%d" % (vTA, sT2, T6))
A("v_add_u32 v%d, %d, v%d" % (vTAH, 8 * RP, vTA))
A("v_sub_u32 v%d, %d, v%d" % (vRHO, RP, T7))
A("v_and_b32 v%d, 7, v%d" % (T6, vP))
A("v_xor_b32 v%d, v%d, v%d" % (T7, vG, T6))
A("v_lshlrev_b32 v%d, 4, v%d" % (T7, T7))
A("v_lshl_add_u32 v%d, v%d, 7, v%d" % (T7, vP, T7))
A("v_add_u32 v%d, %d, v%d" % (vBR0, VB, T7))
A("v_xor_b32 v%d, 64, v%d" % (vBR1, vBR0))
A("v_cmp_gt_u32 vcc, 8, v%d" % vP)
A("v_mov_b32 v%d, 0x30000" % T9)
A("s_nop 0")
A("v_cndmask_b32 v14, v%d, v%d, vcc" % (T9, vBR0))
A("v_cndmask_b32 v15, v%d, v%d, vcc" % (T9, vBR1))
A("s_lshl_b32 s%d, s%d, 1" % (sT2, sW))
A("v_add_u32 v%d, s%d, v%d" % (T7, sT2, T2))
A("v_xor_b32 v%d, v%d, v%d" % (T7, T7, T6))
A("v_lshlrev_b32 v%d, 4, v%d" % (T7, T7))
A("v_lshl_add_u32 v%d, v%d, 7, v%d" % (T7, T6, T7))
A("v_lshl_add_u32 v%d, v%d, 3, v%d" % (T7, T3, T7))
A("v_lshrrev_b32 v%d, 3, v%d" % (T8, vP))
A("v_mul_u32_u24 v%d, 7168, v%d" % (T9, T8))
A("v_add_u32 v%d, v%d, v%d" % (T7, T7, T9))
A("v_add_u32 v%d, %d, v%d" % (vVW, VB, T7))
C("output staging: OW4 = (n>>3)*2RP + tx_*784 + 96w + 16G ; OW2 = ... + 64 + 8G ; RB = w*784 + lane*16 ; GO = tile base + w*768 + lane*16 (lane<48)")
vOW4, vOW2, vRB, vGO = 7, 8, 9, 10
A("v_mul_u32_u24 v%d, %d, v%d" % (T7, 2 * RP, T8))
A("v_mul_u32_u24 v%d, 784, v%d" % (T9, T6))
A("s_mul_i32 s%d, s%d, 96" % (sT2, sW))
A("v_add3_u32 v%d, v%d, v%d, s%d" % (T7, T7, T9, sT2))
A("v_lshl_add_u32 v%d, v%d, 4, v%d" % (vOW4, vG, T7))
A("v_lshl_add_u32 v%d, v%d, 3, v%d" % (vOW2, vG, T7))
A("v_add_u32 v%d, 64, v%d" % (vOW2, vOW2))
A("v_lshlrev_b32 v%d, 4, v%d" % (T7, vLANE))
A("s_mul_i32 s%d, s%d, 784" % (sT2, sW))
A("v_add_u32 v%d, s%d, v%d" % (vRB, sT2, T7))
A("s_mul_i32 s%d, s%d, %d" % (sT1, sTY, 14 * 224 * 384))
A("s_mul_i32 s%d, s%d, %d" % (sT2, sTX, 14 * 384))
A("s_add_u32 s%d, s%d, s%d" % (sT1, sT1, sT2))
A("s_mul_i32 s%d, s%d, 768" % (sT2, sW))
A("s_add_u32 s%d, s%d, s%d" % (sT1, sT1, sT2))
A("v_add_u32 v%d, s%d, v%d" % (vGO, sT1, T7))
A("v_cmp_gt_u32 vcc, 48, v%d" % vLANE)
A("v_mov_b32 v%d, 0x%x" % (T9, HUGE))
A("s_nop 0")
A("v_cndmask_b32 v%d, v%d, v%d, vcc" % (vGO, T9, vGO))
C("s45 = 3072 (second pair offset) or HUGE for wave 3")
A("s_cmp_eq_u32 s%d, 3" % sW); A("s_cselect_b32 s45, 0x%x, 3072" % HUGE) if False else None
A("s_mov_b32 s44, 12288"); A("s_mov_b32 s45, 3072"); A("s_cmp_eq_u32 s%d, 3" % sW); A("s_cselect_b32 s45, 0x%x, s45" % HUGE)
C("U stream voffset; flag store offset (tid==0 && wg<72 -> wg else HUGE); poll offset lane*4 (lane<18)")
A("v_lshlrev_b32 v%d, 4, v%d" % (T0, vLANE))
A("s_mul_i32 s%d, s%d, 3072" % (sT2, sW))
A("v_add_u32 v%d, s%d, v%d" % (vUO, sT2, T0))
A("v_cmp_eq_u32 vcc, 0, v0")
A("s_and_b32 s%d, s2, 3" % sT1); A("s_lshl_b32 s%d, s%d, 6" % (sT1, sT1)); A("s_lshr_b32 s%d, s2, 2" % sT2); A("s_add_u32 s%d, s%d, s%d" % (sT1, sT1, sT2))
A("s_cmp_lt_u32 s2, 72"); A("s_cselect_b32 s%d, s%d, 0x%x" % (sT2, sT1, HUGE))
A("v_mov_b32 v%d, s%d" % (T0, sT2))
A("v_cndmask_b32 v%d, v%d, v%d, vcc" % (vFLO, T9, T0))
C("T matrices")
A("v_lshlrev_b32 v%d, 2, v%d" % (T7, T3))
A("v_lshlrev_b32 v%d, 1, v%d" % (T9, T6))
A("v_sub_u32 v%d, v%d, v%d" % (T7, T7, T9))
A("v_cmp_eq_u32 vcc, 7, v%d" % T6)
A("v_add_u32 v%d, 64, v%d" % (T9, T7))
A("s_nop 0")
A("v_cndmask_b32 v%d, v%d, v%d, vcc" % (T7, T7, T9))
P1, M1 = 0x3F80, 0xBF80
tab = {0: ((0, P1, 2, M1), (1, P1, 2, P1)), 1: ((1, M1, 2, P1), (1, P1, 3, M1))}
A("v_cmp_eq_u32 s[60:61], 1, v%d" % T8)
for nt in range(2):
    (a0, va0, b0, vb0), (a1, va1, b1, vb1) = tab[nt]
    for (dst, x0, x1) in ((XA, a0, a1), (XB, va0, va1), (XC, b0, b1), (XD, vb0, vb1)):
        A("v_mov_b32 v%d, 0x%x" % (dst, x0))
        A("v_mov_b32 v%d, 0x%x" % (XE, x1))
        A("v_cndmask_b32 v%d, v%d, v%d, s[60:61]" % (dst, dst, XE))
    for ep in range(4):
        for hh in range(2):
            e = 2 * ep + hh
            off = 8 * (e >> 2) + (e & 3)
            dst = T0 if hh == 0 else T1
            A("v_add_u32 v%d, %d, v%d" % (T9, off, T7))
            A("v_cmp_eq_u32 vcc, v%d, v%d" % (T9, XA))
            A("v_cmp_eq_u32 s[62:63], v%d, v%d" % (T9, XC))
            A("s_nop 0")
            A("v_cndmask_b32 v%d, 0, v%d, vcc" % (dst, XB))
            A("v_cndmask_b32 v%d, v%d, v%d, s[62:63]" % (dst, dst, XD))
        A("v_lshl_or_b32 v%d, v%d, 16, v%d" % (16 + 4 * nt + ep, T1, T0))
calc2 = E.out; E.out = _save; sT0, sT1, sT2 = _t
def interleave(units, calc, per):
    calc = [c for c in calc if not c.strip().startswith(";")]
    ci = 0
    for u in units:
        for x in u:
            A(x[0])
            if x[1]: vm.issue(x[1])
        k = 0
        while ci < len(calc) and (k < per or calc[ci].strip().startswith("s_cselect") or calc[ci - 1].strip().startswith("s_cmp")):
            E.out.append(calc[ci]); ci += 1; k += 1
    return calc[ci:]
rest = interleave(units1[:12], calc1, 4)
assert not rest, len(rest)
rest = interleave(units1[12:] + units2, calc2, 5)
E.out += rest
stamp(2)
stamp(2)
C("U task compute")
vm.need("UG", A)
stamp(2)
for i in range(18): A("v_lshlrev_b32 v%d, 16, v%d" % (UG + i, UG + i))
RRg = UG + 18; TTg = UG + 24; URg = UG + 26; ORg = UG + 58
for e in range(2):
    g = lambda a, b: UG + (3 * a + b) * 2 + e
    R = {}
    for b in range(3):
        R[(0, b)] = g(0, b); R[(3, b)] = g(2, b)
        A("v_add_f32 v%d, v%d, v%d" % (TTg, g(0, b), g(2, b)))
        A("v_mul_f32 v%d, 0.5, v%d" % (TTg, TTg))
        A("v_fma_f32 v%d, 0.5, v%d, v%d" % (RRg + b, g(1, b), TTg)); R[(1, b)] = RRg + b
        A("v_fma_f32 v%d, -0.5, v%d, v%d" % (RRg + 3 + b, g(1, b), TTg)); R[(2, b)] = RRg + 3 + b
    ub = URg + 16 * e
    for i in range(4):
        A("v_mov_b32 v%d, v%d" % (ub + 4 * i + 0, R[(i, 0)]))
        A("v_mov_b32 v%d, v%d" % (ub + 4 * i + 3, R[(i, 2)]))
        A("v_add_f32 v%d, v%d, v%d" % (TTg, R[(i, 0)], R[(i, 2)]))
        A("v_mul_f32 v%d, 0.5, v%d" % (TTg, TTg))
        A("v_fma_f32 v%d, 0.5, v%d, v%d" % (ub + 4 * i + 1, R[(i, 1)], TTg))
        A("v_fma_f32 v%d, -0.5, v%d, v%d" % (ub + 4 * i + 2, R[(i, 1)], TTg))
for i in range(4):
    for j in range(4):
        n_ = "-" if i == 0 else ""
        p, pidx = upos(i, j)
        o = ORg + 4 * i + j
        A("v_cvt_pk_bf16_f32 v%d, %sv%d, %sv%d" % (o, n_, URg + 4 * i + j, n_, URg + 16 + 4 * i + j))
        A("s_add_u32 s%d, s%d, %d" % (sT2, sUSB, ugam(p, 0, 0, pidx) * 12288))
        A("buffer_store_dword v%d, v%d, s[%d:%d], s%d offen sc0 sc1" % (o, vUSo, sU, sU + 3, sT2)); vm.issue("UST")
VAR = os.environ.get("VAR", "C")
if not R1E: emit_units(cf_row(1)); emit_units(pc_load(3) + pc_load(4))
if VAR == "A": emit_units(cf_row(2)); emit_units(pc_load(5) + pc_load(6))
stamp(2)
C("w_lat frags -> a0..a71")
vm.need("WL", A)
A("v_add_u32 v%d, s%d, v%d" % (T0, sRB, vTRB)); A("v_add_u32 v%d, s%d, v%d" % (T1, sRB, vTRB + 1))
A("v_add_u32 v%d, s%d, v%d" % (T2, sRB2, vTRB)); A("v_add_u32 v%d, s%d, v%d" % (T3, sRB2, vTRB + 1))
for kc in range(6):
    for t in range(3):
        for h in range(2):
            a = aWL + (kc * 3 + t) * 4 + 2 * h
            base = (T0 if t < 2 else T1) if kc < 4 else (T2 if t < 2 else T3)
            off = (kc if kc < 4 else kc - 4) * STG + 384 * h + (8 if t == 1 else 0)
            A("ds_read_b64_tr_b16 a[%d:%d], v%d offset:%d" % (a, a + 1, base, off)); lg.issue("WLF")
def unpack_rows(js):
    ops = []
    for j in js:
        b = lacc(pc_tile(j), 0)
        dsts = [b] if j in (0, 8) else [lacc(2 * j, 0), b]
        for dbase in dsts:
            for i in range(6):
                ops.append("v_lshlrev_b32 v%d, 16, v%d" % (dbase + 2 * i, b + 6 + i))
                ops.append("v_and_b32 v%d, 0xffff0000, v%d" % (dbase + 2 * i + 1, b + 6 + i))
    return ops
def mwrite(r):
    b = lacc(r, 0)
    ops = [("x", "v_cvt_pk_bf16_f32 v%d, v%d, v%d" % (b + i, b + 2 * i, b + 2 * i + 1), None) for i in range(6)]
    ops.append(("lg", "ds_write_b128 v%d, v[%d:%d] offset:%d" % (vMW4 + (r >> 3), b, b + 3, (r & 7) * RP), "MW"))
    ops.append(("lg", "ds_write_b64 v%d, v[%d:%d] offset:%d" % (vMW2 + (r >> 3), b + 4, b + 5, (r & 7) * RP), "MW"))
    return ops
def pread(r, kc):
    a = aPF + ((r & 1) * 6 + kc) * 4
    return ("lg", "ds_read_b128 a[%d:%d], v%d offset:%d" % (a, a + 3, vLB + (r >> 3), (r & 7) * RP + 64 * kc), "P%d_%d" % (r, kc))

GORD = [(0, 0), (0, 1), (1, 0), (1, 1), (0, 2), (0, 3), (1, 2), (1, 3)]
groups = []
for n in range(12):
    for (ks, pidx) in GORD: groups.append((n, n // 3, n % 3, ks, pidx))
def uload(q, t):
    n, p, kk, ks, pidx = groups[q]
    a = aUF + 12 * (q % 4) + 4 * t
    r = []
    assert ugam(p, kk, ks, pidx) == q
    if t == 0: r.append((("s_mov_b32 s%d, 0" % sUS) if q == 0 else ("s_add_u32 s%d, s%d, s44" % (sUS, sUS)), None))
    r.append(("buffer_load_dwordx4 a[%d:%d], v%d, s[%d:%d], s%d offen offset:%d" % (a, a + 3, vUO, sU, sU + 3, sUS, 1024 * t), "U%d_%d" % (q, t)))
    return r

PCJ = {0: [0, 1, 2], 1: [3, 4], 2: [5, 6], 3: [7, 8]}
for k in range(4):
    need = {"CF%d" % k} | {"PC%d" % j for j in PCJ[k]}
    FK = FKE
    if k == FK: need |= {"UST"}
    if k == 3: need |= {"POLL"}
    vm.need(need, A)
    stamp(2)
    if k == 3:
        C("check flags (wave 0 only); slow path polls again")
        A("s_cmp_lg_u32 s%d, 0" % sW)
        A("s_cbranch_scc1 L_polled")
        A("v_cmp_gt_u32 vcc, 4, v%d" % vP)
        A("v_mov_b32 v%d, 0x01010101" % T4)
        A("v_cmp_eq_u32 s[60:61], 4, v%d" % vP)
        A("v_cndmask_b32 v%d, 0, v%d, vcc" % (T4, T4))
        A("v_mov_b32 v%d, 0x0101" % T3)
        A("v_cndmask_b32 v%d, v%d, v%d, s[60:61]" % (T4, T4, T3))
        L("L_poll")
        A("v_cmp_ne_u32 vcc, v%d, v%d" % (T4, vFLG))
        A("s_nop 1")
        A("s_or_b32 s60, vcc_lo, vcc_hi")
        A("s_cbranch_scc0 L_polled")
        A("s_sleep 20")
        A("buffer_load_dword v%d, v%d, s[%d:%d], 0 offen sc0 sc1" % (vFLG, T5, sDBG, sDBG + 3))
        A("s_waitcnt vmcnt(0)")
        A("s_branch L_poll")
        L("L_polled")
    if k == 0:
        for x in unpack_rows([0]): A(x)
    lg.drain(A)
    A("s_barrier")
    stamp(2)
    units = []
    fu = [("v_mov_b32 v%d, 1" % T4, None), ("buffer_store_byte v%d, v%d, s[%d:%d], 0 offen sc0 sc1" % (T4, vFLO, sDBG, sDBG + 3), "FLAG")]
    FLAST = int(os.environ.get("FLAST", "0"))
    if k == FK and not FLAST: units.append(fu)
    if k == 0 and VAR != "A": units += cf_row(2) + pc_load(5) + pc_load(6)
    if k == R3S: units += cf_row(3) + pc_load(7) + pc_load(8)
    if k == FK and FLAST: units.append(fu)
    if k == 2:
        for _ in range(PPOS): units.append([("s_nop 0", None)])
        units.append([("v_lshlrev_b32 v%d, 2, v0" % (T5,), None),
                      ("buffer_load_dword v%d, v%d, s[%d:%d], 0 offen sc0 sc1" % (vFLG, T5, sDBG, sDBG + 3), "POLL")])
    if k == 3:
        w = [("s_lshr_b32 s%d, s2, 3" % sT1, None), ("s_mul_i32 s%d, s%d, 36864" % (sT1, sT1), None)]
        units.append(w)
        for i in range(3):
            for n in range(3):
                u = [("buffer_load_dwordx4 a[%d:%d], v%d, s[%d:%d], s%d offen offset:%d" % (128 + 12 * i + 4 * n, 131 + 12 * i + 4 * n, vUO, sU, sU + 3, sT1, 1024 * n), "WARM")]
                if n == 2 and i < 2: u.append(("s_add_u32 s%d, s%d, 12288" % (sT1, sT1), None))
                units.append(u)

    q1 = [(x, None, 4, 4 * k + 1) for x in unpack_rows([2 * k + 1])]
    q2 = [(x, None, 4, 4 * k + 3) for x in unpack_rows([2 * k + 2])]
    mw = []
    if k > 0:
        for r in range(4 * k - 4, 4 * k):
            for x in mwrite(r): mw.append((x[1], x[2], 8 if x[2] else 4, 99))
    zz = [("v_mov_b32 v%d, 0" % (ACC + i), None, 4, 99) for i in range(48)] if k == 3 else []
    sq = q1 + mw[:16] + q2 + mw[16:] + zz
    for kc in range(6):
        x = pread(4 * k, kc); A(x[1]); lg.issue(x[2])
    for _ in range(12):
        x = sq.pop(0); A(x[0])
    if k == 0: lg.need("WLF", A)
    for r in range(4 * k, 4 * k + 4):
        fl = False
        while any(x[3] <= r for x in sq):
            x = sq.pop(0); A(x[0]); fl = True
            if x[1]: lg.issue(x[1])
        if fl: A("s_nop 1")
        lg.need({"P%d_%d" % (r, kc) for kc in range(3)}, A)
        for kc in range(6):
            for d in range(3):
                a = lacc(r, d); w = aWL + (kc * 3 + d) * 4; p = aPF + ((r & 1) * 6 + kc) * 4
                A("v_mfma_f32_16x16x32_bf16 v[%d:%d], a[%d:%d], a[%d:%d], v[%d:%d]" % (a, a + 3, w, w + 3, p, p + 3, a, a + 3))
                bud = 8
                if d == 0 and r < 4 * k + 3:
                    x = pread(r + 1, kc); A(x[1]); lg.issue(x[2]); bud -= 4
                if d == 2 and kc == 2:
                    n0 = len(E.out); lg.need({"P%d_%d" % (r, c2) for c2 in range(3, 6)}, A)
                    if len(E.out) > n0: bud -= 4
                if d == 2 and kc == 5: bud -= 4
                if d == 1 and units:
                    for x in units.pop(0):
                        A(x[0])
                        if x[1]: vm.issue(x[1])
                    bud = 0
                while sq and sq[0][2] <= bud:
                    x = sq.pop(0); A(x[0]); bud -= x[2]
                    if x[1]: lg.issue(x[1])
    for x in sq:
        A(x[0])
        if x[1]: lg.issue(x[1])
    mw = []
    for u in units:
        for x in u:
            A(x[0])
            if x[1]: vm.issue(x[1])
    assert not mw
lg.drain(A)
A("s_barrier")
stamp()
A("s_nop 4")
for r in range(12, 16):
    for x in mwrite(r): A(x[1])
A("s_waitcnt lgkmcnt(0)")
A("s_barrier")
stamp()


aVA = aT + 8
aSV = 0
aOR = 96
sPAR, sKK, sPASS, sD1, sSPC = 60, 61, 62, 63, 40
def out_block():
    o = ["v_add_u32 v24, %d, v%d" % (8 * RP, vRB)]
    for k in range(14):
        rho = k >> 1; pr = k & 1
        off = 2 * rho * RP + pr * 4 * 784; base = vRB
        if rho >= 4: off -= 8 * RP; base = 24
        o.append("ds_read_b128 a[%d:%d], v%d offset:%d" % (aOR + 4 * k, aOR + 4 * k + 3, base, off))
    for k in range(14):
        rho = k >> 1; pr = k & 1
        o.append(("s_mov_b32 s%d, %d" % (sT0, 2 * rho * 224 * 384)) if pr == 0 else ("s_add_u32 s%d, s%d, s45" % (sT0, sT0)))
        o.append("s_waitcnt lgkmcnt(%d)" % (13 - k))
        o.append("buffer_store_dwordx4 a[%d:%d], v%d, s[%d:%d], s%d offen" % (aOR + 4 * k, aOR + 4 * k + 3, vGO, sOUT, sOUT + 3, sT0))
    o += ["s_cmp_eq_u32 s%d, 3" % sKK, "s_cbranch_scc1 L_fin"]
    return o
def acc(j, mt, t): return ACC + ((j * 4 + mt) * 3 + t) * 4
def pk(dst, a, b, neg=False):
    return "v_pk_add_f32 v[%d:%d], v[%d:%d], v[%d:%d]%s" % (dst, dst + 1, a, a + 1, b, b + 1, " neg_lo:[0,1] neg_hi:[0,1]" if neg else "")
def vgen_tr(k):
    x = aVA + 4 * (k & 1); base = vTA if k < 4 else vTAH
    return [("ds_read_b64_tr_b16 a[%d:%d], v%d offset:%d" % (x + 2 * h, x + 2 * h + 1, base, (k & 3) * 2 * RP + h * 8 * PP), "VA%d" % (k & 1)) for h in range(2)]
def vgen_mfma(k, which):
    x = aVA + 4 * (k & 1); tt = 16 + 4 * which; d = vVT + 4 * which
    return "v_mfma_f32_16x16x32_bf16 v[%d:%d], a[%d:%d], v[%d:%d], 0" % (d, d + 3, x, x + 3, tt, tt + 3)
def vgen_out(k, which):
    d = vVT + 4 * which
    return [("v_cvt_pk_bf16_f32 v%d, v%d, v%d" % (d, d, d + 1), None), ("v_cvt_pk_bf16_f32 v%d, v%d, v%d" % (d + 1, d + 2, d + 3), None),
            ("ds_write_b64 v%d, v[%d:%d] offset:%d" % (vVW, d, d + 1, which * 14336 + k * 1024), "VW")]
def bread(gi, mt):
    ks, pidx = GORD[gi]
    b = vBF + 16 * (gi & 1) + 4 * mt
    reg = (15 if ks else 14) if mt == 3 else (vBR1 if ks else vBR0)
    return ("ds_read_b128 v[%d:%d], v%d offset:%d" % (b, b + 3, reg, pidx * 7168 + mt * 2048), "B%d_%d" % (gi, mt))
def uld(gi, t):
    a = aUF + 12 * (gi % 4) + 4 * t
    return ("buffer_load_dwordx4 a[%d:%d], v%d, s[%d:%d], s%d offen offset:%d" % (a, a + 3, vUO, sU, sU + 3, sUS, 1024 * t), "U%d_%d" % (gi % 8, t))

C("V-gen chunk 0 (pipelined) + zero tiles j=3 + first U loads")
ul0 = []
for q in range(4):
    for t in range(3): ul0.append(uload(q, t))
def pop_ul():
    if ul0:
        for x in ul0.pop(0):
            A(x[0])
            if x[1]: vm.issue(x[1])
for k in range(7):
    base = vTA if k < 4 else vTAH
    for h in range(2):
        A("ds_read_b64_tr_b16 a[%d:%d], v%d offset:%d" % (96 + 4 * k + 2 * h, 97 + 4 * k + 2 * h, base, (k & 3) * 2 * RP + h * 8 * PP)); lg.issue("V0_%d" % k)
zq = ["v_mov_b32 v%d, 0" % (acc(3, 0, 0) + i) for i in range(48)]
for i in range(8): A(zq.pop(0))
dtmp = lambda k, w2: acc(1, 0, 0) + (2 * k + w2) * 4
for k in range(7):
    lg.need("V0_%d" % k, A)
    for w2 in range(2):
        d = dtmp(k, w2)
        A("v_mfma_f32_16x16x32_bf16 v[%d:%d], a[%d:%d], v[%d:%d], 0" % (d, d + 3, 96 + 4 * k, 99 + 4 * k, 16 + 4 * w2, 19 + 4 * w2))
        A(zq.pop(0)); A(zq.pop(0))
for k in range(7):
    for w2 in range(2):
        d = dtmp(k, w2)
        A("v_cvt_pk_bf16_f32 v%d, v%d, v%d" % (d, d, d + 1)); A("v_cvt_pk_bf16_f32 v%d, v%d, v%d" % (d + 1, d + 2, d + 3))
        A("ds_write_b64 v%d, v[%d:%d] offset:%d" % (vVW, d, d + 1, w2 * 14336 + k * 1024)); lg.issue("VW")
        if zq: A(zq.pop(0))
        pop_ul()
assert not zq and not ul0
A("v_add_u32 v%d, 128, v%d" % (vTA, vTA)); A("v_add_u32 v%d, 128, v%d" % (vTAH, vTAH))
A("v_add_u32 v%d, %d, v%d" % (vVW, VS, vVW))
for x in vgen_tr(0): A(x[0]); lg.issue(x[1])
A("s_mov_b32 s%d, %d" % (sPAR, VS)); A("s_mov_b32 s%d, 0" % sPASS)
lg.drain(A)
A("s_barrier")
stamp()
for mt in range(4):
    x = bread(0, mt); A(x[0]); lg.issue(x[1])
C("all 12 first loads are waited here once so that the loop's counted waits are conservative")

def body(emit, first, lgt, vmt, name):
    X = lambda t: ("x", t, None)
    va = lambda r, sr: X("v_add_u32 v%d, s%d, v%d" % (r, sr, r))
    for gi in range(8):
        ks, pidx = GORD[gi]
        vg = gi < 7
        seq = ["m0", "m1", "m2", "v0", "m3", "v1", "m4", "m5", "m6", "m7", "m8", "m9", "m10", "m11"] if vg else ["m%d" % i for i in range(12)]
        fill = {k: [] for k in seq}
        fill["m0"].append(("vm",) + uld(gi + 3, 2))
        R = [("lg",) + bread((gi + 1) % 8, mt) for mt in range(4)]
        S = X("s_add_u32 s%d, s%d, s44" % (sUS, sUS))
        L0 = ("vm",) + uld(gi + 4, 0); L1 = ("vm",) + uld(gi + 4, 1)
        if vg:
            o0 = vgen_out(gi, 0); o1 = vgen_out(gi, 1)
            fill["m1"] += [R[0], S]; fill["m2"].append(R[1]); fill["v0"].append(R[2]); fill["m3"].append(R[3])
            fill["v1"].append(L0)
            if gi < 6:
                T = [("lg",) + x for x in vgen_tr(gi + 1)]
                fill["m4"].append(T[0]); fill["m5"].append(T[1])
            if gi == 5:
                fill["m2"].append(va(vBR0, sPAR)); fill["v0"].append(va(14, sPAR))
            if gi == 6:
                if first:
                    fill["m2"].append(X("v_add_u32 v%d, 128, v%d" % (vTA, vTA))); fill["v0"].append(X("v_add_u32 v%d, 128, v%d" % (vTAH, vTAH)))
                    fill["m4"] += [va(vBR1, sPAR), va(15, sPAR)]
                    fill["m5"].append(X("s_nop 0"))
                else:
                    fill["m2"].append(va(vTA, sD1)); fill["v0"].append(va(vTAH, sD1))
                    fill["m3"].append(X("s_mov_b32 s%d, 128" % sD1))
                    fill["m4"] += [X("s_cmp_lg_u32 s%d, 0" % sSPC), X("s_cbranch_scc1 L_special"), X("@L_special_ret")]
                    fill["m5"].append(va(vBR1, sPAR))
                    fill["m8"].append(va(15, sPAR))
            fill["m5"].append(("x",) + o0[0]); fill["m6"].append(("x",) + o0[1]); fill["m6"].append(("x",) + o1[0])
            fill["m7"].append(("lg",) + o0[2]); fill["m8"].append(("x",) + o1[1])
            fill["m9"].append(L1)
            fill["m10"].append(("lg",) + o1[2])
        else:
            T = [("lg",) + x for x in vgen_tr(0)]
            fill["m1"] += [S]
            fill["m2"] += [("bar",)]
            fill["m3"].append(L0)
            fill["m4"] += [R[0], X("v_subrev_u32 v%d, s%d, v%d" % (vVW, sPAR, vVW))]
            fill["m5"] += [R[1], X("s_sub_u32 s%d, 0, s%d" % (sPAR, sPAR))]
            fill["m6"] += [R[2]]
            fill["m7"] += [R[3]]
            fill["m8"].append(L1)
            fill["m9"] += [T[0]]
            fill["m10"] += [T[1]]
            if not first:
                fill["m9"].append(X("s_add_u32 s%d, s%d, 1" % (sKK, sKK)))
                fill["m10"].append(X("s_cmp_lt_u32 s%d, 3" % sKK))
                fill["m11"].append(X("s_cbranch_scc1 L_body"))
            else:
                fill["m6"].append(X("s_mov_b32 s%d, 1" % sKK))
                fill["m7"].append(X("s_mov_b32 s%d, -256" % sD1))
                fill["m9"].append(X("s_cmp_eq_u32 s%d, 2" % sPASS))
                fill["m10"].append(X("s_cselect_b32 s%d, %d, s%d" % (sD1, RP - 256, sD1)))
        ws_ = []
        vmt.need({"U%d_%d" % (gi, t) for t in range(3)}, ws_.append)
        lgt.need({"B%d_%d" % (gi, mt) for mt in range(4)} | ({"VA%d" % (gi & 1)} if vg else set()), ws_.append)
        if ws_: emit("s_waitcnt " + " ".join(x.split()[1] for x in ws_))
        for k in seq:
            if k[0] == "m":
                i = int(k[1:]); t = i // 4; mt = i % 4
                d = acc(pidx, mt, t); u = aUF + 12 * (gi % 4) + 4 * t; b = vBF + 16 * (gi & 1) + 4 * mt
                z = first and ks == 0 and pidx in (1, 2)
                emit("v_mfma_f32_16x16x32_bf16 v[%d:%d], a[%d:%d], v[%d:%d], %s" % (d, d + 3, u, u + 3, b, b + 3, "0" if z else "v[%d:%d]" % (d, d + 3)))
            else:
                emit(vgen_mfma(gi, int(k[1])))
            for f in fill[k]:
                if f[0] == "bar": lgt.drain(emit); emit("s_barrier"); continue
                emit(f[1])
                if f[2]: (lgt if f[0] == "lg" else vmt).issue(f[2])

lgt = Trk("lgkmcnt", 15); vmt = Trk("vmcnt", 63)
tmp = []
body(tmp.append, False, lgt, vmt, "x"); body(tmp.append, False, lgt, vmt, "x")
b0 = []; body(b0.append, True, lgt, vmt, "b0")
b1 = []; body(b1.append, False, lgt, vmt, "b1")
b2 = []; body(b2.append, False, lgt, vmt, "b1")
assert b1 == b2
def emit_body(b):
    for x in b:
        if x.startswith("@"): L(x[1:])
        else: A(x)
C("entering loop: the first group's L2 load (group 3 frag 2) is redundant on entry; sUS must point at group 3")
A("s_waitcnt vmcnt(0)")
def pstamp(base):
    if not (STAMPS and CH == 4): return
    A("%s s[42:43]" % ("s_memrealtime" if STAMPS >= 2 else "s_memtime")); A("s_waitcnt lgkmcnt(0)")
    for p in range(4):
        A("s_cmp_eq_u32 s%d, %d" % (sPASS, p))
        A("s_cselect_b32 s%d, s42, s%d" % (sSTAMP + 2 * (base + 2 * p), sSTAMP + 2 * (base + 2 * p)))
        A("s_cselect_b32 s%d, s43, s%d" % (sSTAMP + 2 * (base + 2 * p) + 1, sSTAMP + 2 * (base + 2 * p) + 1))
PB = nst[0]
if STAMPS and CH == 4: nst[0] += 8
L("L_pass")
pstamp(PB)
A("s_add_u32 s%d, s%d, 1" % (sSPC, sPASS)); A("s_cmp_lt_u32 s%d, 2" % sPASS); A("s_cselect_b32 s%d, s%d, 0" % (sSPC, sSPC))
emit_body(b0)
L("L_body")
emit_body(b1)
A("s_nop 2")
pstamp(PB + 1)
C("---- pass end")
kept = [acc(0, 0, 0) + i for i in range(48)] + [acc(3, 0, 0) + i for i in range(48)]
def wt_pair(tl):
    o = []
    Z = [[acc(j, mt, t) for j in range(4)] for (mt, t) in tl]
    for z in Z:
        for h in (0, 2): o.append(pk(z[3] + h, z[3] + h, z[2] + h))
    for z in Z:
        for h in (0, 2): o.append(pk(z[2] + h, z[1] + h, z[2] + h))
    for z in Z:
        for h in (0, 2): o.append(pk(z[3] + h, z[3] + h, z[1] + h, True))
    for z in Z:
        for h in (0, 2): o.append(pk(z[0] + h, z[0] + h, z[2] + h))
    return o
A("s_cmp_ge_u32 s%d, 2" % sPASS); A("s_cbranch_scc1 L_e2")
A("s_nop 2")
for mt in range(4):
    for x in wt_pair([(mt, t) for t in range(3)]): A(x)
A("s_cmp_eq_u32 s%d, 1" % sPASS); A("s_cbranch_scc1 L_e1")
C("E0: save R1")
for i, v in enumerate(kept): A("v_accvgpr_write_b32 a%d, v%d" % (aSV + i, v))
A("s_branch L_next")
L("L_e1")
C("E1: D = 2*R1 - S   (8 regs per step, in-place temps, software pipelined)")
E1T = acc(1, 0, 0)
def rd8(i): return ["v_accvgpr_read_b32 v%d, a%d" % (E1T + 8 * ((i // 8) & 1) + r, aSV + i + r) for r in range(8)]
for x in rd8(0): A(x)
for i in range(0, 96, 8):
    x = E1T + 8 * ((i // 8) & 1)
    for h in (0, 2, 4, 6):
        A("v_pk_fma_f32 v[%d:%d], v[%d:%d], 2.0, v[%d:%d] op_sel_hi:[1,0,1] neg_lo:[0,0,1] neg_hi:[0,0,1]" % (x + h, x + h + 1, x + h, x + h + 1, kept[i] + h, kept[i] + h + 1))
    if i + 8 < 96:
        for y in rd8(i + 8): A(y)
    for r in range(8): A("v_accvgpr_write_b32 a%d, v%d" % (aSV + i + r, x + r))
A("s_branch L_next")
L("L_e2")
C("E2/E3: fused W transform + pack + stage to LDS; packed data goes into dead tiles j=1 (b=0) / j=2 (b=1)")
A("v_add_u32 v28, %d, v%d" % (8 * RP, vOW4)); A("v_add_u32 v29, %d, v%d" % (8 * RP, vOW2))
A("s_nop 0")
pend = []
for mt in range(4):
    va_ = wt_pair([(mt, t) for t in range(3)]); wr = []
    for bb in range(2):
        ng = "-" if bb else ""; jj = 3 if bb else 0
        dst = acc(1 + bb, mt, 0)
        for t in range(3):
            z = acc(jj, mt, t)
            va_.append("v_cvt_pk_bf16_f32 v%d, %sv%d, %sv%d" % (dst + 2 * t, ng, z, ng, z + 1))
            va_.append("v_cvt_pk_bf16_f32 v%d, %sv%d, %sv%d" % (dst + 2 * t + 1, ng, z + 2, ng, z + 3))
        o = (mt & 1) * 4 * RP + 384 * bb
        wr.append("ds_write_b128 v%d, v[%d:%d] offset:%d" % (28 if mt >= 2 else vOW4, dst, dst + 3, o))
        wr.append("ds_write_b64 v%d, v[%d:%d] offset:%d" % (29 if mt >= 2 else vOW2, dst + 4, dst + 5, o))
    for i, x in enumerate(va_):
        A(x)
        if pend and i % 9 == 4: A(pend.pop(0))
    pend = wr
for x in pend: A(x)
rs_ = ["v_accvgpr_read_b32 v%d, a%d" % (v, aSV + i) for i, v in enumerate(kept)]
for _ in range(12): A(rs_.pop(0))
A("s_waitcnt lgkmcnt(0)")
A("s_barrier")
ob = out_block()[:-2]
for x in ob[:15]: A(x)
ob = ob[15:]
for k in range(14):
    for x in ob[3 * k:3 * k + 3]: A(x)
    if k < 13:
        A("s_cbranch_vccnz L_skip%d" % k) if False else None
    for _ in range(6):
        if rs_: A(rs_.pop(0))
assert not rs_
A("s_cmp_eq_u32 s%d, 3" % sPASS); A("s_cbranch_scc1 L_fin")
A("v_add_u32 v%d, %d, v%d" % (vOW4, RP, vOW4)); A("v_add_u32 v%d, %d, v%d" % (vOW2, RP, vOW2))
A("v_add_u32 v%d, %d, v%d" % (vRB, RP, vRB))
A("v_add_u32 v%d, %d, v%d" % (vGO, 224 * 384, vGO))
L("L_next")
A("s_add_u32 s%d, s%d, 1" % (sPASS, sPASS))
A("s_branch L_pass")
L("L_special")
A("s_cmp_eq_u32 s%d, 2" % sSPC); A("s_mov_b32 s%d, 0" % sSPC); A("s_cbranch_scc1 L_sp2")
A("v_cmp_ne_u32 vcc, 0, v%d" % vRHO)
A("v_mov_b32 v12, 0x80008000")
A("s_nop 0")
A("v_cndmask_b32 v12, 0, v12, vcc")
for i in range(8): A("v_xor_b32 v%d, v%d, v12" % (16 + i, 16 + i))
A("s_branch L_special_ret")
L("L_sp2")
A("v_sub_u32 v%d, v%d, v%d" % (vTA, vTA, vRHO)); A("v_sub_u32 v%d, v%d, v%d" % (vTAH, vTAH, vRHO))
A("s_branch L_special_ret")

L("L_fin")
stamp()
if STAMPS:
    A("s_waitcnt vmcnt(0)")
    stamp()
    n = nst[0]
    if os.environ.get("DIAG"):
        i, j, K = [int(x) for x in os.environ["DIAG"].split(",")]
        A("s_sub_u32 s40, s%d, s%d" % (sSTAMP + 2 * j, sSTAMP + 2 * i))
        A("s_mul_i32 s40, s40, %d" % K)
        A("s_add_u32 s40, s40, s%d" % (sSTAMP + 2 * (n - 1)))
        L("L_diag")
        A("s_memrealtime s[42:43]"); A("s_waitcnt lgkmcnt(0)")
        A("s_sub_u32 s41, s42, s40"); A("s_cmp_lt_i32 s41, 0"); A("s_cbranch_scc1 L_diag")
        A("s_endpgm")
    sWS = 24; A("s_mov_b32 s%d, s100" % sWS); A("s_mov_b32 s%d, s101" % (sWS + 1)); A("s_mov_b32 s%d, 0x10000000" % (sWS + 2)); A("s_mov_b32 s%d, 0x00020000" % (sWS + 3))
    A("s_lshl_b32 s%d, s2, 2" % sT0)
    A("s_add_u32 s%d, s%d, s%d" % (sT0, sT0, sW))
    A("s_mul_i32 s%d, s%d, %d" % (sT0, sT0, 8 * n))
    A("s_add_u32 s%d, s%d, 0x1000000" % (sT0, sT0))
    A("v_mov_b32 v16, s%d" % sT0)
    A("v_and_b32 v17, 63, v0")
    A("v_cmp_eq_u32 vcc, 0, v17")
    A("s_and_saveexec_b64 s[40:41], vcc")
    for i in range(n):
        A("v_mov_b32 v18, s%d" % (sSTAMP + 2 * i))
        A("v_mov_b32 v19, s%d" % (sSTAMP + 2 * i + 1))
        A("buffer_store_dwordx2 v[18:19], v16, s[%d:%d], 0 offen offset:%d" % (sWS, sWS + 3, 8 * i))
        A("s_nop 1")
    sys.stderr.write("nstamps=%d\n" % n)
L("L_end")
A("s_endpgm")
errs = hazard_check(E.out[main_start:])
sys.stderr.write("hazard errors: %d\n" % errs)
E.raw(""".section .rodata,"a"
.p2align 6
.amdhsa_kernel %s
  .amdhsa_next_free_vgpr 512
  .amdhsa_next_free_sgpr 102
  .amdhsa_accum_offset 256
  .amdhsa_group_segment_fixed_size 0
  .amdhsa_kernarg_size 56
  .amdhsa_user_sgpr_count 2
  .amdhsa_user_sgpr_kernarg_segment_ptr 1
  .amdhsa_system_sgpr_workgroup_id_x 1
.end_amdhsa_kernel""" % KN)
print(E.text())
```

```python
import sys, os
from common import *
STAMPS = int(sys.argv[1]) if len(sys.argv) > 1 else 0
KN = "standalone__detection_seg_fpn_lateral__vision_kernel"
PP = int(os.environ.get('PP', '400')); CPP = PP // 16; RP = 16 * PP; VB = 16 * RP; VS = 28672; STG = 3072
VB1 = VB + VS; RX = VB + 2 * VS; LDS = 163840
HUGE = 0x40000000
SZ_CF = 224 * 224 * 384; SZ_PC = 112 * 112 * 384; SZ_WL = 192 * 384; SZ_WO = 9 * 192 * 384; SZ_OUT = SZ_CF
SZ_U = 96 * 12288
E = Em(); A = E.A; L = E.L; C = E.C
E.raw("; @launch grid=(256,1,1) block=(256,1,1) lds=%d" % LDS)
E.raw('.amdgcn_target "amdgcn-amd-amdhsa--gfx950"')
E.raw(".text")
def upos(i, j): return ({1: 0, 2: 1, 0: 2, 3: 3}[i], j)
def ugam(p, kk, ks, pidx): return p * 24 + kk * 8 + (pidx >> 1) * 4 + ks * 2 + (pidx & 1)

vBR0, vBR1, vVW, vTA, vTAH, vUO, vSO4, vSO2, vSO4b, vSO2b, vRHO = 1, 2, 3, 4, 5, 6, 7, 8, 9, 10, 11
vX = 12; vVA = 16; vVT = 24; vBF = 32; ACC = 64
vLANE, vP, vG = 32, 33, 34
T0, T1, T2, T3, T4, T5, T6, T7, T8, T9 = 35, 36, 37, 38, 39, 40, 41, 42, 43, 44
vLB = 45; vMW4 = 47; vMW2 = 49; vTRB = 51; vWD = 54; vCFN, vCFL, vCFR = 57, 58, 59; vQR4, vQR2 = 60, 61; vUL, vUSo = 62, 63; vQO = 53; vLB2 = 30; vCX = 31
vFLG, vFLO = 12, 13
XA, XB, XC, XD, XE, XF = 24, 25, 26, 27, 28, 29
aWL = 0; aPF = 72
aUF = 192; aT = 240
sCF, sPC, sWL, sU, sOUT, sWO, sDBG = 4, 8, 12, 16, 20, 24, 56
sW, sTY, sTX, sRB, sRB2, sDSO, sT0, sT1, sT2, sT3, sCFB, sCFL, sUS, sPCB, sUT, sUSB = 28, 29, 30, 31, 32, 33, 35, 39, 52, 53, 37, 36, 54, 55, 34, 38
sSTAMP = 64
def lacc(t, d): return ACC + (t * 3 + d) * 4
nst = [0]
CH = int(os.environ.get("CHSTAMP", "0"))
def stamp(kind=0):
    if not STAMPS: return
    if kind != 0 and kind != CH: return
    i = nst[0]; nst[0] += 1
    assert sSTAMP + 2 * i + 1 < 98
    A("%s s[%d:%d]" % ("s_memrealtime" if STAMPS >= 2 else "s_memtime", sSTAMP + 2 * i, sSTAMP + 2 * i + 1))
    A("s_waitcnt lgkmcnt(0)"); lg.clear()
lg = Trk("lgkmcnt", 15); vm = Trk("vmcnt", 63)

E.raw(".globl %s\n.p2align 8\n.type %s,@function\n%s:" % (KN, KN, KN))
main_start = len(E.out)
vOW4, vOW2, vRB, vGO = 7, 8, 9, 10


A("s_getpc_b64 s[98:99]")
L("L_pc")
A("s_cmp_ge_u32 s2, 256")
A("s_cbranch_scc1 L_end")
C("warm L2 with this kernel's own code (read-only data loads, result unused)")
A("v_mul_u32_u24 v250, 128, v0")
A("v_min_u32 v251, L_end-L_pc, v250")
A("global_load_dword v251, v251, s[98:99]"); vm.issue("CW")
stamp()
A("s_load_dwordx8 s[40:47], s[0:1], 0")
A("s_load_dwordx4 s[48:51], s[0:1], 32")
A("s_load_dwordx2 s[100:101], s[0:1], 48")
A("v_lshrrev_b32 v%d, 6, v0" % T0)
A("v_and_b32 v%d, 63, v0" % vLANE)
A("v_readfirstlane_b32 s%d, v%d" % (sW, T0))
A("v_and_b32 v%d, 15, v0" % vP)
A("v_lshrrev_b32 v%d, 4, v%d" % (vG, vLANE))
A("s_and_b32 s%d, s2, 7" % sT0)
A("s_lshl_b32 s%d, s%d, 5" % (sT0, sT0))
A("s_lshr_b32 s%d, s2, 3" % sT1)
A("s_add_u32 s%d, s%d, s%d" % (sT0, sT0, sT1))
A("s_lshr_b32 s%d, s%d, 4" % (sTY, sT0))
A("s_and_b32 s%d, s%d, 15" % (sTX, sT0))
A("v_mov_b32 v%d, 0x%x" % (vUSo, HUGE)); A("v_mov_b32 v%d, 0x%x" % (vFLO, HUGE))
A("s_cmp_ge_u32 s%d, 2" % sW)
A("s_cbranch_scc1 L_w23")
sCF0, sMC, sMR, sWHG = 3, 98, 0, 24
vQN, vQL, vQR = 45, 46, 47
vRR = 60; vMW = 47
def capture(f):
    sv = E.out; E.out = []
    f()
    r = [c for c in E.out if not c.strip().startswith(";")]; E.out = sv
    return r
NPW = 144
def calcU():
    sT0, sT1 = 31, 32
    C("task = 2wg + w ; blk = wg>>1 ; g = 2(wg&1) + w -> s33")
    A("s_lshr_b32 s%d, s2, 1" % sT0)
    A("s_and_b32 s33, s2, 1"); A("s_lshl_b32 s33, s33, 1"); A("s_add_u32 s33, s33, s%d" % sW)
    A("s_mul_i32 s60, s%d, 43691" % sT0); A("s_lshr_b32 s60, s60, 19")
    A("s_mul_i32 s61, s60, 12"); A("s_sub_u32 s61, s%d, s61" % sT0)
    A("s_mul_i32 s62, s61, 21846"); A("s_lshr_b32 s62, s62, 16")
    A("s_mul_i32 s63, s62, 3"); A("s_sub_u32 s63, s61, s63")
    A("v_lshrrev_b32 v%d, 2, v%d" % (T1, vLANE))
    A("v_and_b32 v%d, 3, v%d" % (T2, vLANE))
    A("v_lshrrev_b32 v%d, 2, v%d" % (T3, T1)); A("v_and_b32 v%d, 3, v%d" % (T4, T1))
    A("v_lshl_add_u32 v%d, v%d, 3, v%d" % (T3, T3, T4))
    A("s_lshl_b32 s%d, s63, 2" % sT0)
    A("v_add_u32 v%d, s%d, v%d" % (T3, sT0, T3))
    A("v_add_u32 v%d, 32, v%d" % (T4, T1))
    A("s_cmp_eq_u32 s63, 2"); A("s_cselect_b64 vcc, -1, 0")
    A("v_cndmask_b32 v%d, v%d, v%d, vcc" % (T3, T3, T4))
    A("s_mul_i32 s%d, s62, 96" % sT0)
    A("s_mul_i32 s%d, s33, %d" % (sT1, 8 * 384))
    A("s_add_u32 s%d, s%d, s%d" % (sT0, sT0, sT1))
    A("v_lshlrev_b32 v%d, 1, v%d" % (T3, T3))
    A("v_mul_u32_u24 v%d, 768, v%d" % (T4, T2))
    A("v_add3_u32 v%d, v%d, v%d, s%d" % (vUL, T3, T4, sT0))
    A("s_mul_i32 s%d, s60, 12288" % sUT)
def calcU2():
    sT0, sT1 = 31, 32
    A("s_lshl_b32 s%d, s61, 10" % sT0); A("s_lshl_b32 s%d, s33, 8" % sT1); A("s_add_u32 s%d, s%d, s%d" % (sT0, sT0, sT1))
    A("v_lshlrev_b32 v%d, 2, v%d" % (T3, vLANE))
    A("v_add_u32 v%d, s%d, v%d" % (vUSo, sT0, T3))
    A("s_lshr_b32 s%d, s60, 1" % sT0); A("s_lshl_b32 s%d, s%d, 3" % (sT0, sT0)); A("s_and_b32 s%d, s60, 1" % sT1); A("s_lshl_b32 s%d, s%d, 1" % (sT1, sT1))
    A("s_add_u32 s%d, s%d, s%d" % (sT0, sT0, sT1)); A("s_mul_i32 s%d, s%d, 12288" % (sUSB, sT0))
    C("flag byte offset (wg&3)*64 + (wg>>2), thread 0 only")
    A("s_and_b32 s%d, s2, 3" % sT1); A("s_lshl_b32 s%d, s%d, 6" % (sT1, sT1)); A("s_lshr_b32 s%d, s2, 2" % sT0); A("s_add_u32 s%d, s%d, s%d" % (sT0, sT0, sT1))
    A("v_cmp_eq_u32 vcc, 0, v0")
    A("v_mov_b32 v%d, 0x%x" % (T3, HUGE)); A("v_mov_b32 v%d, s%d" % (T4, sT0))
    A("v_cndmask_b32 v%d, v%d, v%d, vcc" % (vFLO, T3, T4))

def calcW():
    for n in range(3):
        if n: A("v_add_u32 v%d, %d, v%d" % (T0, 64 * n, vLANE))
        l_ = T0 if n else vLANE
        A("v_mul_u32_u24 v%d, 2731, v%d" % (T1, l_))
        A("v_lshrrev_b32 v%d, 16, v%d" % (T1, T1))
        A("v_mul_u32_u24 v%d, 24, v%d" % (T2, T1))
        A("v_sub_u32 v%d, v%d, v%d" % (T2, l_, T2))
        A("v_and_b32 v%d, 3, v%d" % (T3, T1)); A("v_lshlrev_b32 v%d, 2, v%d" % (T3, T3))
        A("v_sub_u32 v%d, v%d, v%d" % (T2, T2, T3))
        A("v_add_u32 v%d, 24, v%d" % (T3, T2))
        A("v_min_u32 v%d, v%d, v%d" % (T2, T2, T3))
        A("v_mul_u32_u24 v%d, 384, v%d" % (T3, T1))
        A("v_lshl_add_u32 v%d, v%d, 4, v%d" % (vWD + n, T2, T3))
        if n: A("v_subrev_u32 v%d, %d, v%d" % (vWD + n, 1024 * n, vWD + n))
def calcC():
    sT2 = 32
    A("v_cmp_lt_u32 vcc, %d, v%d" % (CPP - 1, vLANE))
    A("v_subrev_u32 v%d, %d, v%d" % (T0, CPP, vLANE))
    A("s_mul_i32 s%d, s%d, 14" % (sCFB, sTY))
    A("v_cndmask_b32 v%d, v%d, v%d, vcc" % (T0, vLANE, T0))
    A("v_lshlrev_b32 v%d, 4, v%d" % (T0, T0))
    A("v_add_u32 v%d, 384, v%d" % (T1, T0))
    A("v_cndmask_b32 v%d, v%d, v%d, vcc" % (vCFN, T0, T1))
    A("v_mov_b32 v%d, 0x%x" % (T2, HUGE))
    A("v_cndmask_b32 v%d, v%d, v%d, vcc" % (vCFL, T2, T0))
    A("v_cndmask_b32 v%d, v%d, v%d, vcc" % (vCFR, T0, T2))
    C("R offsets")
    A("v_lshlrev_b32 v%d, 4, v%d" % (vQN, vLANE))
    A("v_cmp_gt_u32 vcc, 24, v%d" % vLANE)
    A("v_subrev_u32 v%d, 384, v%d" % (T0, vQN))
    A("s_mul_i32 s%d, s%d, 224" % (sCFB, sCFB))
    A("v_cndmask_b32 v%d, v%d, v%d, vcc" % (vQL, T0, T2))
    A("v_cmp_gt_u32 vcc, 30, v%d" % vLANE)
    A("s_mul_i32 s%d, s%d, 14" % (sT2, sTX))
    A("s_add_u32 s%d, s%d, s%d" % (sCFB, sCFB, sT2))
    A("v_cndmask_b32 v%d, v%d, v%d, vcc" % (vQR, T2, vQN))
    A("s_cmp_eq_u32 s%d, 0" % sTX)
    A("s_cselect_b64 vcc, -1, 0")
    A("s_cselect_b32 s%d, 384, 0" % sT3)
    A("v_cndmask_b32 v%d, v%d, v%d, vcc" % (vCFL, vCFN, vCFL))
    A("v_cndmask_b32 v%d, v%d, v%d, vcc" % (vQL, vQN, vQL))
    A("s_cmp_eq_u32 s%d, 15" % sTX)
    A("s_cselect_b64 vcc, -1, 0")
    A("s_sub_u32 s%d, s%d, 225" % (sCFB, sCFB))
    A("v_cndmask_b32 v%d, v%d, v%d, vcc" % (vCFR, vCFN, vCFR))
    A("v_cndmask_b32 v%d, v%d, v%d, vcc" % (vQR, vQN, vQR))
    A("s_mul_i32 s%d, s%d, 384" % (sCFB, sCFB))
    A("s_mul_i32 s%d, s%d, %d" % (sPCB, sTY, 7 * 112)); A("s_mul_i32 s%d, s%d, 7" % (sT2, sTX)); A("s_add_u32 s%d, s%d, s%d" % (sPCB, sPCB, sT2))
    A("s_sub_u32 s%d, s%d, 113" % (sPCB, sPCB)); A("s_mul_i32 s%d, s%d, 384" % (sPCB, sPCB))
    A("s_cmp_eq_u32 s%d, 0" % sTY)
    A("s_cselect_b32 s%d, 0x%x, s%d" % (sCF0, HUGE, sCFB))
    A("s_cselect_b32 s%d, 0x%x, s%d" % (sCFL, HUGE, sPCB))
    _m = ((1 << 24) - 1) | (((1 << 24) - 1) << CPP)
    A("s_mov_b32 s%d, 0x%x" % (sMC, _m & 0xFFFFFFFF)); A("s_mov_b32 s%d, 0x%x" % (sMC + 1, _m >> 32))
    A("s_mov_b32 s%d, -1" % sMR); A("s_mov_b32 s%d, 0x3fffff" % (sMR + 1))
def calcL():
    sT1, sT2 = 41, 42
    A("v_mul_u32_u24 v%d, %d, v%d" % (T0, PP, vP))
    A("v_lshl_add_u32 v%d, v%d, 4, v%d" % (vLB, vG, T0))
    A("v_add_u32 v%d, %d, v%d" % (vLB + 1, 8 * RP, vLB))
    A("v_add_u32 v%d, %d, v%d" % (vLB2, VB1, vLB))
    A("s_lshl_b32 s%d, s%d, 7" % (sT2, sW))
    A("v_add_u32 v%d, s%d, v%d" % (vMW, sT2, vLB))
    A("v_add_u32 v%d, %d, v%d" % (vMW + 1, 8 * RP, vMW))
    A("v_add_u32 v%d, 1, v%d" % (T2, vP)); A("v_lshrrev_b32 v%d, 1, v%d" % (T2, T2)); A("v_mul_u32_u24 v%d, 384, v%d" % (T2, T2))
    A("s_add_u32 s%d, s%d, %d" % (sT2, sT2, VB))
    A("v_add_u32 v%d, s%d, v%d" % (T2, sT2, T2))
    A("v_lshl_add_u32 v%d, v%d, 4, v%d" % (vRR, vG, T2))
    A("v_lshrrev_b32 v%d, 2, v%d" % (T0, vP))
    A("v_and_b32 v%d, 3, v%d" % (T1, vP))
    A("v_lshl_add_u32 v%d, v%d, 3, v%d" % (T6, vG, T0))
    A("v_mul_u32_u24 v%d, 384, v%d" % (T6, T6))
    A("v_add_u32 v%d, %d, v%d" % (T6, 8 * RP, T6))
    A("s_lshl_b32 s%d, s%d, 3" % (sT1, sW))
    A("v_lshl_add_u32 v%d, v%d, 2, s%d" % (T7, T0, sT1))
    A("v_add_u32 v%d, v%d, v%d" % (T7, T7, T1))
    for u in range(2):
        if u: A("v_add_u32 v%d, 4, v%d" % (T7, T7))
        A("v_subrev_u32 v%d, 24, v%d" % (T9, T7)); A("v_min_u32 v%d, v%d, v%d" % (T8, T7, T9))
        A("v_lshl_add_u32 v%d, v%d, 4, v%d" % (vTRB + u, T8, T6))
        A("v_add_u32 v%d, %d, v%d" % (vTRB + 2 + u, VB1 - 8 * RP, vTRB + u))
SRDS = {"WO": (sWO, 46, SZ_WO), "WL": (sWL, 44, SZ_WL), "CF": (sCF, 40, SZ_CF), "PC": (sPC, 42, SZ_PC), "U": (sU, 100, SZ_U), "OUT": (sOUT, 48, SZ_OUT), "DBG": (sDBG, 50, 256)}
def srd(*names):
    for nm in names:
        s, p, sz = SRDS[nm]
        A("s_mov_b32 s%d, s%d" % (s, p)); A("s_mov_b32 s%d, s%d" % (s + 1, p + 1))
        A("s_mov_b32 s%d, %d" % (s + 2, sz)); A("s_mov_b32 s%d, 0x00020000" % (s + 3))
UG = 160; UGB = 112
def ug_units():
    us = []
    for tap in range(9):
        for e in range(2):
            u = [("buffer_load_ushort v%d, v%d, s[%d:%d], s%d offen offset:%d" % (UG + 2 * tap + e, vUL, sWO, sWO + 3, sUT, 384 * e), "UG")]
            if e == 1 and tap < 8: u.append(("s_add_u32 s%d, s%d, 73728" % (sUT, sUT), None))
            us.append(u)
    return us
WREG = [12 * RP, 8 * RP, VB1]
def w_units(reg):
    us = []
    for loc in range(8):
        for n in range(3):
            u = [("s_mov_b32 m0, %d" % (WREG[reg] + loc * 3072), None), ("s_mov_b32 s%d, %d" % (sDSO, (reg * 8 + loc) * 3072), None)]
            u.append(("buffer_load_dwordx4 v%d, s[%d:%d], s%d offen offset:%d lds" % (vWD + n, sWL, sWL + 3, sDSO, 1024 * n), "WL%d" % reg))
            us.append((None, u))
    return us
def c_units(k):
    us = []
    for r in range(4 * k, 4 * k + 4):
        for j in range(8):
            u = []
            if k < 2: u.append(("s_mov_b32 m0, %d" % (r * RP + j * 2 * PP), None))
            gb = sCF0 if r == 0 else sCFB
            if j == 0:
                u.append(("s_add_u32 s%d, s%d, s%d" % (sT2, gb, sT3), None))
                if r: u.append(("s_add_u32 s%d, s%d, %d" % (sT2, sT2, r * 224 * 384), None))
            else: u.append(("s_add_u32 s%d, s%d, %d" % (sT2, gb, r * 224 * 384 + j * 768), None))
            vo = vCFL if j == 0 else (vCFR if j == 7 else vCFN)
            if k < 2: u.append(("buffer_load_dwordx4 v%d, s[%d:%d], s%d offen lds" % (vo, sCF, sCF + 3, sT2), "CF%d" % k))
            else:
                a_ = ((r - 8) * 8 + j) * 4
                u.append(("buffer_load_dwordx4 a[%d:%d], v%d, s[%d:%d], s%d offen" % (a_, a_ + 3, vo, sCF, sCF + 3, sT2), "CF%d_%d" % (k, r & 3)))
            us.append((sMC, u))
    return us
PCJ = {0: [0, 1, 2], 1: [3, 4], 2: [5, 6], 3: [7, 8]}
def r_units(k):
    us = []
    for j in PCJ[k]:
        for q in range(4):
            u = [("s_mov_b32 m0, %d" % ((VB + j * 3456 if j < 8 else RX) + q * 864), None)]
            gb = sCFL if j == 0 else sPCB
            if q == 0:
                u.append(("s_add_u32 s%d, s%d, s%d" % (sT2, gb, sT3), None))
                if j: u.append(("s_add_u32 s%d, s%d, %d" % (sT2, sT2, j * 112 * 384), None))
            else: u.append(("s_add_u32 s%d, s%d, %d" % (sT2, gb, j * 112 * 384 + q * 864), None))
            u.append(("buffer_load_dwordx4 v%d, s[%d:%d], s%d offen lds" % (vQL if q == 0 else (vQR if q == 3 else vQN), sPC, sPC + 3, sT2), "R%d" % k))
            us.append((sMR, u))
    return us
cur_exec = [None]
def set_exec(m):
    if cur_exec[0] != m:
        A("s_mov_b64 exec, -1" if m is None else "s_mov_b64 exec, s[%d:%d]" % (m, m + 1)); cur_exec[0] = m
def emit_lu(us):
    for (m, u) in us:
        set_exec(m)
        for x in u:
            A(x[0])
            if x[1]: vm.issue(x[1])
def merge(a, b, blk=1):
    a = [a[i:i + blk] for i in range(0, len(a), blk)]; b = [b[i:i + blk] for i in range(0, len(b), blk)]
    n = max(len(a), len(b)); seq = []; pa = pb = 0
    for i in range(n):
        while pa < len(a) and pa * n <= i * len(a): seq += a[pa]; pa += 1
        while pb < len(b) and pb * n <= i * len(b): seq += b[pb]; pb += 1
    for x in a[pa:] + b[pb:]: seq += x
    return seq
def lrow(r): return ACC + 16 * (r % 12)
def pc_tile(j): return 0 if j == 0 else 2 * j - 1
def r_reads(k):
    o = []
    for j in PCJ[k]:
        b = lrow(pc_tile(j))
        for u in range(2):
            o.append(("ds_read_b128 v[%d:%d], v%d offset:%d" % (b + 8 + 4 * u, b + 11 + 4 * u, vRR, (j * 3456 if j < 8 else RX - VB) + 64 * u), "RR%d" % j))
    return o
def emit_units(units):
    for u in units:
        for x in u:
            A(x[0])
            if x[1]: vm.issue(x[1])
def calc2_fn():
    sT0, sT1, sT2 = 40, 41, 42
    A("v_lshrrev_b32 v%d, 2, v%d" % (T0, vP))
    A("v_and_b32 v%d, 3, v%d" % (T1, vP))
    A("v_lshrrev_b32 v%d, 1, v%d" % (T2, vG))
    A("v_and_b32 v%d, 1, v%d" % (T3, vG))
    A("v_lshlrev_b32 v%d, 3, v%d" % (T4, T1))
    C("V-gen tr base")
    A("v_lshl_add_u32 v%d, v%d, 2, v%d" % (T6, T3, T0))
    A("v_mul_u32_u24 v%d, %d, v%d" % (T6, PP, T6))
    A("v_mul_u32_u24 v%d, %d, v%d" % (T7, RP, T2))
    A("v_add3_u32 v%d, v%d, v%d, v%d" % (T6, T6, T7, T4))
    A("s_lshl_b32 s%d, s%d, 5" % (sT2, sW))
    A("s_add_u32 s%d, s%d, %d" % (sT2, sT2, RP))
    A("v_add_u32 v%d, s%d, v%d" % (vTA, sT2, T6))
    A("v_add_u32 v%d, %d, v%d" % (vTAH, 8 * RP, vTA))
    A("v_sub_u32 v%d, %d, v%d" % (vRHO, RP, T7))
    A("v_and_b32 v%d, 7, v%d" % (T6, vP))
    A("v_xor_b32 v%d, v%d, v%d" % (T7, vG, T6))
    A("v_lshlrev_b32 v%d, 4, v%d" % (T7, T7))
    A("v_lshl_add_u32 v%d, v%d, 7, v%d" % (T7, vP, T7))
    A("v_add_u32 v%d, %d, v%d" % (vBR0, VB, T7))
    A("v_xor_b32 v%d, 64, v%d" % (vBR1, vBR0))
    A("v_cmp_gt_u32 vcc, 8, v%d" % vP)
    A("v_mov_b32 v%d, 0x30000" % T9)
    A("s_nop 0")
    A("v_cndmask_b32 v14, v%d, v%d, vcc" % (T9, vBR0))
    A("v_cndmask_b32 v15, v%d, v%d, vcc" % (T9, vBR1))
    A("s_lshl_b32 s%d, s%d, 1" % (sT2, sW))
    A("v_add_u32 v%d, s%d, v%d" % (T7, sT2, T2))
    A("v_xor_b32 v%d, v%d, v%d" % (T7, T7, T6))
    A("v_lshlrev_b32 v%d, 4, v%d" % (T7, T7))
    A("v_lshl_add_u32 v%d, v%d, 7, v%d" % (T7, T6, T7))
    A("v_lshl_add_u32 v%d, v%d, 3, v%d" % (T7, T3, T7))
    A("v_lshrrev_b32 v%d, 3, v%d" % (T8, vP))
    A("v_mul_u32_u24 v%d, 7168, v%d" % (T9, T8))
    A("v_add_u32 v%d, v%d, v%d" % (T7, T7, T9))
    A("v_add_u32 v%d, %d, v%d" % (vVW, VB, T7))
    C("output staging: OW4 = (n>>3)*2RP + tx_*784 + 96w + 16G ; OW2 = ... + 64 + 8G ; RB = w*784 + lane*16 ; GO = tile base + w*768 + lane*16 (lane<48)")
    A("v_mul_u32_u24 v%d, %d, v%d" % (T7, 2 * RP, T8))
    A("v_mul_u32_u24 v%d, 784, v%d" % (T9, T6))
    A("s_mul_i32 s%d, s%d, 96" % (sT2, sW))
    A("v_add3_u32 v%d, v%d, v%d, s%d" % (T7, T7, T9, sT2))
    A("v_lshl_add_u32 v%d, v%d, 4, v%d" % (vOW4, vG, T7))
    A("v_lshl_add_u32 v%d, v%d, 3, v%d" % (vOW2, vG, T7))
    A("v_add_u32 v%d, 64, v%d" % (vOW2, vOW2))
    A("v_lshlrev_b32 v%d, 4, v%d" % (T7, vLANE))
    A("s_mul_i32 s%d, s%d, 784" % (sT2, sW))
    A("v_add_u32 v%d, s%d, v%d" % (vRB, sT2, T7))
    A("s_mul_i32 s%d, s%d, %d" % (sT1, sTY, 14 * 224 * 384))
    A("s_mul_i32 s%d, s%d, %d" % (sT2, sTX, 14 * 384))
    A("s_add_u32 s%d, s%d, s%d" % (sT1, sT1, sT2))
    A("s_mul_i32 s%d, s%d, 768" % (sT2, sW))
    A("s_add_u32 s%d, s%d, s%d" % (sT1, sT1, sT2))
    A("v_add_u32 v%d, s%d, v%d" % (vGO, sT1, T7))
    A("v_cmp_gt_u32 vcc, 48, v%d" % vLANE)
    A("v_mov_b32 v%d, 0x%x" % (T9, HUGE))
    A("s_nop 0")
    A("v_cndmask_b32 v%d, v%d, v%d, vcc" % (vGO, T9, vGO))
    C("s45 = 3072 (second pair offset) or HUGE for wave 3")
    A("s_cmp_eq_u32 s%d, 3" % sW); A("s_cselect_b32 s45, 0x%x, 3072" % HUGE) if False else None
    A("s_mov_b32 s44, 12288"); A("s_mov_b32 s45, 3072"); A("s_cmp_eq_u32 s%d, 3" % sW); A("s_cselect_b32 s45, 0x%x, s45" % HUGE)
    C("U stream voffset; flag store offset (tid==0 && wg<72 -> wg else HUGE); poll offset lane*4 (lane<18)")
    A("v_lshlrev_b32 v%d, 4, v%d" % (T0, vLANE))
    A("s_mul_i32 s%d, s%d, 3072" % (sT2, sW))
    A("v_add_u32 v%d, s%d, v%d" % (vUO, sT2, T0))
    C("T matrices")
    A("v_lshlrev_b32 v%d, 2, v%d" % (T7, T3))
    A("v_lshlrev_b32 v%d, 1, v%d" % (T9, T6))
    A("v_sub_u32 v%d, v%d, v%d" % (T7, T7, T9))
    A("v_cmp_eq_u32 vcc, 7, v%d" % T6)
    A("v_add_u32 v%d, 64, v%d" % (T9, T7))
    A("s_nop 0")
    A("v_cndmask_b32 v%d, v%d, v%d, vcc" % (T7, T7, T9))
    P1, M1 = 0x3F80, 0xBF80
    tab = {0: ((0, P1, 2, M1), (1, P1, 2, P1)), 1: ((1, M1, 2, P1), (1, P1, 3, M1))}
    A("v_cmp_eq_u32 s[60:61], 1, v%d" % T8)
    for nt in range(2):
        (a0, va0, b0, vb0), (a1, va1, b1, vb1) = tab[nt]
        for (dst, x0, x1) in ((XA, a0, a1), (XB, va0, va1), (XC, b0, b1), (XD, vb0, vb1)):
            A("v_mov_b32 v%d, 0x%x" % (dst, x0))
            A("v_mov_b32 v%d, 0x%x" % (XE, x1))
            A("v_cndmask_b32 v%d, v%d, v%d, s[60:61]" % (dst, dst, XE))
        for ep in range(4):
            for hh in range(2):
                e = 2 * ep + hh
                off = 8 * (e >> 2) + (e & 3)
                dst = T0 if hh == 0 else T1
                A("v_add_u32 v%d, %d, v%d" % (T9, off, T7))
                A("v_cmp_eq_u32 vcc, v%d, v%d" % (T9, XA))
                A("v_cmp_eq_u32 s[62:63], v%d, v%d" % (T9, XC))
                A("s_nop 0")
                A("v_cndmask_b32 v%d, 0, v%d, vcc" % (dst, XB))
                A("v_cndmask_b32 v%d, v%d, v%d, s[62:63]" % (dst, dst, XD))
            A("v_lshl_or_b32 v%d, v%d, 16, v%d" % (16 + 4 * nt + ep, T1, T0))


def interleave(units, calc, per):
    ci = 0
    for u in units:
        for x in u:
            A(x[0])
            if x[1]: vm.issue(x[1])
        k = 0
        while ci < len(calc) and (k < per or calc[ci].strip().startswith("s_cselect") or calc[ci - 1].strip().startswith("s_cmp")):
            E.out.append(calc[ci]); ci += 1; k += 1
    return calc[ci:]
def u_compute(tk):
    C("U task compute")
    G0 = UGB if tk else UG
    if tk == 0:
        for i in range(18):
            A("v_lshlrev_b32 v%d, 16, v%d" % (UG + i, UG + i))
    RRg = UG + 18; TTg = UG + 24; URg = UG + 26; ORg = (UGB + 18) if tk else (UG + 58)
    for e in range(2):
        g = lambda a, b: G0 + (3 * a + b) * 2 + e
        R = {}
        for b in range(3):
            R[(0, b)] = g(0, b); R[(3, b)] = g(2, b)
            A("v_add_f32 v%d, v%d, v%d" % (TTg, g(0, b), g(2, b)))
            A("v_mul_f32 v%d, 0.5, v%d" % (TTg, TTg))
            A("v_fma_f32 v%d, 0.5, v%d, v%d" % (RRg + b, g(1, b), TTg)); R[(1, b)] = RRg + b
            A("v_fma_f32 v%d, -0.5, v%d, v%d" % (RRg + 3 + b, g(1, b), TTg)); R[(2, b)] = RRg + 3 + b
        ub = URg + 16 * e
        for i in range(4):
            A("v_mov_b32 v%d, v%d" % (ub + 4 * i + 0, R[(i, 0)]))
            A("v_mov_b32 v%d, v%d" % (ub + 4 * i + 3, R[(i, 2)]))
            A("v_add_f32 v%d, v%d, v%d" % (TTg, R[(i, 0)], R[(i, 2)]))
            A("v_mul_f32 v%d, 0.5, v%d" % (TTg, TTg))
            A("v_fma_f32 v%d, 0.5, v%d, v%d" % (ub + 4 * i + 1, R[(i, 1)], TTg))
            A("v_fma_f32 v%d, -0.5, v%d, v%d" % (ub + 4 * i + 2, R[(i, 1)], TTg))
    for i in range(4):
        for j in range(4):
            n_ = "-" if i == 0 else ""
            p, pidx = upos(i, j)
            o = ORg + 4 * i + j
            A("v_cvt_pk_bf16_f32 v%d, %sv%d, %sv%d" % (o, n_, URg + 4 * i + j, n_, URg + 16 + 4 * i + j))
            A("s_add_u32 s%d, s%d, %d" % (sT2, sUSB, ugam(p, 0, 0, pidx) * 12288))
            A("buffer_store_dword v%d, v%d, s[%d:%d], s%d offen offset:%d sc0 sc1" % (o, vUSo, sU, sU + 3, sT2, 16 * tk))

sHI = 31
def unpack_rows(js):
    ops = []
    for j in js:
        b = lrow(pc_tile(j))
        dsts = [b] if j in (0, 8) else [lrow(2 * j), b]
        for dbase in dsts:
            for i in range(8):
                ops.append("v_lshlrev_b32 v%d, 16, v%d" % (dbase + 2 * i, b + 8 + i))
                ops.append("v_and_b32 v%d, s%d, v%d" % (dbase + 2 * i + 1, sHI, b + 8 + i))
    return ops
def mwrite(r):
    b = lrow(r)
    ops = []
    for u in range(2):
        ops += [("x", "v_cvt_pk_bf16_f32 v%d, v%d, v%d" % (b + 4 * u + i, b + 8 * u + 2 * i, b + 8 * u + 2 * i + 1), None) for i in range(4)]
        ops.append(("lg", "ds_write_b128 v%d, v[%d:%d] offset:%d" % (vMW + (r >> 3), b + 4 * u, b + 4 * u + 3, (r & 7) * RP + 64 * u), "MW"))
    return ops
aPF = 96
def pread(r, kc):
    a = aPF + ((r & 1) * 6 + kc) * 4
    if r >= 12: return ("lg", "ds_read_b128 a[%d:%d], v%d offset:%d" % (a, a + 3, vLB2, (r - 12) * RP + 64 * kc), "P%d_%d" % (r, kc))
    return ("lg", "ds_read_b128 a[%d:%d], v%d offset:%d" % (a, a + 3, vLB + (r >> 3), (r & 7) * RP + 64 * kc), "P%d_%d" % (r, kc))

GORD = [(0, 0), (0, 1), (1, 0), (1, 1), (0, 2), (0, 3), (1, 2), (1, 3)]
groups = []
for n in range(12):
    for (ks, pidx) in GORD: groups.append((n, n // 3, n % 3, ks, pidx))
def uload(q, t):
    n, p, kk, ks, pidx = groups[q]
    a = aUF + 12 * (q % 4) + 4 * t
    r = []
    assert ugam(p, kk, ks, pidx) == q
    if t == 0: r.append((("s_mov_b32 s%d, 0" % sUS) if q == 0 else ("s_add_u32 s%d, s%d, s44" % (sUS, sUS)), None))
    r.append(("buffer_load_dwordx4 a[%d:%d], v%d, s[%d:%d], s%d offen offset:%d" % (a, a + 3, vUO, sU, sU + 3, sUS, 1024 * t), "U%d_%d" % (q, t)))
    return r


n0 = nst[0]
C("======== waves 0,1 : U tasks")
A("s_cmp_ge_u32 s2, %d" % NPW); A("s_cbranch_scc1 L_cw")
calcU()
A("s_waitcnt lgkmcnt(0)")
srd("WO")
rest = interleave(ug_units(), capture(calcU2), 2)
assert not rest
A("s_branch L_cw")
C("======== waves 2,3")
L("L_w23")
calcW()
A("s_cmp_eq_u32 s%d, 3" % sW); A("s_cbranch_scc1 L_loader")
A("s_waitcnt lgkmcnt(0)")
srd("WL")
emit_lu(w_units(0))
C("======== compute waves (0,1,2)")
L("L_cw")
stamp(2)
A("s_waitcnt lgkmcnt(0)")
srd("U", "OUT", "DBG")
calcL()
calc2_fn()
A("s_mov_b32 s%d, 0xffff0000" % sHI)
A("s_waitcnt vmcnt(0)")
A("s_cmp_ge_u32 s%d, 2" % sW); A("s_cbranch_scc1 L_bw")
A("s_cmp_ge_u32 s2, %d" % NPW); A("s_cbranch_scc1 L_bw")
u_compute(0)
L("L_bw")
stamp(2)
A("s_barrier")
stamp(2)
lg.clear(); vm.ops = []
FLB = int(os.environ.get("FLB", "1"))
def flag():
    C("flag (thread 0 of producer WGs; offset out of range elsewhere); wave 0 only")
    A("s_cmp_lg_u32 s%d, 0" % sW); A("s_cbranch_scc1 L_nf")
    A("v_mov_b32 v%d, 1" % T4)
    A("buffer_store_byte v%d, v%d, s[%d:%d], 0 offen sc0 sc1" % (T4, vFLO, sDBG, sDBG + 3))
    L("L_nf")
def wfr(kc):
    o = []
    for t in range(4):
        for h in range(2):
            a = aWL + (kc * 4 + t) * 4 + 2 * h
            base = vTRB + (t >> 1) + (2 if kc >= 4 else 0)
            off = WREG[kc >> 1] - (8 * RP if kc < 4 else VB1) + (kc & 1) * 12288 + 1536 * h + 8 * (t & 1)
            o.append(("ds_read_b64_tr_b16 a[%d:%d], v%d offset:%d" % (a, a + 1, base, off), "WF%d" % kc))
    return o
def p0(kc, r):
    a = aPF + ((kc * 4 + r) % 12) * 4
    return ("ds_read_b128 a[%d:%d], v%d offset:%d" % (a, a + 3, vLB, r * RP + 64 * kc), "Q%d_%d" % (kc, r))
SYN = int(os.environ.get("SYN", "12"))
S4R = int(os.environ.get("S4R", "13")); S4I = int(os.environ.get("S4I", "12"))
BWI = int(os.environ.get("BWI", "20"))
sq = []; units = []
def qunp(j, dl): return [("@", {"RR%d" % j}, 4, dl)] + [(x, None, 4, dl) for x in unpack_rows([j])]
def qmw(r): return [(x[1], x[2], 8 if x[2] else 4, 99) for x in mwrite(r)]
def pop():
    x = sq.pop(0)
    if x[0] == "@": lg.need(x[1], A); return
    A(x[0])
    if x[1]: lg.issue(x[1])
def iss(x): A(x[0]); lg.issue(x[1])
for x in r_reads(0): iss(x)
for x in wfr(0): iss(x)
for r in range(4): iss(p0(0, r))
unp = unpack_rows([0, 1, 2])
lg.need({"RR0", "RR1", "RR2"}, A)
f1 = wfr(1) + [p0(1, r) for r in range(4)]
for i, x in enumerate(unp):
    A(x)
    if i % 6 == 0 and f1: iss(f1.pop(0))
assert not f1
A("s_nop 1")
lq = []
for kc in range(6):
    if kc + 2 < 6: lq += [p0(kc + 2, r) for r in range(4)]
    for r in range(4):
        while any(x[1] in ("WF%d" % kc, "Q%d_%d" % (kc, r)) for x in lq): iss(lq.pop(0))
        lg.need({"WF%d" % kc, "Q%d_%d" % (kc, r)}, A)
        for t in range(4):
            a = lrow(r) + 4 * t; w = aWL + (kc * 4 + t) * 4; p = aPF + ((kc * 4 + r) % 12) * 4
            A("v_mfma_f32_16x16x32_bf16 v[%d:%d], a[%d:%d], a[%d:%d], v[%d:%d]" % (a, a + 3, w, w + 3, p, p + 3, a, a + 3))
            n = (kc & 1) * 16 + r * 4 + t + 1
            bud = 8
            if kc < 4 and n == BWI:
                bw = (kc >> 1) + 1
                stamp(2)
                if FLB == bw: A("s_waitcnt vmcnt(0)")
                A("s_barrier")
                if FLB == bw: flag()
                lq = wfr(2 * bw) + lq + wfr(2 * bw + 1)
                bud = 0
            if kc == 4 and n == 16:
                while lq: iss(lq.pop(0))
                stamp(2)
                if FLB == 3: A("s_waitcnt vmcnt(0)")
                lg.drain(A)
                A("s_barrier")
                if FLB == 3: flag()
                lq = [(x[1], x[2]) for x in [pread(4, c_) for c_ in range(6)]] + r_reads(1)
                sq += qunp(3, 5) + qunp(4, 7)
                bud = 0
            while lq and bud >= 4:
                iss(lq.pop(0)); bud -= 4
            while kc == 5 and not lq and sq and sq[0][2] <= bud and r >= 2:
                bud -= sq[0][2]; pop()
assert not lq
for r in range(4, 16):
    k = r >> 2; last = (r & 3) == 3 and r < 15
    fl = False
    while any(x[3] <= r for x in sq): pop(); fl = True
    if fl: A("s_nop 1")
    lg.need({"P%d_%d" % (r, kc) for kc in range(3)}, A)
    pq = [pread(r + 1, kc) for kc in range(6)] if r < 15 else []
    for i in range(24):
        kc, d = divmod(i, 4)
        if i == 3 and (r > 12 or (r & 3) == 0 and r > 4): sq[:0] = qmw(r - 1)
        if i == 3 and r == 4:
            n_ = len([x for x in sq if x[3] <= 5])
            sq[n_:n_] = qmw(0) + qmw(1); sq += qmw(2) + qmw(3)
        a = lrow(r) + 4 * d; w = aWL + (kc * 4 + d) * 4; p = aPF + ((r & 1) * 6 + kc) * 4
        A("v_mfma_f32_16x16x32_bf16 v[%d:%d], a[%d:%d], a[%d:%d], v[%d:%d]" % (a, a + 3, w, w + 3, p, p + 3, a, a + 3))
        bud = 8
        if last and i == SYN - 1:
            k1 = k + 1
            stamp(2)
            lg.drain(A)
            A("s_barrier")
            bud = 0
            rr = []
            if k1 < 3: rr = [(x[0], x[1], 4, 4 * k1 + 1) for x in r_reads(k1)]
            if k1 == 2: rr += [(x[0], x[1], 4, 99) for x in r_reads(3)]
            mw = qmw(r - 3) + qmw(r - 2) + qmw(r - 1)
            sq += rr + mw[:10] + qunp(2 * k1 + 1, 4 * k1 + 1) + mw[10:] + qunp(2 * k1 + 2, 4 * k1 + 3)
        if r == S4R and i == S4I - 1:
            stamp(2)
            A("s_barrier")
            stamp(2)
            bud = 4
            for q in range(4):
                for t in range(3): units.append(uload(q, t))
        if pq and ((not last and d == 0) or (last and i >= SYN and (i - SYN) % 2 == 0)):
            x = pq.pop(0); A(x[1]); lg.issue(x[2]); bud -= 4
        if i == 11:
            n0_ = len(E.out); lg.need({"P%d_%d" % (r, c2) for c2 in range(3, 6)}, A)
            if len(E.out) > n0_: bud -= 4
        if i == 23: bud -= 4
        if units and bud == 8 and d == 2:
            emit_units([units.pop(0)]); bud = 0
        while sq and sq[0][2] <= bud:
            bud -= sq[0][2]; pop()
    assert not pq
while sq: pop()
emit_units(units)
A("s_nop 6")
for x in mwrite(15): A(x[1])
lg.drain(A)
A("s_branch L_sf")
n1 = nst[0]
C("======== loader (wave 3)")
L("L_loader")
nst[0] = n0
vm.ops = ["CW"]; lg.clear()
calcC()
A("s_waitcnt lgkmcnt(0)")
srd("PC", "CF", "WL")
stamp(2)
LEAD = int(os.environ.get("LEAD", "40"))
seq = r_units(0) + c_units(0) + merge(w_units(1) + w_units(2), c_units(1), 4) + r_units(1) + r_units(2) + r_units(3) + c_units(2) + c_units(3)
tags = [u[-1][1] for (m, u) in seq]
events = [({"R0", "CF0"}, "Bw0"), ({"WL1"}, "Bw1"), ({"WL2"}, "Bw2"), ({"CF1", "R1"}, "S1")]
pos = 0
for (ev, nm) in events:
    lastidx = max(i for i, t in enumerate(tags) if t in ev)
    upto = min(len(seq), lastidx + 1 + LEAD)
    emit_lu(seq[pos:upto]); pos = max(pos, upto)
    vm.need(ev, A)
    stamp(2)
    A("s_barrier")
    if nm == "Bw0": stamp(2)
emit_lu(seq[pos:])
set_exec(None)
srd("U", "OUT", "DBG")
A("v_lshlrev_b32 v%d, 2, v%d" % (T5, vLANE))
PLP = int(os.environ.get("PLP", "1")); PLM = os.environ.get("PLM", "")
def poll1(): A("buffer_load_dword v%d, v%d, s[%d:%d], 0 offen%s" % (vFLG, T5, sDBG, sDBG + 3, PLM)); vm.issue("POLL")
if PLP == 0: poll1()
A("v_add_u32 v%d, %d, v%d" % (50, 8 * RP, vQN)); A("v_add_u32 v%d, %d, v%d" % (51, VB1, vQN))
def cwrite(k):
    set_exec(sMC)
    for rr_ in range(4):
        vm.need("CF%d_%d" % (k, rr_), A)
        for j in range(8):
            a_ = (((k - 2) * 4 + rr_) * 8 + j) * 4
            A("ds_write_b128 v%d, a[%d:%d] offset:%d" % (50 + (k - 2), a_, a_ + 3, rr_ * RP + j * 2 * PP))
    set_exec(None)
cwrite(2)
A("s_waitcnt lgkmcnt(0)")
stamp(2)
A("s_barrier")
if PLP == 1: poll1()
cwrite(3)
if PLP == 2: poll1()
calc2_fn()
A("v_cmp_gt_u32 vcc, 9, v%d" % vP)
A("v_mov_b32 v%d, 0x01010101" % T4)
A("s_lshr_b32 s%d, s2, 3" % sT1); A("s_mul_i32 s%d, s%d, 36864" % (sT1, sT1))
A("v_cndmask_b32 v%d, 0, v%d, vcc" % (T4, T4))
A("v_lshlrev_b32 v%d, 2, v%d" % (T5, vLANE))
A("s_waitcnt vmcnt(0) lgkmcnt(0)"); vm.ops = []
C("first poll result known; if ready warm now, else after S3")
A("v_cmp_ne_u32 vcc, v%d, v%d" % (T4, vFLG))
A("s_nop 1")
def warm():
    for i_ in range(9):
        for n in range(4):
            A("buffer_load_dwordx4 a[%d:%d], v%d, s[%d:%d], s%d offen offset:%d" % (128 + 16 * (i_ % 4) + 4 * n, 128 + 16 * (i_ % 4) + 4 * n + 3, vQN, sU, sU + 3, sT1, 1024 * n))
        if i_ < 8: A("s_add_u32 s%d, s%d, 4096" % (sT1, sT1))
A("s_or_b32 s60, vcc_lo, vcc_hi")
A("s_cbranch_scc1 L_late")
warm()
stamp(2)
A("s_barrier")
A("s_branch L_s4")
L("L_late")
A("buffer_load_dword v%d, v%d, s[%d:%d], 0 offen sc0 sc1" % (vFLG, T5, sDBG, sDBG + 3))
A("s_barrier")
L("L_poll")
A("s_waitcnt vmcnt(0)")
A("v_cmp_ne_u32 vcc, v%d, v%d" % (T4, vFLG))
A("s_nop 1")
A("s_or_b32 s60, vcc_lo, vcc_hi")
A("s_cbranch_scc0 L_polled")
A("s_sleep 4")
A("buffer_load_dword v%d, v%d, s[%d:%d], 0 offen sc0 sc1" % (vFLG, T5, sDBG, sDBG + 3))
A("s_branch L_poll")
L("L_polled")
warm()
L("L_s4")
stamp(2)
A("s_barrier")
stamp(2)
for q in range(4):
    for t in range(3): emit_units([uload(q, t)])
assert nst[0] == n1, (nst[0], n1)
L("L_sf")
lg.clear()
A("s_barrier")
stamp()

aVA = aT + 8
aSV = 0
aOR = 96
sPAR, sKK, sPASS, sD1, sSPC = 60, 61, 62, 63, 40
def out_block():
    o = ["v_add_u32 v24, %d, v%d" % (8 * RP, vRB)]
    for k in range(14):
        rho = k >> 1; pr = k & 1
        off = 2 * rho * RP + pr * 4 * 784; base = vRB
        if rho >= 4: off -= 8 * RP; base = 24
        o.append("ds_read_b128 a[%d:%d], v%d offset:%d" % (aOR + 4 * k, aOR + 4 * k + 3, base, off))
    for k in range(14):
        rho = k >> 1; pr = k & 1
        o.append(("s_mov_b32 s%d, %d" % (sT0, 2 * rho * 224 * 384)) if pr == 0 else ("s_add_u32 s%d, s%d, s45" % (sT0, sT0)))
        o.append("s_waitcnt lgkmcnt(%d)" % (13 - k))
        o.append("buffer_store_dwordx4 a[%d:%d], v%d, s[%d:%d], s%d offen" % (aOR + 4 * k, aOR + 4 * k + 3, vGO, sOUT, sOUT + 3, sT0))
    o += ["s_cmp_eq_u32 s%d, 3" % sKK, "s_cbranch_scc1 L_fin"]
    return o
def acc(j, mt, t): return ACC + ((j * 4 + mt) * 3 + t) * 4
def pk(dst, a, b, neg=False):
    return "v_pk_add_f32 v[%d:%d], v[%d:%d], v[%d:%d]%s" % (dst, dst + 1, a, a + 1, b, b + 1, " neg_lo:[0,1] neg_hi:[0,1]" if neg else "")
def vgen_tr(k):
    x = aVA + 4 * (k & 1); base = vTA if k < 4 else vTAH
    return [("ds_read_b64_tr_b16 a[%d:%d], v%d offset:%d" % (x + 2 * h, x + 2 * h + 1, base, (k & 3) * 2 * RP + h * 8 * PP), "VA%d" % (k & 1)) for h in range(2)]
def vgen_mfma(k, which):
    x = aVA + 4 * (k & 1); tt = 16 + 4 * which; d = vVT + 4 * which
    return "v_mfma_f32_16x16x32_bf16 v[%d:%d], a[%d:%d], v[%d:%d], 0" % (d, d + 3, x, x + 3, tt, tt + 3)
def vgen_out(k, which):
    d = vVT + 4 * which
    return [("v_cvt_pk_bf16_f32 v%d, v%d, v%d" % (d, d, d + 1), None), ("v_cvt_pk_bf16_f32 v%d, v%d, v%d" % (d + 1, d + 2, d + 3), None),
            ("ds_write_b64 v%d, v[%d:%d] offset:%d" % (vVW, d, d + 1, which * 14336 + k * 1024), "VW")]
def bread(gi, mt):
    ks, pidx = GORD[gi]
    b = vBF + 16 * (gi & 1) + 4 * mt
    reg = (15 if ks else 14) if mt == 3 else (vBR1 if ks else vBR0)
    return ("ds_read_b128 v[%d:%d], v%d offset:%d" % (b, b + 3, reg, pidx * 7168 + mt * 2048), "B%d_%d" % (gi, mt))
def uld(gi, t):
    a = aUF + 12 * (gi % 4) + 4 * t
    return ("buffer_load_dwordx4 a[%d:%d], v%d, s[%d:%d], s%d offen offset:%d" % (a, a + 3, vUO, sU, sU + 3, sUS, 1024 * t), "U%d_%d" % (gi % 8, t))

C("V-gen chunk 0 (pipelined) + zero tiles j=3 + first U loads")
ul0 = []
def pop_ul():
    if ul0:
        for x in ul0.pop(0):
            A(x[0])
            if x[1]: vm.issue(x[1])
for k in range(7):
    base = vTA if k < 4 else vTAH
    for h in range(2):
        A("ds_read_b64_tr_b16 a[%d:%d], v%d offset:%d" % (96 + 4 * k + 2 * h, 97 + 4 * k + 2 * h, base, (k & 3) * 2 * RP + h * 8 * PP)); lg.issue("V0_%d" % k)
zq = []
dtmp = lambda k, w2: acc(1, 0, 0) + (2 * k + w2) * 4
for k in range(7):
    lg.need("V0_%d" % k, A)
    for w2 in range(2):
        d = dtmp(k, w2)
        A("v_mfma_f32_16x16x32_bf16 v[%d:%d], a[%d:%d], v[%d:%d], 0" % (d, d + 3, 96 + 4 * k, 99 + 4 * k, 16 + 4 * w2, 19 + 4 * w2))
A("s_nop 1")
for k in range(7):
    for w2 in range(2):
        d = dtmp(k, w2)
        A("v_cvt_pk_bf16_f32 v%d, v%d, v%d" % (d, d, d + 1)); A("v_cvt_pk_bf16_f32 v%d, v%d, v%d" % (d + 1, d + 2, d + 3))
        A("ds_write_b64 v%d, v[%d:%d] offset:%d" % (vVW, d, d + 1, w2 * 14336 + k * 1024)); lg.issue("VW")
        if zq: A(zq.pop(0))
        pop_ul()
assert not zq and not ul0
A("v_add_u32 v%d, 128, v%d" % (vTA, vTA)); A("v_add_u32 v%d, 128, v%d" % (vTAH, vTAH))
A("v_add_u32 v%d, %d, v%d" % (vVW, VS, vVW))
for x in vgen_tr(0): A(x[0]); lg.issue(x[1])
A("s_mov_b32 s%d, %d" % (sPAR, VS)); A("s_mov_b32 s%d, 0" % sPASS)
lg.drain(A)
A("s_barrier")
stamp()
for mt in range(4):
    x = bread(0, mt); A(x[0]); lg.issue(x[1])
C("all 12 first loads are waited here once so that the loop's counted waits are conservative")

def body(emit, first, lgt, vmt, name, zall=False):
    X = lambda t: ("x", t, None)
    va = lambda r, sr: X("v_add_u32 v%d, s%d, v%d" % (r, sr, r))
    for gi in range(8):
        ks, pidx = GORD[gi]
        vg = gi < 7
        seq = ["m0", "m1", "m2", "v0", "m3", "v1", "m4", "m5", "m6", "m7", "m8", "m9", "m10", "m11"] if vg else ["m%d" % i for i in range(12)]
        fill = {k: [] for k in seq}
        fill["m0"].append(("vm",) + uld(gi + 3, 2))
        R = [("lg",) + bread((gi + 1) % 8, mt) for mt in range(4)]
        S = X("s_add_u32 s%d, s%d, s44" % (sUS, sUS))
        L0 = ("vm",) + uld(gi + 4, 0); L1 = ("vm",) + uld(gi + 4, 1)
        if vg:
            o0 = vgen_out(gi, 0); o1 = vgen_out(gi, 1)
            fill["m1"] += [R[0], S]; fill["m2"].append(R[1]); fill["v0"].append(R[2]); fill["m3"].append(R[3])
            fill["v1"].append(L0)
            if gi < 6:
                T = [("lg",) + x for x in vgen_tr(gi + 1)]
                fill["m4"].append(T[0]); fill["m5"].append(T[1])
            if gi == 5:
                fill["m2"].append(va(vBR0, sPAR)); fill["v0"].append(va(14, sPAR))
            if gi == 6:
                if first:
                    fill["m2"].append(X("v_add_u32 v%d, 128, v%d" % (vTA, vTA))); fill["v0"].append(X("v_add_u32 v%d, 128, v%d" % (vTAH, vTAH)))
                    fill["m4"] += [va(vBR1, sPAR), va(15, sPAR)]
                    fill["m5"].append(X("s_nop 0"))
                else:
                    fill["m2"].append(va(vTA, sD1)); fill["v0"].append(va(vTAH, sD1))
                    fill["m3"].append(X("s_mov_b32 s%d, 128" % sD1))
                    fill["m4"] += [X("s_cmp_lg_u32 s%d, 0" % sSPC), X("s_cbranch_scc1 L_special"), X("@L_special_ret")]
                    fill["m5"].append(va(vBR1, sPAR))
                    fill["m8"].append(va(15, sPAR))
            fill["m5"].append(("x",) + o0[0]); fill["m6"].append(("x",) + o0[1]); fill["m6"].append(("x",) + o1[0])
            fill["m7"].append(("lg",) + o0[2]); fill["m8"].append(("x",) + o1[1])
            fill["m9"].append(L1)
            fill["m10"].append(("lg",) + o1[2])
        else:
            T = [("lg",) + x for x in vgen_tr(0)]
            fill["m1"] += [S]
            fill["m2"] += [("bar",)]
            fill["m3"].append(L0)
            fill["m4"] += [R[0], X("v_subrev_u32 v%d, s%d, v%d" % (vVW, sPAR, vVW))]
            fill["m5"] += [R[1], X("s_sub_u32 s%d, 0, s%d" % (sPAR, sPAR))]
            fill["m6"] += [R[2]]
            fill["m7"] += [R[3]]
            fill["m8"].append(L1)
            fill["m9"] += [T[0]]
            fill["m10"] += [T[1]]
            if not first:
                fill["m9"].append(X("s_add_u32 s%d, s%d, 1" % (sKK, sKK)))
                fill["m10"].append(X("s_cmp_lt_u32 s%d, 3" % sKK))
                fill["m11"].append(X("s_cbranch_scc1 L_body"))
            else:
                fill["m6"].append(X("s_mov_b32 s%d, 1" % sKK))
                fill["m7"].append(X("s_mov_b32 s%d, -256" % sD1))
                fill["m9"].append(X("s_cmp_eq_u32 s%d, 2" % sPASS))
                fill["m10"].append(X("s_cselect_b32 s%d, %d, s%d" % (sD1, RP - 256, sD1)))
        ws_ = []
        vmt.need({"U%d_%d" % (gi, t) for t in range(3)}, ws_.append)
        lgt.need({"B%d_%d" % (gi, mt) for mt in range(4)} | ({"VA%d" % (gi & 1)} if vg else set()), ws_.append)
        if ws_: emit("s_waitcnt " + " ".join(x.split()[1] for x in ws_))
        for k in seq:
            if k[0] == "m":
                i = int(k[1:]); t = i // 4; mt = i % 4
                d = acc(pidx, mt, t); u = aUF + 12 * (gi % 4) + 4 * t; b = vBF + 16 * (gi & 1) + 4 * mt
                z = first and ks == 0 and (zall or pidx in (1, 2))
                emit("v_mfma_f32_16x16x32_bf16 v[%d:%d], a[%d:%d], v[%d:%d], %s" % (d, d + 3, u, u + 3, b, b + 3, "0" if z else "v[%d:%d]" % (d, d + 3)))
            else:
                emit(vgen_mfma(gi, int(k[1])))
            for f in fill[k]:
                if f[0] == "bar": lgt.drain(emit); emit("s_barrier"); continue
                emit(f[1])
                if f[2]: (lgt if f[0] == "lg" else vmt).issue(f[2])

lgt = Trk("lgkmcnt", 15); vmt = Trk("vmcnt", 63)
tmp = []
body(tmp.append, False, lgt, vmt, "x"); body(tmp.append, False, lgt, vmt, "x")
import copy
b00 = []; body(b00.append, True, copy.deepcopy(lgt), copy.deepcopy(vmt), "b00", True)
b0 = []; body(b0.append, True, lgt, vmt, "b0")
b1 = []; body(b1.append, False, lgt, vmt, "b1")
b2 = []; body(b2.append, False, lgt, vmt, "b1")
assert b1 == b2
def emit_body(b):
    for x in b:
        if x.startswith("@"): L(x[1:])
        else: A(x)
C("entering loop: the first group's L2 load (group 3 frag 2) is redundant on entry; sUS must point at group 3")
A("s_waitcnt vmcnt(0)")
def pstamp(base):
    if not (STAMPS and CH == 4): return
    A("%s s[42:43]" % ("s_memrealtime" if STAMPS >= 2 else "s_memtime")); A("s_waitcnt lgkmcnt(0)")
    for p in range(4):
        A("s_cmp_eq_u32 s%d, %d" % (sPASS, p))
        A("s_cselect_b32 s%d, s42, s%d" % (sSTAMP + 2 * (base + 2 * p), sSTAMP + 2 * (base + 2 * p)))
        A("s_cselect_b32 s%d, s43, s%d" % (sSTAMP + 2 * (base + 2 * p) + 1, sSTAMP + 2 * (base + 2 * p) + 1))
PB = nst[0]
if STAMPS and CH == 4: nst[0] += 8
A("s_mov_b32 s%d, 1" % sSPC)
emit_body(b00)
A("s_branch L_body")
L("L_pass")
pstamp(PB)
A("s_add_u32 s%d, s%d, 1" % (sSPC, sPASS)); A("s_cmp_lt_u32 s%d, 2" % sPASS); A("s_cselect_b32 s%d, s%d, 0" % (sSPC, sSPC))
emit_body(b0)
L("L_body")
emit_body(b1)
A("s_nop 2")
pstamp(PB + 1)
C("---- pass end")
kept = [acc(0, 0, 0) + i for i in range(48)] + [acc(3, 0, 0) + i for i in range(48)]
def wt_pair(tl):
    o = []
    Z = [[acc(j, mt, t) for j in range(4)] for (mt, t) in tl]
    for z in Z:
        for h in (0, 2): o.append(pk(z[3] + h, z[3] + h, z[2] + h))
    for z in Z:
        for h in (0, 2): o.append(pk(z[2] + h, z[1] + h, z[2] + h))
    for z in Z:
        for h in (0, 2): o.append(pk(z[3] + h, z[3] + h, z[1] + h, True))
    for z in Z:
        for h in (0, 2): o.append(pk(z[0] + h, z[0] + h, z[2] + h))
    return o
A("s_cmp_ge_u32 s%d, 2" % sPASS); A("s_cbranch_scc1 L_e2")
A("s_nop 2")
for mt in range(4):
    for x in wt_pair([(mt, t) for t in range(3)]): A(x)
A("s_cmp_eq_u32 s%d, 1" % sPASS); A("s_cbranch_scc1 L_e1")
C("E0: save R1")
for i, v in enumerate(kept): A("v_accvgpr_write_b32 a%d, v%d" % (aSV + i, v))
A("s_branch L_next")
L("L_e1")
C("E1: D = 2*R1 - S   (8 regs per step, in-place temps, software pipelined)")
E1T = acc(1, 0, 0)
def rd8(i): return ["v_accvgpr_read_b32 v%d, a%d" % (E1T + 8 * ((i // 8) & 1) + r, aSV + i + r) for r in range(8)]
for x in rd8(0): A(x)
for i in range(0, 96, 8):
    x = E1T + 8 * ((i // 8) & 1)
    for h in (0, 2, 4, 6):
        A("v_pk_fma_f32 v[%d:%d], v[%d:%d], 2.0, v[%d:%d] op_sel_hi:[1,0,1] neg_lo:[0,0,1] neg_hi:[0,0,1]" % (x + h, x + h + 1, x + h, x + h + 1, kept[i] + h, kept[i] + h + 1))
    if i + 8 < 96:
        for y in rd8(i + 8): A(y)
    for r in range(8): A("v_accvgpr_write_b32 a%d, v%d" % (aSV + i + r, x + r))
A("s_branch L_next")
L("L_e2")
C("E2/E3: fused W transform + pack + stage to LDS; packed data goes into dead tiles j=1 (b=0) / j=2 (b=1)")
A("v_add_u32 v28, %d, v%d" % (8 * RP, vOW4)); A("v_add_u32 v29, %d, v%d" % (8 * RP, vOW2))
A("s_nop 0")
pend = []
for mt in range(4):
    va_ = wt_pair([(mt, t) for t in range(3)]); wr = []
    for bb in range(2):
        ng = "-" if bb else ""; jj = 3 if bb else 0
        dst = acc(1 + bb, mt, 0)
        for t in range(3):
            z = acc(jj, mt, t)
            va_.append("v_cvt_pk_bf16_f32 v%d, %sv%d, %sv%d" % (dst + 2 * t, ng, z, ng, z + 1))
            va_.append("v_cvt_pk_bf16_f32 v%d, %sv%d, %sv%d" % (dst + 2 * t + 1, ng, z + 2, ng, z + 3))
        o = (mt & 1) * 4 * RP + 384 * bb
        wr.append("ds_write_b128 v%d, v[%d:%d] offset:%d" % (28 if mt >= 2 else vOW4, dst, dst + 3, o))
        wr.append("ds_write_b64 v%d, v[%d:%d] offset:%d" % (29 if mt >= 2 else vOW2, dst + 4, dst + 5, o))
    for i, x in enumerate(va_):
        A(x)
        if pend and i % 9 == 4: A(pend.pop(0))
    pend = wr
for x in pend: A(x)
rs_ = ["v_accvgpr_read_b32 v%d, a%d" % (v, aSV + i) for i, v in enumerate(kept)]
for _ in range(12): A(rs_.pop(0))
A("s_waitcnt lgkmcnt(0)")
A("s_barrier")
ob = out_block()[:-2]
for x in ob[:15]: A(x)
ob = ob[15:]
for k in range(14):
    for x in ob[3 * k:3 * k + 3]: A(x)
    if k < 13:
        A("s_cbranch_vccnz L_skip%d" % k) if False else None
    for _ in range(6):
        if rs_: A(rs_.pop(0))
assert not rs_
A("s_cmp_eq_u32 s%d, 3" % sPASS); A("s_cbranch_scc1 L_fin")
A("v_add_u32 v%d, %d, v%d" % (vOW4, RP, vOW4)); A("v_add_u32 v%d, %d, v%d" % (vOW2, RP, vOW2))
A("v_add_u32 v%d, %d, v%d" % (vRB, RP, vRB))
A("v_add_u32 v%d, %d, v%d" % (vGO, 224 * 384, vGO))
L("L_next")
A("s_add_u32 s%d, s%d, 1" % (sPASS, sPASS))
A("s_branch L_pass")
L("L_special")
A("s_cmp_eq_u32 s%d, 2" % sSPC); A("s_mov_b32 s%d, 0" % sSPC); A("s_cbranch_scc1 L_sp2")
A("v_cmp_ne_u32 vcc, 0, v%d" % vRHO)
A("v_mov_b32 v12, 0x80008000")
A("s_nop 0")
A("v_cndmask_b32 v12, 0, v12, vcc")
for i in range(8): A("v_xor_b32 v%d, v%d, v12" % (16 + i, 16 + i))
A("s_branch L_special_ret")
L("L_sp2")
A("v_sub_u32 v%d, v%d, v%d" % (vTA, vTA, vRHO)); A("v_sub_u32 v%d, v%d, v%d" % (vTAH, vTAH, vRHO))
A("s_branch L_special_ret")

L("L_fin")
stamp()
if STAMPS:
    A("s_waitcnt vmcnt(0)")
    stamp()
    n = nst[0]
    if os.environ.get("DIAG"):
        i, j, K = [int(x) for x in os.environ["DIAG"].split(",")]
        A("s_sub_u32 s40, s%d, s%d" % (sSTAMP + 2 * j, sSTAMP + 2 * i))
        A("s_mul_i32 s40, s40, %d" % K)
        A("s_add_u32 s40, s40, s%d" % (sSTAMP + 2 * (n - 1)))
        L("L_diag")
        A("s_memrealtime s[42:43]"); A("s_waitcnt lgkmcnt(0)")
        A("s_sub_u32 s41, s42, s40"); A("s_cmp_lt_i32 s41, 0"); A("s_cbranch_scc1 L_diag")
        A("s_endpgm")
    sWS = 24; A("s_mov_b32 s%d, s100" % sWS); A("s_mov_b32 s%d, s101" % (sWS + 1)); A("s_mov_b32 s%d, 0x10000000" % (sWS + 2)); A("s_mov_b32 s%d, 0x00020000" % (sWS + 3))
    A("s_lshl_b32 s%d, s2, 2" % sT0)
    A("s_add_u32 s%d, s%d, s%d" % (sT0, sT0, sW))
    A("s_mul_i32 s%d, s%d, %d" % (sT0, sT0, 8 * n))
    A("s_add_u32 s%d, s%d, 0x1000000" % (sT0, sT0))
    A("v_mov_b32 v16, s%d" % sT0)
    A("v_and_b32 v17, 63, v0")
    A("v_cmp_eq_u32 vcc, 0, v17")
    A("s_and_saveexec_b64 s[40:41], vcc")
    for i in range(n):
        A("v_mov_b32 v18, s%d" % (sSTAMP + 2 * i))
        A("v_mov_b32 v19, s%d" % (sSTAMP + 2 * i + 1))
        A("buffer_store_dwordx2 v[18:19], v16, s[%d:%d], 0 offen offset:%d" % (sWS, sWS + 3, 8 * i))
        A("s_nop 1")
    sys.stderr.write("nstamps=%d\n" % n)
L("L_end")
A("s_endpgm")
errs = hazard_check(E.out[main_start:])
sys.stderr.write("hazard errors: %d\n" % errs)
E.raw(""".section .rodata,"a"
.p2align 6
.amdhsa_kernel %s
  .amdhsa_next_free_vgpr 512
  .amdhsa_next_free_sgpr 102
  .amdhsa_accum_offset 256
  .amdhsa_group_segment_fixed_size 0
  .amdhsa_kernarg_size 56
  .amdhsa_user_sgpr_count 2
  .amdhsa_user_sgpr_kernarg_segment_ptr 1
  .amdhsa_system_sgpr_workgroup_id_x 1
.end_amdhsa_kernel""" % KN)
print(E.text())
```

```python
import sys, os
from common import *
STAMPS = int(sys.argv[1]) if len(sys.argv) > 1 else 0
KN = "standalone__detection_seg_fpn_lateral__vision_kernel"
PP = int(os.environ.get('PP', '400')); CPP = PP // 16; RP = 16 * PP; VB = 16 * RP; VS = 28672; STG = 3072
VB1 = VB + VS; RX = VB + 2 * VS; LDS = 163840
HUGE = 0x40000000
SZ_CF = 224 * 224 * 384; SZ_PC = 112 * 112 * 384; SZ_WL = 192 * 384; SZ_WO = 9 * 192 * 384; SZ_OUT = SZ_CF
SZ_U = 96 * 12288
E = Em(); A = E.A; L = E.L; C = E.C
E.raw("; @launch grid=(256,1,1) block=(256,1,1) lds=%d" % LDS)
E.raw('.amdgcn_target "amdgcn-amd-amdhsa--gfx950"')
E.raw(".text")
def upos(i, j): return ({1: 0, 2: 1, 0: 2, 3: 3}[i], j)
def ugam(p, kk, ks, pidx): return p * 24 + kk * 8 + ks * 2 + {1: 0, 2: 1, 0: 4, 3: 5}[pidx]

vBR0, vBR1, vVW, vTA, vTAH, vUO, vSO4, vSO2, vSO4b, vSO2b, vRHO = 1, 2, 3, 4, 5, 6, 7, 8, 9, 10, 11
vX = 12; vVA = 16; vVT = 24; vBF = 32; ACC = 64
vLANE, vP, vG = 32, 33, 34
T0, T1, T2, T3, T4, T5, T6, T7, T8, T9 = 35, 36, 37, 38, 39, 40, 41, 42, 43, 44
vLB = 45; vMW4 = 47; vMW2 = 49; vTRB = 51; vWD = 54; vCFN, vCFL, vCFR = 57, 58, 59; vQR4, vQR2 = 60, 61; vUL, vUSo = 62, 63; vQO = 53; vLB2 = 30; vCX = 31
vFLG, vFLO = 12, 13
XA, XB, XC, XD, XE, XF = 24, 25, 26, 27, 28, 29
aWL = 0; aPF = 72
aUF = 192; aT = 240
sCF, sPC, sWL, sU, sOUT, sWO, sDBG = 4, 8, 12, 16, 20, 24, 56
sW, sTY, sTX, sRB, sRB2, sDSO, sT0, sT1, sT2, sT3, sCFB, sCFL, sUS, sPCB, sUT, sUSB = 28, 29, 30, 31, 32, 33, 35, 39, 52, 53, 37, 36, 54, 55, 34, 38
sSTAMP = 64
def lacc(t, d): return ACC + (t * 3 + d) * 4
nst = [0]
CH = int(os.environ.get("CHSTAMP", "0"))
def stamp(kind=0):
    if not STAMPS: return
    if kind != 0 and kind != CH: return
    i = nst[0]; nst[0] += 1
    assert sSTAMP + 2 * i + 1 < 98
    A("%s s[%d:%d]" % ("s_memrealtime" if STAMPS >= 2 else "s_memtime", sSTAMP + 2 * i, sSTAMP + 2 * i + 1))
    A("s_waitcnt lgkmcnt(0)"); lg.clear()
lg = Trk("lgkmcnt", 15); vm = Trk("vmcnt", 63)

E.raw(".globl %s\n.p2align 8\n.type %s,@function\n%s:" % (KN, KN, KN))
main_start = len(E.out)
vOW4, vOW2, vRB, vGO = 7, 8, 9, 10


A("s_getpc_b64 s[98:99]")
L("L_pc")
A("s_cmp_ge_u32 s2, 256")
A("s_cbranch_scc1 L_end")
C("warm L2 with this kernel's own code (read-only data loads, result unused)")
A("v_mul_u32_u24 v250, 128, v0")
A("v_min_u32 v251, L_end-L_pc, v250")
A("global_load_dword v251, v251, s[98:99]"); vm.issue("CW")
stamp()
A("s_load_dwordx8 s[40:47], s[0:1], 0")
A("s_load_dwordx4 s[48:51], s[0:1], 32")
A("s_load_dwordx2 s[100:101], s[0:1], 48")
A("v_lshrrev_b32 v%d, 6, v0" % T0)
A("v_and_b32 v%d, 63, v0" % vLANE)
A("v_readfirstlane_b32 s%d, v%d" % (sW, T0))
A("v_and_b32 v%d, 15, v0" % vP)
A("v_lshrrev_b32 v%d, 4, v%d" % (vG, vLANE))
A("s_and_b32 s%d, s2, 7" % sT0)
A("s_lshl_b32 s%d, s%d, 5" % (sT0, sT0))
A("s_lshr_b32 s%d, s2, 3" % sT1)
A("s_add_u32 s%d, s%d, s%d" % (sT0, sT0, sT1))
A("s_lshr_b32 s%d, s%d, 4" % (sTY, sT0))
A("s_and_b32 s%d, s%d, 15" % (sTX, sT0))
A("v_mov_b32 v%d, 0x%x" % (vUSo, HUGE)); A("v_mov_b32 v%d, 0x%x" % (vFLO, HUGE))
A("s_cmp_ge_u32 s%d, 2" % sW)
A("s_cbranch_scc1 L_w23")
sCF0, sMC, sMR, sWHG = 3, 98, 0, 24
vQN, vQL, vQR = 45, 46, 47
vRR = 60; vMW = 47
def capture(f):
    sv = E.out; E.out = []
    f()
    r = [c for c in E.out if not c.strip().startswith(";")]; E.out = sv
    return r
NPW = 144
def calcU():
    sT0, sT1 = 31, 32
    C("task = 2wg + w ; blk = wg>>1 ; g = 2(wg&1) + w -> s33")
    A("s_lshr_b32 s%d, s2, 1" % sT0)
    A("s_and_b32 s33, s2, 1"); A("s_lshl_b32 s33, s33, 1"); A("s_add_u32 s33, s33, s%d" % sW)
    A("s_mul_i32 s60, s%d, 43691" % sT0); A("s_lshr_b32 s60, s60, 19")
    A("s_mul_i32 s61, s60, 12"); A("s_sub_u32 s61, s%d, s61" % sT0)
    A("s_mul_i32 s62, s61, 21846"); A("s_lshr_b32 s62, s62, 16")
    A("s_mul_i32 s63, s62, 3"); A("s_sub_u32 s63, s61, s63")
    A("v_lshrrev_b32 v%d, 2, v%d" % (T1, vLANE))
    A("v_and_b32 v%d, 3, v%d" % (T2, vLANE))
    A("v_lshrrev_b32 v%d, 2, v%d" % (T3, T1)); A("v_and_b32 v%d, 3, v%d" % (T4, T1))
    A("v_lshl_add_u32 v%d, v%d, 3, v%d" % (T3, T3, T4))
    A("s_lshl_b32 s%d, s63, 2" % sT0)
    A("v_add_u32 v%d, s%d, v%d" % (T3, sT0, T3))
    A("v_add_u32 v%d, 32, v%d" % (T4, T1))
    A("s_cmp_eq_u32 s63, 2"); A("s_cselect_b64 vcc, -1, 0")
    A("v_cndmask_b32 v%d, v%d, v%d, vcc" % (T3, T3, T4))
    A("s_mul_i32 s%d, s62, 96" % sT0)
    A("s_mul_i32 s%d, s33, %d" % (sT1, 8 * 384))
    A("s_add_u32 s%d, s%d, s%d" % (sT0, sT0, sT1))
    A("v_lshlrev_b32 v%d, 1, v%d" % (T3, T3))
    A("v_mul_u32_u24 v%d, 768, v%d" % (T4, T2))
    A("v_add3_u32 v%d, v%d, v%d, s%d" % (vUL, T3, T4, sT0))
    A("s_mul_i32 s%d, s60, 12288" % sUT)
def calcU2():
    sT0, sT1 = 31, 32
    A("s_lshl_b32 s%d, s61, 10" % sT0); A("s_lshl_b32 s%d, s33, 8" % sT1); A("s_add_u32 s%d, s%d, s%d" % (sT0, sT0, sT1))
    A("v_lshlrev_b32 v%d, 2, v%d" % (T3, vLANE))
    A("v_add_u32 v%d, s%d, v%d" % (vUSo, sT0, T3))
    A("s_lshr_b32 s%d, s60, 1" % sT0); A("s_lshl_b32 s%d, s%d, 3" % (sT0, sT0)); A("s_and_b32 s%d, s60, 1" % sT1); A("s_lshl_b32 s%d, s%d, 1" % (sT1, sT1))
    A("s_add_u32 s%d, s%d, s%d" % (sT0, sT0, sT1)); A("s_mul_i32 s%d, s%d, 12288" % (sUSB, sT0))
    C("flag byte offset (wg&3)*64 + (wg>>2), thread 0 only")
    A("s_and_b32 s%d, s2, 3" % sT1); A("s_lshl_b32 s%d, s%d, 6" % (sT1, sT1)); A("s_lshr_b32 s%d, s2, 2" % sT0); A("s_add_u32 s%d, s%d, s%d" % (sT0, sT0, sT1))
    A("v_cmp_eq_u32 vcc, 0, v0")
    A("v_mov_b32 v%d, 0x%x" % (T3, HUGE)); A("v_mov_b32 v%d, s%d" % (T4, sT0))
    A("v_cndmask_b32 v%d, v%d, v%d, vcc" % (vFLO, T3, T4))

def calcW():
    for n in range(3):
        if n: A("v_add_u32 v%d, %d, v%d" % (T0, 64 * n, vLANE))
        l_ = T0 if n else vLANE
        A("v_mul_u32_u24 v%d, 2731, v%d" % (T1, l_))
        A("v_lshrrev_b32 v%d, 16, v%d" % (T1, T1))
        A("v_mul_u32_u24 v%d, 24, v%d" % (T2, T1))
        A("v_sub_u32 v%d, v%d, v%d" % (T2, l_, T2))
        A("v_and_b32 v%d, 3, v%d" % (T3, T1)); A("v_lshlrev_b32 v%d, 2, v%d" % (T3, T3))
        A("v_sub_u32 v%d, v%d, v%d" % (T2, T2, T3))
        A("v_add_u32 v%d, 24, v%d" % (T3, T2))
        A("v_min_u32 v%d, v%d, v%d" % (T2, T2, T3))
        A("v_mul_u32_u24 v%d, 384, v%d" % (T3, T1))
        A("v_lshl_add_u32 v%d, v%d, 4, v%d" % (vWD + n, T2, T3))
        if n: A("v_subrev_u32 v%d, %d, v%d" % (vWD + n, 1024 * n, vWD + n))
def calcC():
    sT2 = 32
    A("v_cmp_lt_u32 vcc, %d, v%d" % (CPP - 1, vLANE))
    A("v_subrev_u32 v%d, %d, v%d" % (T0, CPP, vLANE))
    A("s_mul_i32 s%d, s%d, 14" % (sCFB, sTY))
    A("v_cndmask_b32 v%d, v%d, v%d, vcc" % (T0, vLANE, T0))
    A("v_lshlrev_b32 v%d, 4, v%d" % (T0, T0))
    A("v_add_u32 v%d, 384, v%d" % (T1, T0))
    A("v_cndmask_b32 v%d, v%d, v%d, vcc" % (vCFN, T0, T1))
    A("v_mov_b32 v%d, 0x%x" % (T2, HUGE))
    A("v_cndmask_b32 v%d, v%d, v%d, vcc" % (vCFL, T2, T0))
    A("v_cndmask_b32 v%d, v%d, v%d, vcc" % (vCFR, T0, T2))
    C("R offsets")
    A("v_lshlrev_b32 v%d, 4, v%d" % (vQN, vLANE))
    A("v_cmp_gt_u32 vcc, 24, v%d" % vLANE)
    A("v_subrev_u32 v%d, 384, v%d" % (T0, vQN))
    A("s_mul_i32 s%d, s%d, 224" % (sCFB, sCFB))
    A("v_cndmask_b32 v%d, v%d, v%d, vcc" % (vQL, T0, T2))
    A("v_cmp_gt_u32 vcc, 30, v%d" % vLANE)
    A("s_mul_i32 s%d, s%d, 14" % (sT2, sTX))
    A("s_add_u32 s%d, s%d, s%d" % (sCFB, sCFB, sT2))
    A("v_cndmask_b32 v%d, v%d, v%d, vcc" % (vQR, T2, vQN))
    A("s_cmp_eq_u32 s%d, 0" % sTX)
    A("s_cselect_b64 vcc, -1, 0")
    A("s_cselect_b32 s%d, 384, 0" % sT3)
    A("v_cndmask_b32 v%d, v%d, v%d, vcc" % (vCFL, vCFN, vCFL))
    A("v_cndmask_b32 v%d, v%d, v%d, vcc" % (vQL, vQN, vQL))
    A("s_cmp_eq_u32 s%d, 15" % sTX)
    A("s_cselect_b64 vcc, -1, 0")
    A("s_sub_u32 s%d, s%d, 225" % (sCFB, sCFB))
    A("v_cndmask_b32 v%d, v%d, v%d, vcc" % (vCFR, vCFN, vCFR))
    A("v_cndmask_b32 v%d, v%d, v%d, vcc" % (vQR, vQN, vQR))
    A("s_mul_i32 s%d, s%d, 384" % (sCFB, sCFB))
    A("s_mul_i32 s%d, s%d, %d" % (sPCB, sTY, 7 * 112)); A("s_mul_i32 s%d, s%d, 7" % (sT2, sTX)); A("s_add_u32 s%d, s%d, s%d" % (sPCB, sPCB, sT2))
    A("s_sub_u32 s%d, s%d, 113" % (sPCB, sPCB)); A("s_mul_i32 s%d, s%d, 384" % (sPCB, sPCB))
    A("s_cmp_eq_u32 s%d, 0" % sTY)
    A("s_cselect_b32 s%d, 0x%x, s%d" % (sCF0, HUGE, sCFB))
    A("s_cselect_b32 s%d, 0x%x, s%d" % (sCFL, HUGE, sPCB))
    _m = ((1 << 24) - 1) | (((1 << 24) - 1) << CPP)
    A("s_mov_b32 s%d, 0x%x" % (sMC, _m & 0xFFFFFFFF)); A("s_mov_b32 s%d, 0x%x" % (sMC + 1, _m >> 32))
    A("s_mov_b32 s%d, -1" % sMR); A("s_mov_b32 s%d, 0x3fffff" % (sMR + 1))
def calcL():
    sT1, sT2 = 41, 42
    A("v_mul_u32_u24 v%d, %d, v%d" % (T0, PP, vP))
    A("v_lshl_add_u32 v%d, v%d, 4, v%d" % (vLB, vG, T0))
    A("v_add_u32 v%d, %d, v%d" % (vLB + 1, 8 * RP, vLB))
    A("v_add_u32 v%d, %d, v%d" % (vLB2, VB1, vLB))
    A("s_lshl_b32 s%d, s%d, 7" % (sT2, sW))
    A("v_add_u32 v%d, s%d, v%d" % (vMW, sT2, vLB))
    A("v_add_u32 v%d, %d, v%d" % (vMW + 1, 8 * RP, vMW))
    A("v_add_u32 v%d, 1, v%d" % (T2, vP)); A("v_lshrrev_b32 v%d, 1, v%d" % (T2, T2)); A("v_mul_u32_u24 v%d, 384, v%d" % (T2, T2))
    A("s_add_u32 s%d, s%d, %d" % (sT2, sT2, VB))
    A("v_add_u32 v%d, s%d, v%d" % (T2, sT2, T2))
    A("v_lshl_add_u32 v%d, v%d, 4, v%d" % (vRR, vG, T2))
    A("v_lshrrev_b32 v%d, 2, v%d" % (T0, vP))
    A("v_and_b32 v%d, 3, v%d" % (T1, vP))
    A("v_lshl_add_u32 v%d, v%d, 3, v%d" % (T6, vG, T0))
    A("v_mul_u32_u24 v%d, 384, v%d" % (T6, T6))
    A("v_add_u32 v%d, %d, v%d" % (T6, 8 * RP, T6))
    A("s_lshl_b32 s%d, s%d, 3" % (sT1, sW))
    A("v_lshl_add_u32 v%d, v%d, 2, s%d" % (T7, T0, sT1))
    A("v_add_u32 v%d, v%d, v%d" % (T7, T7, T1))
    for u in range(2):
        if u: A("v_add_u32 v%d, 4, v%d" % (T7, T7))
        A("v_subrev_u32 v%d, 24, v%d" % (T9, T7)); A("v_min_u32 v%d, v%d, v%d" % (T8, T7, T9))
        A("v_lshl_add_u32 v%d, v%d, 4, v%d" % (vTRB + u, T8, T6))
        A("v_add_u32 v%d, %d, v%d" % (vTRB + 2 + u, VB1 - 8 * RP, vTRB + u))
SRDS = {"WO": (sWO, 46, SZ_WO), "WL": (sWL, 44, SZ_WL), "CF": (sCF, 40, SZ_CF), "PC": (sPC, 42, SZ_PC), "U": (sU, 100, SZ_U), "OUT": (sOUT, 48, SZ_OUT), "DBG": (sDBG, 50, 256)}
def srd(*names):
    for nm in names:
        s, p, sz = SRDS[nm]
        A("s_mov_b32 s%d, s%d" % (s, p)); A("s_mov_b32 s%d, s%d" % (s + 1, p + 1))
        A("s_mov_b32 s%d, %d" % (s + 2, sz)); A("s_mov_b32 s%d, 0x00020000" % (s + 3))
UG = 160; UGB = 112
def ug_units():
    us = []
    for tap in range(9):
        for e in range(2):
            u = [("buffer_load_ushort v%d, v%d, s[%d:%d], s%d offen offset:%d" % (UG + 2 * tap + e, vUL, sWO, sWO + 3, sUT, 384 * e), "UG")]
            if e == 1 and tap < 8: u.append(("s_add_u32 s%d, s%d, 73728" % (sUT, sUT), None))
            us.append(u)
    return us
WREG = [12 * RP, 8 * RP, VB1]
def w_units(reg):
    us = []
    for loc in range(8):
        for n in range(3):
            u = [("s_mov_b32 m0, %d" % (WREG[reg] + loc * 3072), None), ("s_mov_b32 s%d, %d" % (sDSO, (reg * 8 + loc) * 3072), None)]
            u.append(("buffer_load_dwordx4 v%d, s[%d:%d], s%d offen offset:%d lds" % (vWD + n, sWL, sWL + 3, sDSO, 1024 * n), "WL%d" % reg))
            us.append((None, u))
    return us
def c_units(k):
    us = []
    for r in range(4 * k, 4 * k + 4):
        for j in range(8):
            u = []
            if k < 2: u.append(("s_mov_b32 m0, %d" % (r * RP + j * 2 * PP), None))
            gb = sCF0 if r == 0 else sCFB
            if j == 0:
                u.append(("s_add_u32 s%d, s%d, s%d" % (sT2, gb, sT3), None))
                if r: u.append(("s_add_u32 s%d, s%d, %d" % (sT2, sT2, r * 224 * 384), None))
            else: u.append(("s_add_u32 s%d, s%d, %d" % (sT2, gb, r * 224 * 384 + j * 768), None))
            vo = vCFL if j == 0 else (vCFR if j == 7 else vCFN)
            if k < 2: u.append(("buffer_load_dwordx4 v%d, s[%d:%d], s%d offen lds" % (vo, sCF, sCF + 3, sT2), "CF%d" % k))
            else:
                a_ = ((r - 8) * 8 + j) * 4
                u.append(("buffer_load_dwordx4 a[%d:%d], v%d, s[%d:%d], s%d offen" % (a_, a_ + 3, vo, sCF, sCF + 3, sT2), "CF%d_%d" % (k, r & 3)))
            us.append((sMC, u))
    return us
PCJ = {0: [0, 1, 2], 1: [3, 4], 2: [5, 6], 3: [7, 8]}
def r_units(k):
    us = []
    for j in PCJ[k]:
        for q in range(4):
            u = [("s_mov_b32 m0, %d" % ((VB + j * 3456 if j < 8 else RX) + q * 864), None)]
            gb = sCFL if j == 0 else sPCB
            if q == 0:
                u.append(("s_add_u32 s%d, s%d, s%d" % (sT2, gb, sT3), None))
                if j: u.append(("s_add_u32 s%d, s%d, %d" % (sT2, sT2, j * 112 * 384), None))
            else: u.append(("s_add_u32 s%d, s%d, %d" % (sT2, gb, j * 112 * 384 + q * 864), None))
            u.append(("buffer_load_dwordx4 v%d, s[%d:%d], s%d offen lds" % (vQL if q == 0 else (vQR if q == 3 else vQN), sPC, sPC + 3, sT2), "R%d" % k))
            us.append((sMR, u))
    return us
cur_exec = [None]
def set_exec(m):
    if cur_exec[0] != m:
        A("s_mov_b64 exec, -1" if m is None else "s_mov_b64 exec, s[%d:%d]" % (m, m + 1)); cur_exec[0] = m
def emit_lu(us):
    for (m, u) in us:
        set_exec(m)
        for x in u:
            A(x[0])
            if x[1]: vm.issue(x[1])
def merge(a, b, blk=1):
    a = [a[i:i + blk] for i in range(0, len(a), blk)]; b = [b[i:i + blk] for i in range(0, len(b), blk)]
    n = max(len(a), len(b)); seq = []; pa = pb = 0
    for i in range(n):
        while pa < len(a) and pa * n <= i * len(a): seq += a[pa]; pa += 1
        while pb < len(b) and pb * n <= i * len(b): seq += b[pb]; pb += 1
    for x in a[pa:] + b[pb:]: seq += x
    return seq
def lrow(r): return ACC + 16 * (r % 12)
def pc_tile(j): return 0 if j == 0 else 2 * j - 1
def r_reads(k):
    o = []
    for j in PCJ[k]:
        b = lrow(pc_tile(j))
        for u in range(2):
            o.append(("ds_read_b128 v[%d:%d], v%d offset:%d" % (b + 8 + 4 * u, b + 11 + 4 * u, vRR, (j * 3456 if j < 8 else RX - VB) + 64 * u), "RR%d" % j))
    return o
def emit_units(units):
    for u in units:
        for x in u:
            A(x[0])
            if x[1]: vm.issue(x[1])
def calc2_fn():
    sT0, sT1, sT2 = 40, 41, 42
    A("v_lshrrev_b32 v%d, 2, v%d" % (T0, vP))
    A("v_and_b32 v%d, 3, v%d" % (T1, vP))
    A("v_lshrrev_b32 v%d, 1, v%d" % (T2, vG))
    A("v_and_b32 v%d, 1, v%d" % (T3, vG))
    A("v_lshlrev_b32 v%d, 3, v%d" % (T4, T1))
    C("V-gen tr base")
    A("v_lshl_add_u32 v%d, v%d, 2, v%d" % (T6, T3, T0))
    A("v_mul_u32_u24 v%d, %d, v%d" % (T6, PP, T6))
    A("v_mul_u32_u24 v%d, %d, v%d" % (T7, RP, T2))
    A("v_add3_u32 v%d, v%d, v%d, v%d" % (T6, T6, T7, T4))
    A("s_lshl_b32 s%d, s%d, 5" % (sT2, sW))
    A("s_add_u32 s%d, s%d, %d" % (sT2, sT2, RP))
    A("v_add_u32 v%d, s%d, v%d" % (vTA, sT2, T6))
    A("v_add_u32 v%d, %d, v%d" % (vTAH, 8 * RP, vTA))
    A("v_sub_u32 v%d, %d, v%d" % (vRHO, RP, T7))
    A("v_and_b32 v%d, 7, v%d" % (T6, vP))
    A("v_xor_b32 v%d, v%d, v%d" % (T7, vG, T6))
    A("v_lshlrev_b32 v%d, 4, v%d" % (T7, T7))
    A("v_lshl_add_u32 v%d, v%d, 7, v%d" % (T7, vP, T7))
    A("v_add_u32 v%d, %d, v%d" % (vBR0, VB, T7))
    A("v_xor_b32 v%d, 64, v%d" % (vBR1, vBR0))
    A("v_cmp_gt_u32 vcc, 8, v%d" % vP)
    A("v_mov_b32 v%d, 0x30000" % T9)
    A("s_nop 0")
    A("v_cndmask_b32 v14, v%d, v%d, vcc" % (T9, vBR0))
    A("v_cndmask_b32 v15, v%d, v%d, vcc" % (T9, vBR1))
    A("s_lshl_b32 s%d, s%d, 1" % (sT2, sW))
    A("v_add_u32 v%d, s%d, v%d" % (T7, sT2, T2))
    A("v_xor_b32 v%d, v%d, v%d" % (T7, T7, T6))
    A("v_lshlrev_b32 v%d, 4, v%d" % (T7, T7))
    A("v_lshl_add_u32 v%d, v%d, 7, v%d" % (T7, T6, T7))
    A("v_lshl_add_u32 v%d, v%d, 3, v%d" % (T7, T3, T7))
    A("v_lshrrev_b32 v%d, 3, v%d" % (T8, vP))
    A("v_mul_u32_u24 v%d, 7168, v%d" % (T9, T8))
    A("v_add_u32 v%d, v%d, v%d" % (T7, T7, T9))
    A("v_add_u32 v%d, %d, v%d" % (vVW, VB, T7))
    C("output staging: OW4 = (n>>3)*2RP + tx_*784 + 96w + 16G ; OW2 = ... + 64 + 8G ; RB = w*784 + lane*16 ; GO = tile base + w*768 + lane*16 (lane<48)")
    A("v_mul_u32_u24 v%d, %d, v%d" % (T7, 2 * RP, T8))
    A("v_mul_u32_u24 v%d, 784, v%d" % (T9, T6))
    A("s_mul_i32 s%d, s%d, 96" % (sT2, sW))
    A("v_add3_u32 v%d, v%d, v%d, s%d" % (T7, T7, T9, sT2))
    A("v_lshl_add_u32 v%d, v%d, 4, v%d" % (vOW4, vG, T7))
    A("v_lshl_add_u32 v%d, v%d, 3, v%d" % (vOW2, vG, T7))
    A("v_add_u32 v%d, 64, v%d" % (vOW2, vOW2))
    A("v_lshlrev_b32 v%d, 4, v%d" % (T7, vLANE))
    A("s_mul_i32 s%d, s%d, 784" % (sT2, sW))
    A("v_add_u32 v%d, s%d, v%d" % (vRB, sT2, T7))
    A("s_mul_i32 s%d, s%d, %d" % (sT1, sTY, 14 * 224 * 384))
    A("s_mul_i32 s%d, s%d, %d" % (sT2, sTX, 14 * 384))
    A("s_add_u32 s%d, s%d, s%d" % (sT1, sT1, sT2))
    A("s_mul_i32 s%d, s%d, 768" % (sT2, sW))
    A("s_add_u32 s%d, s%d, s%d" % (sT1, sT1, sT2))
    A("v_add_u32 v%d, s%d, v%d" % (vGO, sT1, T7))
    A("v_cmp_gt_u32 vcc, 48, v%d" % vLANE)
    A("v_mov_b32 v%d, 0x%x" % (T9, HUGE))
    A("s_nop 0")
    A("v_cndmask_b32 v%d, v%d, v%d, vcc" % (vGO, T9, vGO))
    C("s45 = 3072 (second pair offset) or HUGE for wave 3")
    A("s_cmp_eq_u32 s%d, 3" % sW); A("s_cselect_b32 s45, 0x%x, 3072" % HUGE) if False else None
    A("s_mov_b32 s44, 12288"); A("s_mov_b32 s45, 3072"); A("s_cmp_eq_u32 s%d, 3" % sW); A("s_cselect_b32 s45, 0x%x, s45" % HUGE)
    C("U stream voffset; flag store offset (tid==0 && wg<72 -> wg else HUGE); poll offset lane*4 (lane<18)")
    A("v_lshlrev_b32 v%d, 4, v%d" % (T0, vLANE))
    A("s_mul_i32 s%d, s%d, 3072" % (sT2, sW))
    A("v_add_u32 v%d, s%d, v%d" % (vUO, sT2, T0))
    C("T matrices")
    A("v_lshlrev_b32 v%d, 2, v%d" % (T7, T3))
    A("v_lshlrev_b32 v%d, 1, v%d" % (T9, T6))
    A("v_sub_u32 v%d, v%d, v%d" % (T7, T7, T9))
    A("v_cmp_eq_u32 vcc, 7, v%d" % T6)
    A("v_add_u32 v%d, 64, v%d" % (T9, T7))
    A("s_nop 0")
    A("v_cndmask_b32 v%d, v%d, v%d, vcc" % (T7, T7, T9))
    P1, M1 = 0x3F80, 0xBF80
    tab = {0: ((0, P1, 2, M1), (1, P1, 2, P1)), 1: ((1, M1, 2, P1), (1, P1, 3, M1))}
    A("v_cmp_eq_u32 s[60:61], 1, v%d" % T8)
    for nt in range(2):
        (a0, va0, b0, vb0), (a1, va1, b1, vb1) = tab[nt]
        for (dst, x0, x1) in ((XA, a0, a1), (XB, va0, va1), (XC, b0, b1), (XD, vb0, vb1)):
            A("v_mov_b32 v%d, 0x%x" % (dst, x0))
            A("v_mov_b32 v%d, 0x%x" % (XE, x1))
            A("v_cndmask_b32 v%d, v%d, v%d, s[60:61]" % (dst, dst, XE))
        for ep in range(4):
            for hh in range(2):
                e = 2 * ep + hh
                off = 8 * (e >> 2) + (e & 3)
                dst = T0 if hh == 0 else T1
                A("v_add_u32 v%d, %d, v%d" % (T9, off, T7))
                A("v_cmp_eq_u32 vcc, v%d, v%d" % (T9, XA))
                A("v_cmp_eq_u32 s[62:63], v%d, v%d" % (T9, XC))
                A("s_nop 0")
                A("v_cndmask_b32 v%d, 0, v%d, vcc" % (dst, XB))
                A("v_cndmask_b32 v%d, v%d, v%d, s[62:63]" % (dst, dst, XD))
            A("v_lshl_or_b32 v%d, v%d, 16, v%d" % (16 + 4 * nt + ep, T1, T0))
    C("T' (first row of pair negated) -> a240..247")
    A("v_cmp_ne_u32 vcc, 0, v%d" % vRHO)
    A("v_mov_b32 v%d, 0x80008000" % T0)
    A("s_nop 0")
    A("v_cndmask_b32 v%d, 0, v%d, vcc" % (T0, T0))
    for i in range(8):
        A("v_xor_b32 v%d, v%d, v%d" % (T1 + (i & 1), 16 + i, T0))
        A("v_accvgpr_write_b32 a%d, v%d" % (aT + i, T1 + (i & 1)))


def interleave(units, calc, per):
    ci = 0
    for u in units:
        for x in u:
            A(x[0])
            if x[1]: vm.issue(x[1])
        k = 0
        while ci < len(calc) and (k < per or calc[ci].strip().startswith("s_cselect") or calc[ci - 1].strip().startswith("s_cmp")):
            E.out.append(calc[ci]); ci += 1; k += 1
    return calc[ci:]
def u_compute(tk):
    C("U task compute")
    G0 = UGB if tk else UG
    if tk == 0:
        for i in range(18):
            A("v_lshlrev_b32 v%d, 16, v%d" % (UG + i, UG + i))
    RRg = UG + 18; TTg = UG + 24; URg = UG + 26; ORg = (UGB + 18) if tk else (UG + 58)
    for e in range(2):
        g = lambda a, b: G0 + (3 * a + b) * 2 + e
        R = {}
        for b in range(3):
            R[(0, b)] = g(0, b); R[(3, b)] = g(2, b)
            A("v_add_f32 v%d, v%d, v%d" % (TTg, g(0, b), g(2, b)))
            A("v_mul_f32 v%d, 0.5, v%d" % (TTg, TTg))
            A("v_fma_f32 v%d, 0.5, v%d, v%d" % (RRg + b, g(1, b), TTg)); R[(1, b)] = RRg + b
            A("v_fma_f32 v%d, -0.5, v%d, v%d" % (RRg + 3 + b, g(1, b), TTg)); R[(2, b)] = RRg + 3 + b
        ub = URg + 16 * e
        for i in range(4):
            A("v_mov_b32 v%d, v%d" % (ub + 4 * i + 0, R[(i, 0)]))
            A("v_mov_b32 v%d, v%d" % (ub + 4 * i + 3, R[(i, 2)]))
            A("v_add_f32 v%d, v%d, v%d" % (TTg, R[(i, 0)], R[(i, 2)]))
            A("v_mul_f32 v%d, 0.5, v%d" % (TTg, TTg))
            A("v_fma_f32 v%d, 0.5, v%d, v%d" % (ub + 4 * i + 1, R[(i, 1)], TTg))
            A("v_fma_f32 v%d, -0.5, v%d, v%d" % (ub + 4 * i + 2, R[(i, 1)], TTg))
    for i in range(4):
        for j in range(4):
            n_ = "-" if i == 0 else ""
            p, pidx = upos(i, j)
            o = ORg + 4 * i + j
            A("v_cvt_pk_bf16_f32 v%d, %sv%d, %sv%d" % (o, n_, URg + 4 * i + j, n_, URg + 16 + 4 * i + j))
            A("s_add_u32 s%d, s%d, %d" % (sT2, sUSB, ugam(p, 0, 0, pidx) * 12288))
            A("buffer_store_dword v%d, v%d, s[%d:%d], s%d offen offset:%d sc0 sc1" % (o, vUSo, sU, sU + 3, sT2, 16 * tk))

sHI = 31
def unpack_rows(js):
    ops = []
    for j in js:
        b = lrow(pc_tile(j))
        dsts = [b] if j in (0, 8) else [lrow(2 * j), b]
        for dbase in dsts:
            for i in range(8):
                ops.append("v_lshlrev_b32 v%d, 16, v%d" % (dbase + 2 * i, b + 8 + i))
                ops.append("v_and_b32 v%d, s%d, v%d" % (dbase + 2 * i + 1, sHI, b + 8 + i))
    return ops
def mwrite(r):
    b = lrow(r)
    ops = []
    for u in range(2):
        ops += [("x", "v_cvt_pk_bf16_f32 v%d, v%d, v%d" % (b + 4 * u + i, b + 8 * u + 2 * i, b + 8 * u + 2 * i + 1), None) for i in range(4)]
        ops.append(("lg", "ds_write_b128 v%d, v[%d:%d] offset:%d" % (vMW + (r >> 3), b + 4 * u, b + 4 * u + 3, (r & 7) * RP + 64 * u), "MW"))
    return ops
aPF = 96
def pread(r, kc):
    a = aPF + ((r & 1) * 6 + kc) * 4
    if r >= 12: return ("lg", "ds_read_b128 a[%d:%d], v%d offset:%d" % (a, a + 3, vLB2, (r - 12) * RP + 64 * kc), "P%d_%d" % (r, kc))
    return ("lg", "ds_read_b128 a[%d:%d], v%d offset:%d" % (a, a + 3, vLB + (r >> 3), (r & 7) * RP + 64 * kc), "P%d_%d" % (r, kc))

GORD = [(0, 1), (0, 2), (1, 1), (1, 2), (0, 0), (0, 3), (1, 0), (1, 3)]
groups = []
for n in range(12):
    for (ks, pidx) in GORD: groups.append((n, n // 3, n % 3, ks, pidx))
def uload(q, t):
    n, p, kk, ks, pidx = groups[q]
    a = aUF + 12 * (q % 4) + 4 * t
    r = []
    assert ugam(p, kk, ks, pidx) == q
    if t == 0: r.append((("s_mov_b32 s%d, 0" % sUS) if q == 0 else ("s_add_u32 s%d, s%d, s44" % (sUS, sUS)), None))
    r.append(("buffer_load_dwordx4 a[%d:%d], v%d, s[%d:%d], s%d offen offset:%d" % (a, a + 3, vUO, sU, sU + 3, sUS, 1024 * t), "U%d_%d" % (q, t)))
    return r


n0 = nst[0]
C("======== waves 0,1 : U tasks")
A("s_cmp_ge_u32 s2, %d" % NPW); A("s_cbranch_scc1 L_cw")
calcU()
A("s_waitcnt lgkmcnt(0)")
srd("WO")
rest = interleave(ug_units(), capture(calcU2), 2)
assert not rest
A("s_branch L_cw")
C("======== waves 2,3")
L("L_w23")
calcW()
A("s_cmp_eq_u32 s%d, 3" % sW); A("s_cbranch_scc1 L_loader")
A("s_waitcnt lgkmcnt(0)")
srd("WL")
emit_lu(w_units(0))
C("======== compute waves (0,1,2)")
L("L_cw")
stamp(2)
A("s_waitcnt lgkmcnt(0)")
srd("U", "OUT", "DBG")
calcL()
calc2_fn()
A("s_mov_b32 s%d, 0xffff0000" % sHI)
UPOS = int(os.environ.get("UPOS", "0"))
def utask():
    A("s_cmp_ge_u32 s%d, 2" % sW); A("s_cbranch_scc1 L_bw")
    A("s_cmp_ge_u32 s2, %d" % NPW); A("s_cbranch_scc1 L_bw")
    A("s_waitcnt vmcnt(0)")
    u_compute(0)
    L("L_bw")
if UPOS == 0: utask()
A("s_cmp_lg_u32 s%d, 2" % sW); A("s_cbranch_scc1 L_bw0")
A("s_waitcnt vmcnt(0)")
L("L_bw0")
stamp(2)
A("s_barrier")
stamp(2)
lg.clear(); vm.ops = []
FLB = int(os.environ.get("FLB", "1"))
def flag():
    C("flag (thread 0 of producer WGs; offset out of range elsewhere); wave 0 only")
    A("s_cmp_lg_u32 s%d, 0" % sW); A("s_cbranch_scc1 L_nf")
    A("v_mov_b32 v%d, 1" % T4)
    A("buffer_store_byte v%d, v%d, s[%d:%d], 0 offen sc0 sc1" % (T4, vFLO, sDBG, sDBG + 3))
    L("L_nf")
def wfr(kc):
    o = []
    for t in range(4):
        for h in range(2):
            a = aWL + (kc * 4 + t) * 4 + 2 * h
            base = vTRB + (t >> 1) + (2 if kc >= 4 else 0)
            off = WREG[kc >> 1] - (8 * RP if kc < 4 else VB1) + (kc & 1) * 12288 + 1536 * h + 8 * (t & 1)
            o.append(("ds_read_b64_tr_b16 a[%d:%d], v%d offset:%d" % (a, a + 1, base, off), "WF%d" % kc))
    return o
def p0(kc, r):
    a = aPF + ((kc * 4 + r) % 12) * 4
    return ("ds_read_b128 a[%d:%d], v%d offset:%d" % (a, a + 3, vLB, r * RP + 64 * kc), "Q%d_%d" % (kc, r))
SYN = int(os.environ.get("SYN", "12"))
S4R = int(os.environ.get("S4R", "13")); S4I = int(os.environ.get("S4I", "12"))
BWI = int(os.environ.get("BWI", "20"))
sq = []; units = []
def qunp(j, dl): return [("@", {"RR%d" % j}, 4, dl)] + [(x, None, 4, dl) for x in unpack_rows([j])]
def qmw(r): return [(x[1], x[2], 8 if x[2] else 4, 99) for x in mwrite(r)]
def pop():
    x = sq.pop(0)
    if x[0] == "@": lg.need(x[1], A); return
    A(x[0])
    if x[1]: lg.issue(x[1])
def iss(x): A(x[0]); lg.issue(x[1])
for x in r_reads(0): iss(x)
for x in wfr(0): iss(x)
for r in range(4): iss(p0(0, r))
unp = unpack_rows([0, 1, 2])
lg.need({"RR0", "RR1", "RR2"}, A)
f1 = wfr(1) + [p0(1, r) for r in range(4)]
for i, x in enumerate(unp):
    A(x)
    if i % 6 == 0 and f1: iss(f1.pop(0))
assert not f1
A("s_nop 1")
lq = []
for kc in range(6):
    if kc + 2 < 6: lq += [p0(kc + 2, r) for r in range(4)]
    for r in range(4):
        while any(x[1] in ("WF%d" % kc, "Q%d_%d" % (kc, r)) for x in lq): iss(lq.pop(0))
        lg.need({"WF%d" % kc, "Q%d_%d" % (kc, r)}, A)
        for t in range(4):
            a = lrow(r) + 4 * t; w = aWL + (kc * 4 + t) * 4; p = aPF + ((kc * 4 + r) % 12) * 4
            A("v_mfma_f32_16x16x32_bf16 v[%d:%d], a[%d:%d], a[%d:%d], v[%d:%d]" % (a, a + 3, w, w + 3, p, p + 3, a, a + 3))
            n = (kc & 1) * 16 + r * 4 + t + 1
            bud = 8
            if kc < 4 and n == BWI:
                bw = (kc >> 1) + 1
                if UPOS == bw: utask()
                stamp(2)
                if FLB == bw: A("s_waitcnt vmcnt(0)")
                A("s_barrier")
                if FLB == bw: flag()
                lq = wfr(2 * bw) + lq + wfr(2 * bw + 1)
                bud = 0
            if kc == 4 and n == 16:
                while lq: iss(lq.pop(0))
                stamp(2)
                if FLB == 3: A("s_waitcnt vmcnt(0)")
                lg.drain(A)
                A("s_barrier")
                if FLB == 3: flag()
                lq = [(x[1], x[2]) for x in [pread(4, c_) for c_ in range(6)]] + r_reads(1)
                sq += qunp(3, 5) + qunp(4, 7)
                bud = 0
            while lq and bud >= 4:
                iss(lq.pop(0)); bud -= 4
            while kc == 5 and not lq and sq and sq[0][2] <= bud and r >= 2:
                bud -= sq[0][2]; pop()
assert not lq
for r in range(4, 16):
    k = r >> 2; last = (r & 3) == 3 and r < 15
    fl = False
    while any(x[3] <= r for x in sq): pop(); fl = True
    if fl: A("s_nop 1")
    lg.need({"P%d_%d" % (r, kc) for kc in range(3)}, A)
    pq = [pread(r + 1, kc) for kc in range(6)] if r < 15 else []
    for i in range(24):
        kc, d = divmod(i, 4)
        if i == 3 and (r > 12 or (r & 3) == 0 and r > 4): sq[:0] = qmw(r - 1)
        if i == 3 and r == 4:
            n_ = len([x for x in sq if x[3] <= 5])
            sq[n_:n_] = qmw(0) + qmw(1); sq += qmw(2) + qmw(3)
        a = lrow(r) + 4 * d; w = aWL + (kc * 4 + d) * 4; p = aPF + ((r & 1) * 6 + kc) * 4
        A("v_mfma_f32_16x16x32_bf16 v[%d:%d], a[%d:%d], a[%d:%d], v[%d:%d]" % (a, a + 3, w, w + 3, p, p + 3, a, a + 3))
        bud = 8
        if last and i == SYN - 1:
            k1 = k + 1
            stamp(2)
            if FLB == 4 and k1 == 2: A("s_waitcnt vmcnt(0)")
            lg.drain(A)
            A("s_barrier")
            if FLB == 4 and k1 == 2: flag()
            bud = 0
            rr = []
            if k1 < 3: rr = [(x[0], x[1], 4, 4 * k1 + 1) for x in r_reads(k1)]
            if k1 == 2: rr += [(x[0], x[1], 4, 99) for x in r_reads(3)]
            mw = qmw(r - 3) + qmw(r - 2) + qmw(r - 1)
            sq += rr + mw[:10] + qunp(2 * k1 + 1, 4 * k1 + 1) + mw[10:] + qunp(2 * k1 + 2, 4 * k1 + 3)
        if r == S4R and i == S4I - 1:
            stamp(2)
            A("s_barrier")
            stamp(2)
            bud = 4
            for q in range(4):
                for t in range(3): units.append(uload(q, t))
        if pq and ((not last and d == 0) or (last and i >= SYN and (i - SYN) % 2 == 0)):
            x = pq.pop(0); A(x[1]); lg.issue(x[2]); bud -= 4
        if i == 11:
            n0_ = len(E.out); lg.need({"P%d_%d" % (r, c2) for c2 in range(3, 6)}, A)
            if len(E.out) > n0_: bud -= 4
        if i == 23: bud -= 4
        if units and bud == 8 and d == 2:
            emit_units([units.pop(0)]); bud = 0
        while sq and sq[0][2] <= bud:
            bud -= sq[0][2]; pop()
    assert not pq
while sq: pop()
emit_units(units)
A("s_nop 6")
for x in mwrite(15): A(x[1])
lg.drain(A)
A("s_branch L_sf")
n1 = nst[0]
C("======== loader (wave 3)")
L("L_loader")
nst[0] = n0
vm.ops = ["CW"]; lg.clear()
calcC()
A("s_waitcnt lgkmcnt(0)")
srd("PC", "CF", "WL")
stamp(2)
LEAD = int(os.environ.get("LEAD", "40"))
seq = r_units(0) + c_units(0) + merge(w_units(1) + w_units(2), c_units(1), 4) + r_units(1) + r_units(2) + r_units(3) + c_units(2) + c_units(3)
tags = [u[-1][1] for (m, u) in seq]
events = [({"R0", "CF0"}, "Bw0"), ({"WL1"}, "Bw1"), ({"WL2"}, "Bw2"), ({"CF1", "R1"}, "S1")]
pos = 0
for (ev, nm) in events:
    lastidx = max(i for i, t in enumerate(tags) if t in ev)
    upto = min(len(seq), lastidx + 1 + LEAD)
    emit_lu(seq[pos:upto]); pos = max(pos, upto)
    vm.need(ev, A)
    stamp(2)
    A("s_barrier")
    if nm == "Bw0": stamp(2)
emit_lu(seq[pos:])
set_exec(None)
srd("U", "OUT", "DBG")
A("v_lshlrev_b32 v%d, 2, v%d" % (T5, vLANE))
PLP = int(os.environ.get("PLP", "2")); PLM = os.environ.get("PLM", " sc0 sc1")
def poll1(): A("buffer_load_dword v%d, v%d, s[%d:%d], 0 offen%s" % (vFLG, T5, sDBG, sDBG + 3, PLM)); vm.issue("POLL")
if PLP == 0: poll1()
A("v_add_u32 v%d, %d, v%d" % (50, 8 * RP, vQN)); A("v_add_u32 v%d, %d, v%d" % (51, VB1, vQN))
def cwrite(k):
    set_exec(sMC)
    for rr_ in range(4):
        vm.need("CF%d_%d" % (k, rr_), A)
        for j in range(8):
            a_ = (((k - 2) * 4 + rr_) * 8 + j) * 4
            A("ds_write_b128 v%d, a[%d:%d] offset:%d" % (50 + (k - 2), a_, a_ + 3, rr_ * RP + j * 2 * PP))
    set_exec(None)
cwrite(2)
A("s_waitcnt lgkmcnt(0)")
stamp(2)
A("s_barrier")
if PLP == 1: poll1()
cwrite(3)
if PLP == 2: poll1()
calc2_fn()
A("v_cmp_gt_u32 vcc, 9, v%d" % vP)
A("v_mov_b32 v%d, 0x01010101" % T4)
A("s_lshr_b32 s%d, s2, 3" % sT1); A("s_mul_i32 s%d, s%d, 36864" % (sT1, sT1))
A("v_cndmask_b32 v%d, 0, v%d, vcc" % (T4, T4))
A("v_lshlrev_b32 v%d, 2, v%d" % (T5, vLANE))
A("s_waitcnt vmcnt(0) lgkmcnt(0)"); vm.ops = []
C("first poll result known; if ready warm now, else after S3")
A("v_cmp_ne_u32 vcc, v%d, v%d" % (T4, vFLG))
A("s_nop 1")
def warm():
    for i_ in range(9):
        for n in range(4):
            A("buffer_load_dwordx4 a[%d:%d], v%d, s[%d:%d], s%d offen offset:%d" % (128 + 16 * (i_ % 4) + 4 * n, 128 + 16 * (i_ % 4) + 4 * n + 3, vQN, sU, sU + 3, sT1, 1024 * n))
        if i_ < 8: A("s_add_u32 s%d, s%d, 4096" % (sT1, sT1))
A("s_or_b32 s60, vcc_lo, vcc_hi")
A("s_cbranch_scc1 L_late")
warm()
stamp(2)
A("s_barrier")
A("s_branch L_s4")
L("L_late")
A("buffer_load_dword v%d, v%d, s[%d:%d], 0 offen sc0 sc1" % (vFLG, T5, sDBG, sDBG + 3))
A("s_barrier")
L("L_poll")
A("s_waitcnt vmcnt(0)")
A("v_cmp_ne_u32 vcc, v%d, v%d" % (T4, vFLG))
A("s_nop 1")
A("s_or_b32 s60, vcc_lo, vcc_hi")
A("s_cbranch_scc0 L_polled")
A("s_sleep 16")
A("buffer_load_dword v%d, v%d, s[%d:%d], 0 offen sc0 sc1" % (vFLG, T5, sDBG, sDBG + 3))
A("s_branch L_poll")
L("L_polled")
warm()
L("L_s4")
stamp(2)
A("s_barrier")
stamp(2)
for q in range(4):
    for t in range(3): emit_units([uload(q, t)])
assert nst[0] == n1, (nst[0], n1)
L("L_sf")
lg.clear()
if int(os.environ.get("CW2", "1")):
    C("re-warm L2 with the main-phase code")
    A("s_getpc_b64 s[60:61]")
    L("L_pc2")
    A("v_mul_u32_u24 v31, 128, v0")
    A("v_min_u32 v31, L_end-L_pc2, v31")
    A("global_load_dword v31, v31, s[60:61]")
A("s_barrier")
stamp()

aVA = aT + 8
aSV = 0
aOR = 96
def acc(j, mt, t): return ACC + ((j * 4 + mt) * 3 + t) * 4
def pk(dst, a, b, neg=False):
    return "v_pk_add_f32 v[%d:%d], v[%d:%d], v[%d:%d]%s" % (dst, dst + 1, a, a + 1, b, b + 1, " neg_lo:[0,1] neg_hi:[0,1]" if neg else "")
def vgen_tr(c, k):
    x = aVA + 4 * (k & 1); base = vTA if k < 4 else vTAH
    o = (c % 3) * 128 + (RP if c // 3 == 3 else 0)
    return [("lg", "ds_read_b64_tr_b16 a[%d:%d], v%d offset:%d" % (x + 2 * h, x + 2 * h + 1, base, o + (k & 3) * 2 * RP + h * 8 * PP), "VA%d" % (k & 1)) for h in range(2)]
def vgen_mfma(c, k, which):
    x = aVA + 4 * (k & 1); d = vVT + 4 * which
    tt = ("v[%d:%d]" % (16 + 4 * which, 19 + 4 * which)) if c < 3 else ("a[%d:%d]" % (aT + 4 * which, aT + 3 + 4 * which))
    return "v_mfma_f32_16x16x32_bf16 v[%d:%d], a[%d:%d], %s, 0" % (d, d + 3, x, x + 3, tt)
def vgen_out(c, k, which):
    d = vVT + 4 * which
    return [("x", "v_cvt_pk_bf16_f32 v%d, v%d, v%d" % (d, d, d + 1), None), ("x", "v_cvt_pk_bf16_f32 v%d, v%d, v%d" % (d + 1, d + 2, d + 3), None),
            ("lg", "ds_write_b64 v%d, v[%d:%d] offset:%d" % (vVW, d, d + 1, (c & 1) * VS + which * 14336 + k * 1024), "VW")]
def bread(q, mt):
    n, gi = divmod(q, 8)
    ks, pidx = GORD[gi]
    b = vBF + 16 * (q & 1) + 4 * mt
    reg = (15 if ks else 14) if mt == 3 else (vBR1 if ks else vBR0)
    return ("lg", "ds_read_b128 v[%d:%d], v%d offset:%d" % (b, b + 3, reg, (n & 1) * VS + pidx * 7168 + mt * 2048), "B%d_%d" % (q, mt))
def uld(q, t):
    a = aUF + 12 * (q % 4) + 4 * t
    return ("vm", "buffer_load_dwordx4 a[%d:%d], v%d, s[%d:%d], s%d offen offset:%d" % (a, a + 3, vUO, sU, sU + 3, sUS, 1024 * t), "U%d_%d" % (q, t))

C("V-gen chunk 0 (pipelined)")
for k in range(7):
    base = vTA if k < 4 else vTAH
    for h in range(2):
        A("ds_read_b64_tr_b16 a[%d:%d], v%d offset:%d" % (96 + 4 * k + 2 * h, 97 + 4 * k + 2 * h, base, (k & 3) * 2 * RP + h * 8 * PP)); lg.issue("V0_%d" % k)
dtmp = lambda k, w2: acc(1, 0, 0) + (2 * k + w2) * 4
for k in range(7):
    lg.need("V0_%d" % k, A)
    for w2 in range(2):
        d = dtmp(k, w2)
        A("v_mfma_f32_16x16x32_bf16 v[%d:%d], a[%d:%d], v[%d:%d], 0" % (d, d + 3, 96 + 4 * k, 99 + 4 * k, 16 + 4 * w2, 19 + 4 * w2))
A("s_nop 1")
for k in range(7):
    for w2 in range(2):
        d = dtmp(k, w2)
        A("v_cvt_pk_bf16_f32 v%d, v%d, v%d" % (d, d, d + 1)); A("v_cvt_pk_bf16_f32 v%d, v%d, v%d" % (d + 1, d + 2, d + 3))
        A("ds_write_b64 v%d, v[%d:%d] offset:%d" % (vVW, d, d + 1, w2 * 14336 + k * 1024)); lg.issue("VW")
for x in vgen_tr(1, 0): A(x[1]); lg.issue(x[2])
lg.drain(A)
A("s_barrier")
stamp()
for mt in range(4):
    x = bread(0, mt); A(x[1]); lg.issue(x[2])
A("s_waitcnt vmcnt(0)"); vm.ops = []
X = lambda t: ("x", t, None)
tile_x = {q: [[] for _ in range(12)] for q in range(96)}
free_x = {q: [] for q in range(96)}
TI = [(i % 4, i // 4) for i in range(12)]
burst = {q: [] for q in range(96)}
NB = int(os.environ.get("NB", "1"))
for p in range(4):
    q0 = (3 * p + 2) * 8
    o = [[], [], [], []]
    for i, (mt, t) in enumerate(TI):
        z = [acc(j, mt, t) for j in range(4)]
        for h in (0, 2):
            o[0].append(X(pk(z[0] + h, z[0] + h, z[1] + h)))
            o[1].append(X(pk(z[3] + h, z[3] + h, z[1] + h, True)))
            o[2].append(X(pk(z[0] + h, z[0] + h, z[2] + h)))
            o[3].append(X(pk(z[3] + h, z[3] + h, z[2] + h)))
    if NB == 1: burst[q0 + 3] += o[0] + o[1] + o[2] + o[3]
    elif NB == 2: burst[q0 + 3] += o[0] + o[1]; burst[q0 + 4] += o[3]; burst[q0 + 5] += o[2]
    elif NB == 4: burst[q0 + 3] += o[0]; burst[q0 + 4] += o[1]; burst[q0 + 5] += o[2]; burst[q0 + 6] += o[3]
def spread(ops, qs):
    n = len(ops); k = len(qs)
    for i, q in enumerate(qs): free_x[q] += ops[i * n // k:(i + 1) * n // k]
Z0 = acc(0, 0, 0); Z3 = acc(3, 0, 0)
def order48():
    return [(mt * 3 + t) * 4 + e for (mt, t) in TI for e in range(4)]
q = 24
spread([X("v_accvgpr_write_b32 a%d, v%d" % (aSV + r, Z0 + r)) for r in order48()], [q - 1, q, q + 1])
spread([X("v_accvgpr_write_b32 a%d, v%d" % (aSV + 48 + r, Z3 + r)) for r in order48()], [q + 2, q + 3, q + 4])
def e1(zb, ab):
    ops = []; o = order48()
    quads = [o[i] for i in range(0, 48, 4)]
    rd = lambda k: [X("v_accvgpr_read_b32 v%d, a%d" % (16 + 4 * (k & 1) + e, ab + quads[k] + e)) for e in range(4)]
    ops += rd(0)
    for k in range(12):
        x = 16 + 4 * (k & 1)
        if k + 1 < 12: ops += rd(k + 1)
        for h in range(4):
            ops.append(X("v_fma_f32 v%d, v%d, 2.0, -v%d" % (x + h, x + h, zb + quads[k] + h)))
        ops += [X("v_accvgpr_write_b32 a%d, v%d" % (ab + quads[k] + e, x + e)) for e in range(4)]
    return ops
q = 48
spread(e1(Z0, aSV), [q - 1, q, q + 1]); spread(e1(Z3, aSV + 48), [q + 2, q + 3, q + 4])
def packout(bb, row1, mts=range(4)):
    ops = []
    ng = "-" if bb else ""; jj = 3 if bb else 0
    for mt in mts:
        z = acc(jj, mt, 0)
        for t in range(3):
            ops.append(X("v_cvt_pk_bf16_f32 v%d, %sv%d, %sv%d" % (z + 2 * t, ng, z + 4 * t, ng, z + 4 * t + 1)))
            ops.append(X("v_cvt_pk_bf16_f32 v%d, %sv%d, %sv%d" % (z + 2 * t + 1, ng, z + 4 * t + 2, ng, z + 4 * t + 3)))
        o = (mt & 1) * 4 * RP + 384 * bb + row1
        ops.append(("lg", "ds_write_b128 v%d, v[%d:%d] offset:%d" % (12 if mt >= 2 else vOW4, z, z + 3, o), "OW"))
        ops.append(("lg", "ds_write_b64 v%d, v[%d:%d] offset:%d" % (13 if mt >= 2 else vOW2, z + 4, z + 5, o), "OW"))
    return ops
def restore(zb, ab): return [X("v_accvgpr_read_b32 v%d, a%d" % (zb + r, ab + r)) for r in range(48)]
q = 72
free_x[60] += [X("v_add_u32 v12, %d, v%d" % (8 * RP, vOW4)), X("v_add_u32 v13, %d, v%d" % (8 * RP, vOW2)), X("v_add_u32 v16, %d, v%d" % (8 * RP, vRB))]
spread(packout(0, 0) + restore(Z0, aSV), [q, q + 1, q + 2]); spread(packout(1, 0) + restore(Z3, aSV + 48), [q + 2, q + 3, q + 4])
def out_rd(k, row1):
    rho = k >> 1; pr = k & 1
    off = 2 * rho * RP + pr * 4 * 784 + row1; base = vRB
    if rho >= 4: off -= 8 * RP; base = 16
    ao = (0 if row1 else aOR) + 4 * k
    return ("lg", "ds_read_b128 a[%d:%d], v%d offset:%d" % (ao, ao + 3, base, off), "OR%d" % k)
def out_st(k, row1):
    rho = k >> 1; pr = k & 1
    return [X(("s_mov_b32 s%d, %d" % (sT0, (2 * rho + (1 if row1 else 0)) * 224 * 384)) if pr == 0 else ("s_add_u32 s%d, s%d, s45" % (sT0, sT0))),
            ("w", {"OR%d" % k}, None),
            ("vm", "buffer_store_dwordx4 a[%d:%d], v%d, s[%d:%d], s%d offen%s" % ((0 if row1 else aOR) + 4 * k, (0 if row1 else aOR) + 4 * k + 3, vGO, sOUT, sOUT + 3, sT0, os.environ.get("SM1" if row1 else "SM0", "")), "ST")]
STM = os.environ.get("STM", "b")
for k in range(14):
    if STM == "a": qr = 80 + k // 2
    elif STM == "b": qr = 80 + k
    elif STM == "e": qr = 91 + k // 5
    elif STM == "f": qr = 87 + k // 2
    free_x[qr].append(out_rd(k, 0))
    free_x[qr + 1] += out_st(k, 0)
free_x[4 * 8 + 6] += [X("v_sub_u32 v%d, v%d, v%d" % (vTA, vTA, vRHO)), X("v_sub_u32 v%d, v%d, v%d" % (vTAH, vTAH, vRHO))]
free_x[95] += packout(0, RP)

def emit_op(f):
    if f[0] == "bar": lg.drain(A); A("s_barrier"); return
    if f[0] == "w": lg.need(f[1], A); return
    A(f[1])
    if f[2]: (lg if f[0] == "lg" else vm).issue(f[2])
for q in range(96):
    n, gi = divmod(q, 8); p, kk = divmod(n, 3)
    ks, pidx = GORD[gi]
    if STAMPS and CH == 4 and q % 24 == 0: stamp(4)
    if STAMPS and CH == 6 and q >= 64 and q % 4 == 0: stamp(6)
    vg = gi < 7 and n < 11
    c = n + 1
    seq = ["m0", "m1", "m2", "v0", "m3", "v1", "m4", "m5", "m6", "m7", "m8", "m9", "m10", "m11"] if vg else ["m%d" % i for i in range(12)]
    fill = {k: [] for k in seq}
    if q + 3 < 96 and q > 0: fill["m0"].append(uld(q + 3, 2))
    R = [bread(q + 1, mt) for mt in range(4)] if q < 95 else []
    nl = q + 4 < 96
    S = X("s_mov_b32 s%d, %d" % (sUS, (q + 4) * 12288))
    L0 = uld(q + 4, 0); L1 = uld(q + 4, 1)
    if gi < 7:
        fill["m1"] += [R[0]] + ([S] if nl else []); fill["m2"].append(R[1]); fill["v0" if vg else "m4"].append(R[2]); fill["m3"].append(R[3])
        if nl: fill["v1" if vg else "m5"].append(L0); fill["m9"].append(L1)
        if vg:
            o0 = vgen_out(c, gi, 0); o1 = vgen_out(c, gi, 1)
            if gi < 6:
                T = vgen_tr(c, gi + 1)
                fill["m4"].append(T[0]); fill["m5"].append(T[1])
            elif len(free_x[q]) < 10 and not tile_x[q][0]:
                fill["m4"].append(X("s_nop 0")); fill["m5"].append(X("s_nop 0"))
            fill["m5"].append(o0[0]); fill["m6"].append(o0[1]); fill["m6"].append(o1[0])
            fill["m7"].append(o0[2]); fill["m8"].append(o1[1])
            fill["m10"].append(o1[2])
    elif q < 95:
        if nl: fill["m1"] += [S]
        fill["m2"] += [("bar",)]
        if nl: fill["m3"].append(L0); fill["m8"].append(L1)
        for i_ in range(4): fill["m%d" % (4 + i_)].append(R[i_])
        if n + 2 < 12:
            T = vgen_tr(n + 2, 0)
            fill["m9"] += [T[0]]; fill["m10"] += [T[1]]
    ws_ = []
    vm.need({"U%d_%d" % (q, t) for t in range(3)}, ws_.append)
    lg.need({"B%d_%d" % (q, mt) for mt in range(4)} | ({"VA%d" % (gi & 1)} if vg else set()), ws_.append)
    if ws_: A("s_waitcnt " + " ".join(x.split()[1] for x in ws_))
    fx = list(free_x[q])
    for si, k in enumerate(seq):
        if k[0] == "m":
            i = int(k[1:]); mt, t = TI[i]
            d = acc(pidx, mt, t); u = aUF + 12 * (q % 4) + 4 * t; b = vBF + 16 * (q & 1) + 4 * mt
            z = kk == 0 and ks == 0 and (p == 0 or pidx in (1, 2))
            A("v_mfma_f32_16x16x32_bf16 v[%d:%d], a[%d:%d], v[%d:%d], %s" % (d, d + 3, u, u + 3, b, b + 3, "0" if z else "v[%d:%d]" % (d, d + 3)))
        else:
            A(vgen_mfma(c, gi, int(k[1])))
        for f in fill[k]: emit_op(f)
        if k[0] == "m":
            for f in tile_x[q][int(k[1:])]: emit_op(f)
        left = len(seq) - si
        cnt = -(-len(fx) // left) if si >= 1 or len(fx) > 2 * left else 0
        for _ in range(cnt): emit_op(fx.pop(0))
    assert not fx
    for f in burst[q]: emit_op(f)
    if burst[q]: A("s_nop 0")
if STAMPS and CH in (4, 6): stamp(CH)
C("tail: pack z3, stage, barrier, read back, store")
A("s_nop 7")
for f in packout(1, RP): emit_op(f)
lg.drain(A)
A("s_barrier")
for k in range(14): emit_op(out_rd(k, RP))
for k in range(14):
    for f in out_st(k, RP): emit_op(f)

L("L_fin")
stamp()
if STAMPS:
    A("s_waitcnt vmcnt(0)")
    stamp()
    n = nst[0]
    if os.environ.get("DIAG"):
        i, j, K = [int(x) for x in os.environ["DIAG"].split(",")]
        A("s_sub_u32 s40, s%d, s%d" % (sSTAMP + 2 * j, sSTAMP + 2 * i))
        A("s_mul_i32 s40, s40, %d" % K)
        A("s_add_u32 s40, s40, s%d" % (sSTAMP + 2 * (n - 1)))
        L("L_diag")
        A("s_memrealtime s[42:43]"); A("s_waitcnt lgkmcnt(0)")
        A("s_sub_u32 s41, s42, s40"); A("s_cmp_lt_i32 s41, 0"); A("s_cbranch_scc1 L_diag")
        A("s_endpgm")
    sWS = 24; A("s_mov_b32 s%d, s100" % sWS); A("s_mov_b32 s%d, s101" % (sWS + 1)); A("s_mov_b32 s%d, 0x10000000" % (sWS + 2)); A("s_mov_b32 s%d, 0x00020000" % (sWS + 3))
    A("s_lshl_b32 s%d, s2, 2" % sT0)
    A("s_add_u32 s%d, s%d, s%d" % (sT0, sT0, sW))
    A("s_mul_i32 s%d, s%d, %d" % (sT0, sT0, 8 * n))
    A("s_add_u32 s%d, s%d, 0x1000000" % (sT0, sT0))
    A("v_mov_b32 v16, s%d" % sT0)
    A("v_and_b32 v17, 63, v0")
    A("v_cmp_eq_u32 vcc, 0, v17")
    A("s_and_saveexec_b64 s[40:41], vcc")
    for i in range(n):
        A("v_mov_b32 v18, s%d" % (sSTAMP + 2 * i))
        A("v_mov_b32 v19, s%d" % (sSTAMP + 2 * i + 1))
        A("buffer_store_dwordx2 v[18:19], v16, s[%d:%d], 0 offen offset:%d" % (sWS, sWS + 3, 8 * i))
        A("s_nop 1")
    sys.stderr.write("nstamps=%d\n" % n)
L("L_end")
A("s_endpgm")
errs = hazard_check(E.out[main_start:])
sys.stderr.write("hazard errors: %d\n" % errs)
E.raw(""".section .rodata,"a"
.p2align 6
.amdhsa_kernel %s
  .amdhsa_next_free_vgpr 512
  .amdhsa_next_free_sgpr 102
  .amdhsa_accum_offset 256
  .amdhsa_group_segment_fixed_size 0
  .amdhsa_kernarg_size 56
  .amdhsa_user_sgpr_count 2
  .amdhsa_user_sgpr_kernarg_segment_ptr 1
  .amdhsa_system_sgpr_workgroup_id_x 1
.end_amdhsa_kernel""" % KN)
print(E.text())
```
